```python
import torch

def _softmax(x, axis=-1):
    return torch.softmax(x, dim=axis)

def _gelu(x):
    return torch.nn.functional.gelu(x, approximate='tanh')

def _silu(x):
    return torch.nn.functional.silu(x)

def _sigmoid(x):
    return torch.sigmoid(x)

def _layernorm(x, axis=-1, eps=1e-05):
    m = x.mean(dim=axis, keepdim=True)
    v = x.var(dim=axis, keepdim=True, unbiased=False)
    return (x - m) / torch.sqrt(v + eps)

def _scatter_add(tgt, idx, src, axis=0):
    return tgt.clone().index_add_(axis, idx, src)

def _segment_sum(src, seg, n):
    out = torch.zeros((n,) + src.shape[1:], dtype=src.dtype)
    return out.index_add_(0, seg, src)

def _pad(x, pw):
    flat = tuple((v for pair in reversed(pw) for v in pair))
    return torch.nn.functional.pad(x, flat)
kernel_name = 'adaLN_cond__memory_aug_recurrent_mem_tr__mixer_s_mlp__prompt'

def setup_inputs():

    _w = lambda a: (lambda t: t.to(torch.bfloat16) if t.is_floating_point() else t)(torch.as_tensor(a))

    def _A_setup():
        B, S, Dm = (1, 2048, 1024)
        H, Dh = (32, 128)
        M, seg = (8, 32)
        seg = min(seg, S)
        S = S // seg * seg
        return {'x': _w((lambda *s: torch.randn(*s, dtype=torch.bfloat16) * 0.05)(B, S, Dm)), 'mem0': _w((lambda *s: torch.randn(*s, dtype=torch.bfloat16) * 0.4)(B, M, Dm)), 'Wq': _w((lambda *s: torch.randn(*s, dtype=torch.bfloat16) * 3.2)(Dm, H, Dh) * Dm ** (-0.5)), 'Wk': _w((lambda *s: torch.randn(*s, dtype=torch.bfloat16) * 3.2)(Dm, H, Dh) * Dm ** (-0.5)), 'Wv': _w((lambda *s: torch.randn(*s, dtype=torch.bfloat16) * 0.4)(Dm, H, Dh) * Dm ** (-0.5)), 'Wo': _w((lambda *s: torch.randn(*s, dtype=torch.bfloat16) * 0.4)(H, Dh, Dm) * (H * Dh) ** (-0.5)), 'seg_len': seg}
    _A_in = _A_setup()

    def _B_setup():
        B, S, D, F = (1, 2048, 1024, 3584)
        return {'x': _w((lambda *s: torch.randn(*s, dtype=torch.bfloat16) * 0.05)(B, S, D)), 'w1': _w((lambda *s: torch.randn(*s, dtype=torch.bfloat16) * 3.2)(D, D) * D ** (-0.5)), 'w2': _w((lambda *s: torch.randn(*s, dtype=torch.bfloat16) * 3.2)(D, D) * D ** (-0.5)), 'w3': _w((lambda *s: torch.randn(*s, dtype=torch.bfloat16) * 3.2)(D, F) * D ** (-0.5)), 'w4': _w((lambda *s: torch.randn(*s, dtype=torch.bfloat16) * 3.2)(F, D) * F ** (-0.5))}
    _B_in = _B_setup()
    return {'A_x': _A_in['x'], 'A_mem0': _A_in['mem0'], 'A_Wq': _A_in['Wq'], 'A_Wk': _A_in['Wk'], 'A_Wv': _A_in['Wv'], 'A_Wo': _A_in['Wo'], 'A_seg_len': _A_in['seg_len'], 'B_x': _B_in['x'], 'B_w1': _B_in['w1'], 'B_w2': _B_in['w2'], 'B_w3': _B_in['w3'], 'B_w4': _B_in['w4'], 'c': _w((lambda *s: torch.randn(*s, dtype=torch.bfloat16) * 0.1)(1, 1024) * 8.0), 'w_mod': _w((lambda *s: torch.randn(*s, dtype=torch.bfloat16) * 0.1)(1024, 6 * 1024) * 1024 ** (-0.5) * 8.0)}

def reference(A_x, A_mem0, A_Wq, A_Wk, A_Wv, A_Wo, A_seg_len, B_x, B_w1, B_w2, B_w3, B_w4, c, w_mod):

    def _A_ref(x, mem0, Wq, Wk, Wv, Wo, seg_len):
        B, S, Dm = x.shape
        H, Dh = (Wq.shape[1], Wq.shape[2])
        M = mem0.shape[1]
        scale = Dh ** (-0.5)
        n_seg = S // seg_len
        L = M + seg_len
        idx = torch.arange(L)
        mask = (idx[:, None] < M) | (idx[:, None] >= idx[None, :])
        mem = mem0
        outs = []
        for s in range(n_seg):
            xs = x[:, s * seg_len:(s + 1) * seg_len, :].clone()
            h = torch.concatenate([mem, xs], axis=1)
            q = torch.einsum('btd,dhe->bhte', h, Wq)
            k = torch.einsum('btd,dhe->bhte', h, Wk)
            v = torch.einsum('btd,dhe->bhte', h, Wv)
            scores = torch.einsum('bhqe,bhke->bhqk', q, k) * scale
            scores = torch.where(mask[None, None], scores, -1000000000.0)
            p = _softmax(scores, axis=-1)
            o = torch.einsum('bhqk,bhke->bhqe', p, v)
            o = torch.einsum('bhte,hed->btd', o, Wo)
            mem = o[:, :M, :].clone()
            outs.append(o[:, M:, :])
        return torch.concatenate(outs, axis=1)

    def _B_ref(x, w1, w2, w3, w4):
        B, S, D = x.shape
        h = _gelu(_layernorm(x, axis=-1) @ w1)
        c = D // 4
        g0 = _pad(h[:, :, 0 * c:1 * c], ((0, 0), (1, 0), (0, 0)))[:, :S, :]
        g1 = _pad(h[:, :, 1 * c:2 * c], ((0, 0), (0, 1), (0, 0)))[:, 1:, :]
        g2 = _pad(h[:, :, 2 * c:3 * c], ((0, 0), (2, 0), (0, 0)))[:, :S, :]
        g3 = _pad(h[:, :, 3 * c:], ((0, 0), (0, 2), (0, 0)))[:, 2:, :]
        hs = torch.concatenate([g0, g1, g2, g3], axis=-1) @ w2
        x1 = x + hs
        h2 = _gelu(_layernorm(x1, axis=-1) @ w3) @ w4
        return x1 + h2
    x = A_x
    mod = (_silu(c) @ w_mod).reshape(c.shape[0], 6, 1, -1)
    sa, ca, ga, sb, cb, gb = (mod[:, 0].clone(), mod[:, 1].clone(), mod[:, 2].clone(), mod[:, 3].clone(), mod[:, 4].clone(), mod[:, 5].clone())
    h = _layernorm(x, axis=-1) * (1 + ca) + sa
    x = x + ga * _A_ref(h, A_mem0, A_Wq, A_Wk, A_Wv, A_Wo, A_seg_len)
    h = _layernorm(x, axis=-1) * (1 + cb) + sb
    x = x + gb * _B_ref(h, B_w1, B_w2, B_w3, B_w4)
    return x
```

```python
import re

class Asm:
    def __init__(self):
        self.lines = []; self.launches = []; self.kernels = []; self.uid = 0; self.header = []
    def e(self, s):
        for l in s.strip("\n").split("\n"):
            l = l.strip()
            if l: self.lines.append("    " + l)
    def c(self, s): self.lines.append("    ; " + s)
    def label(self, l): self.lines.append(l + ":")
    def newlabel(self, p="L"):
        self.uid += 1; return f"{p}_{self.uid}"
    def begin_kernel(self, name):
        self.lines += [f".globl {name}", ".p2align 8", f".type {name},@function", f"{name}:"]
        self.cur = name
    def end_kernel(self, vgpr, sgpr=102, accum=None, wgy=False):
        if accum is None: accum = min(256, (vgpr + 3) // 4 * 4)
        self.kernels.append((self.cur, vgpr, sgpr, accum, wgy))
    def launch(self, name, grid, block, lds=0):
        g = tuple(grid) + (1,) * (3 - len(grid)); b = tuple(block) + (1,) * (3 - len(block))
        self.launches.append(f"; @launch kernel={name} grid=({g[0]},{g[1]},{g[2]}) block=({b[0]},{b[1]},{b[2]}) lds={lds}")
    def srd(self, d, base, nbytes, off=0):
        if off < 0:
            self.e(f"s_sub_u32 s{d}, s{base}, {-off:#x}\ns_subb_u32 s{d+1}, s{base+1}, 0\ns_and_b32 s{d+1}, s{d+1}, 0xffff")
        elif off:
            self.e(f"s_add_u32 s{d}, s{base}, {off:#x}\ns_addc_u32 s{d+1}, s{base+1}, 0\ns_and_b32 s{d+1}, s{d+1}, 0xffff")
        else:
            self.e(f"s_mov_b32 s{d}, s{base}\ns_and_b32 s{d+1}, s{base+1}, 0xffff")
        self.e(f"s_mov_b32 s{d+2}, {nbytes:#x}\ns_mov_b32 s{d+3}, 0x20000")
    def interleave(self, main, fill, start=0, end=None):
        n = len(main); end = n if end is None else end
        span = max(1, end - start); fi = 0
        for i, m in enumerate(main):
            self.e(m)
            if start <= i < end:
                tgt = ((i - start + 1) * len(fill) + span - 1) // span
                while fi < min(tgt, len(fill)):
                    self.e(fill[fi]); fi += 1
        while fi < len(fill):
            self.e(fill[fi]); fi += 1
    def text(self, kernarg=136):
        out = list(self.header) + self.launches
        def compact(l):
            if l.startswith("; TYPES"): return l
            return l.split(";")[0].strip().replace(", ", ",")
        out += ['.amdgcn_target "amdgcn-amd-amdhsa--gfx950"', ".text"] + [c for c in (compact(l) for l in self.lines) if c]
        out += ['.section .rodata,"a"']
        for (n, v, s, a, wgy) in self.kernels:
            out += [".p2align 6", f".amdhsa_kernel {n}", f"  .amdhsa_next_free_vgpr {v}", f"  .amdhsa_next_free_sgpr {s}",
                    f"  .amdhsa_accum_offset {a}", "  .amdhsa_group_segment_fixed_size 0", f"  .amdhsa_kernarg_size {kernarg}",
                    "  .amdhsa_user_sgpr_count 2", "  .amdhsa_user_sgpr_kernarg_segment_ptr 1", "  .amdhsa_system_sgpr_workgroup_id_x 1"]
            if wgy: out += ["  .amdhsa_system_sgpr_workgroup_id_y 1"]
            out += [".end_amdhsa_kernel"]
        return "\n".join(out) + "\n"

def vr(b, n=1, f="v"):
    return f"{f}{b}" if n == 1 else f"{f}[{b}:{b+n-1}]"
def ar(b, n=1): return vr(b, n, "a")
def sr(b, n=1): return vr(b, n, "s")

_REG = re.compile(r"^-?\|?(abs\()?([vas])(?:(\d+)|\[(\d+):(\d+)\])\)?\|?$")
def regs(tok):
    tok = tok.strip()
    if tok in ("vcc",): return {("s", 106), ("s", 107)}
    if tok == "vcc_lo": return {("s", 106)}
    if tok == "vcc_hi": return {("s", 107)}
    if tok == "exec": return {("s", 126), ("s", 127)}
    if tok == "exec_lo": return {("s", 126)}
    if tok == "exec_hi": return {("s", 127)}
    if tok == "m0": return {("s", 124)}
    m = _REG.match(tok)
    if not m: return set()
    f = m.group(2)
    if m.group(3) is not None: lo = hi = int(m.group(3))
    else: lo, hi = int(m.group(4)), int(m.group(5))
    return {(f, i) for i in range(lo, hi + 1)}

TRANS = ("v_exp_f32", "v_log_f32", "v_rcp_f32", "v_rsq_f32", "v_sqrt_f32", "v_sin_f32", "v_cos_f32", "v_rcp_iflag_f32")
def passes(mn):
    if "32x32x16" in mn or "32x32x8" in mn or "32x32x32" in mn: return 8
    if "16x16x32" in mn or "16x16x16" in mn or "16x16x64" in mn: return 4
    return 16

class Ins:
    def __init__(self, text, lineno):
        self.text = text; self.lineno = lineno
        t = text.split(";")[0].strip()
        parts = t.split(None, 1)
        self.mn = parts[0]
        rest = parts[1] if len(parts) > 1 else ""
        ops = []; cur = ""; depth = 0
        for ch in rest:
            if ch in "[(": depth += 1
            if ch in "])": depth -= 1
            if ch == "," and depth == 0: ops.append(cur.strip()); cur = ""
            else: cur += ch
        if cur.strip(): ops.append(cur.strip())
        self.mods = ""
        if ops:
            sp = ops[-1].split(None, 1)
            ops[-1] = sp[0]; self.mods = sp[1] if len(sp) > 1 else ""
        self.ops = ops
        mn = self.mn
        self.is_mfma = mn.startswith("v_mfma") or mn.startswith("v_smfmac")
        self.is_valu = mn.startswith("v_") and not self.is_mfma
        self.is_vmem = mn.startswith("buffer_") or mn.startswith("global_")
        self.is_ds = mn.startswith("ds_")
        self.is_salu = mn.startswith("s_")
        self.is_trans = any(mn.startswith(x) for x in TRANS)
        self.is_dpp = "_dpp" in mn or "row_" in self.mods or "quad_perm" in self.mods
        self.is_perm = mn.startswith("v_permlane")
        self.is_rl = mn.startswith("v_readlane") or mn.startswith("v_readfirstlane")
        self.ws = 1
        if mn == "s_nop": self.ws = int(ops[0], 0) + 1
        R = [regs(o) for o in ops]
        self.w = set(); self.r = set(); self.srcC = set(); self.srcAB = set(); self.stdata = set()
        self.is_dma = self.is_vmem and re.search(r"\blds\b", self.mods) is not None
        if self.is_mfma:
            self.w = R[0]; self.srcAB = R[1] | R[2]
            if mn.startswith("v_smfmac"): self.srcC = R[0]; self.srcAB |= R[3]
            else: self.srcC = R[3] if len(R) > 3 else set()
            self.r = self.srcAB | self.srcC
        elif self.is_perm:
            self.w = R[0] | R[1]; self.r = R[0] | R[1]
        elif self.is_valu and not R: pass
        elif self.is_valu:
            self.w = set(R[0]); srcs = R[1:]
            if "_co_" in mn or mn.startswith("v_div_scale") or mn.startswith("v_mad_u64"):
                self.w |= R[1]; srcs = R[2:]
            for s in srcs: self.r |= s
            if mn.startswith("v_fmac") or mn.startswith("v_pk_fmac") or mn.startswith("v_dot2c"): self.r |= R[0]
            if mn.startswith("v_cndmask") and len(ops) == 3: self.r |= regs("vcc")
            if mn.startswith("v_cmpx"): self.w |= regs("exec")
            if self.is_dpp: self.r |= R[0]
        elif self.is_vmem:
            if mn.startswith("buffer_inv") or mn.startswith("buffer_wbl2"): pass
            elif self.is_dma:
                for s in R: self.r |= s
                self.r |= regs("m0")
            elif "store" in mn:
                if mn.startswith("buffer"): self.stdata = R[0]
                else: self.stdata = R[1]
                for s in R: self.r |= s
            elif "atomic" in mn:
                for s in R: self.r |= s
                if "sc0" in self.mods: self.w = R[0]
            else:
                self.w = R[0]
                for s in R[1:]: self.r |= s
        elif self.is_ds:
            if "read" in mn or "permute" in mn or "swizzle" in mn:
                self.w = R[0]
                for s in R[1:]: self.r |= s
            else:
                for s in R: self.r |= s
        elif self.is_salu:
            nodst = ("s_cmp", "s_cbranch", "s_branch", "s_waitcnt", "s_barrier", "s_nop", "s_endpgm", "s_sleep", "s_setprio", "s_bitcmp", "s_setpc")
            if any(mn.startswith(x) for x in nodst):
                for s in R: self.r |= s
            else:
                if R: self.w = set(R[0])
                for s in R[1:]: self.r |= s
                if "saveexec" in mn: self.w |= regs("exec")

def need(p, c):
    n = 0
    vw = {x for x in p.w if x[0] in "va"}; sw = {x for x in p.w if x[0] == "s"}
    if p.is_valu:
        if c.is_mfma and (vw & c.r): n = max(n, 2)
        if c.is_perm and (vw & c.r): n = max(n, 2)
        if c.is_dpp and (vw & c.r): n = max(n, 2)
        if c.is_rl and (vw & c.r): n = max(n, 1)
        if p.is_trans and c.is_valu and not c.is_trans and (vw & c.r): n = max(n, 1)
        if p.is_trans and (c.is_vmem or c.is_ds or c.is_mfma) and (vw & c.r): n = max(n, 2 if c.is_mfma else 1)
        if sw:
            if c.is_valu and (sw & c.r): n = max(n, 4 if c.is_rl else 2)
            if c.is_vmem and (sw & c.r): n = max(n, 5)
            if ("s", 126) in sw and (c.is_mfma or c.is_rl or c.is_perm): n = max(n, 4)
            if ("s", 126) in sw and c.is_dpp: n = max(n, 5)
        if ("sdwa" in p.mn or "op_sel" in p.mods) and "pk_" not in p.mn and c.is_valu and (vw & (c.r | c.w)): n = max(n, 1)
    if p.is_mfma:
        ps = passes(p.mn); big = {2: 5, 4: 8, 8: 12, 16: 20}[ps]
        if c.is_mfma:
            if p.w & c.srcAB: n = max(n, big)
            if p.w & c.srcC:
                if not (p.w == c.srcC and c.mn == p.mn): n = max(n, {2: 4, 4: 6, 8: 10, 16: 18}[ps])
                elif ps == 2: n = max(n, 2)
            elif (p.w & c.w) and not (p.text == c.text): n = max(n, big)
        elif (c.is_valu or c.is_vmem or c.is_ds) and (p.w & (c.r | c.w)): n = max(n, big)
        if c.is_valu and (p.srcC & c.w): n = max(n, {2: 1, 4: 3, 8: 7, 16: 15}[ps])
    if p.is_salu and ("s", 124) in p.w and c.is_dma: n = max(n, 1)
    if p.is_vmem and p.stdata and ("x4" in p.mn or "x3" in p.mn) and (p.stdata & c.w): n = max(n, 2 if c.is_valu else 1)
    return n

def check_hazards(text, verbose=True):
    lines = text.split("\n")
    ins = []; labels = {}
    for i, l in enumerate(lines):
        s = l.split(";")[0].strip()
        if not s or s.startswith("."): continue
        if s.endswith(":"): labels[s[:-1]] = len(ins); continue
        ins.append(Ins(s, i + 1))
    errs = []
    W = 24
    def scan(seq):
        for j in range(len(seq)):
            dist = 0
            for i in range(j - 1, max(-1, j - W), -1):
                p = seq[i]
                if p.mn in ("s_endpgm", "s_branch"): break
                n = need(p, seq[j])
                if n > dist: errs.append((p, seq[j], n, dist))
                dist += p.ws
                if dist >= 21: break
    scan(ins)
    for k, x in enumerate(ins):
        if x.mn.startswith("s_cbranch") or x.mn == "s_branch":
            t = labels.get(x.ops[0])
            if t is None: continue
            pre = ins[max(0, k - W):k]
            cut = 0
            for q, p in enumerate(pre):
                if p.mn in ("s_endpgm", "s_branch"): cut = q + 1
            pre = pre[cut:]
            fake = Ins("s_nop 0", x.lineno)
            seq = pre + [fake] + ins[t:t + W]
            base = len(pre) + 1
            for j in range(base, len(seq)):
                if seq[j - 1].mn in ("s_endpgm", "s_branch") and j - 1 >= base: break
                dist = sum(q.ws for q in seq[base - 1:j])
                for i in range(base - 2, -1, -1):
                    p = seq[i]
                    n = need(p, seq[j])
                    if n > dist: errs.append((p, seq[j], n, dist))
                    dist += p.ws
                    if dist >= 21: break
    seen = set(); out = []
    for (p, c, n, d) in errs:
        key = (p.lineno, c.lineno)
        if key in seen: continue
        seen.add(key); out.append(f"HAZARD need {n} have {d}: L{p.lineno} `{p.text}` -> L{c.lineno} `{c.text}`")
    if verbose:
        for o in out[:40]: print(o)
        print(f"hazard check: {len(ins)} instructions, {len(out)} violations")
    return out

def fix_hazards(lines):
    out = []; hist = []
    for l in lines:
        s = l.split(";")[0].strip()
        if not s or s.startswith(".") or s.endswith(":"):
            out.append(l); continue
        c = Ins(s, 0)
        dist = 0; deficit = 0
        for p in reversed(hist[-24:]):
            if p.mn in ("s_endpgm", "s_branch"): break
            n = need(p, c)
            if n > dist: deficit = max(deficit, n - dist)
            dist += p.ws
            if dist >= 21: break
        while deficit > 0:
            k = min(deficit, 16)
            out.append(f"    s_nop {k-1}"); hist.append(Ins(f"s_nop {k-1}", 0)); deficit -= k
        out.append(l); hist.append(c)
    return out

B128_GROUPS = [[0,1,2,3,12,13,14,15,20,21,22,23,24,25,26,27], [4,5,6,7,8,9,10,11,16,17,18,19,28,29,30,31]]
B128_GROUPS += [[x + 32 for x in g] for g in B128_GROUPS]
def conflicts(addrs, kind):
    if kind == "b128": groups, nb, w = B128_GROUPS, 64, 4
    elif kind == "b64": groups, nb, w = [list(range(32)), list(range(32, 64))], 64, 2
    else: raise ValueError
    tot = 0
    for g in groups:
        banks = {}
        for l in g:
            for d in range(w):
                a = addrs[l] // 4 + d
                banks.setdefault(a % nb, set()).add(a)
        tot += max(len(v) for v in banks.values()) - 1
    return tot
```

```python
from asmgen import *
from layout import *

def fx(row): return (row >> 1) & 7
def fw_bits(TN):
    pitch = TN * 2
    if pitch % 256 == 0: return 3
    if pitch % 128 == 0: return 2
    return 1

def load_ptr(A, sdst, slot):
    A.e(f"s_load_dwordx2 s[{sdst}:{sdst+1}], s[0:1], {slot*8}")

class Src:
    def __init__(self, arg, off, ld, nbytes): self.arg, self.off, self.ld, self.nbytes = arg, off, ld, nbytes
def wsT(name, ld, nbytes): return Src(ARG["ws"], WS[name], ld, nbytes)
def inT(name, ld, nbytes): return Src(ARG[name], 0, ld, nbytes)

SPREAD = True
FAKE32 = False
EKS = 8
WIDE = False
GPROF = False
GPROF_ID = [0]
KROT = True
HEAD = 2
RFRAC = 70
NOADV = 0
DROP = 0
FAKEW = 0
FAKEX = 0
GELU_C0 = -2.0 * 0.7978845608028654 * 1.4426950408889634
GELU_C1 = GELU_C0 * 0.044715
import struct
def f2u(x): return struct.unpack("<I", struct.pack("<f", x))[0]

def gemm(A, name, *, N, K, TM, TN, WM, WN, NST, X, Ws, Outs, epi, xm, xn, M=2048, rowshift=None,
         res1=None, res2=None, colvec=None, acc_agpr=True, emb=None, fs=False, depwait=None, ksplit=1, preepi=None, dyn=False, multi=False, mask0=False, pstride=None):
    NW = WM * WN
    tm, tn = TM // WM, TN // WN
    MT, NT = tm // 16, tn // 16
    assert NT % 2 == 0
    KS = K // 64 // ksplit
    assert KS * 64 * ksplit == K
    GM, GN = M // TM, N // TN
    ntiles = GM * GN
    NPM = N // len(Ws)
    assert NPM % TN == 0
    tiles_per_mat = NPM // TN
    pitch = TN * 2
    XB = TM * 128; WB = 64 * pitch; STB = XB + WB
    nX = XB // 1024 // NW; nW = WB // 1024 // NW
    assert nX * 1024 * NW == XB and nW * 1024 * NW == WB
    nD = nX + nW
    fb = fw_bits(TN); ncls = min(1 << fb, NT)
    nacc = MT * NT * 4
    nfrag = (MT + NT) * 4
    if acc_agpr:
        acc = lambda nt, mt: ("a", (nt * MT + mt) * 4)
        vb = 0
        fragf = "v"; fr0 = 40
        vtop = fr0 + (4 if fs else 2) * nfrag
        agprs = nacc * (2 if multi else 1)
    else:
        acc = lambda nt, mt: ("v", 40 + (nt * MT + mt) * 4)
        fragf = "a"; fr0 = 0
        vtop = 40 + nacc
        agprs = 2 * nfrag
    def xfrag(s, mt): return vr(fr0 + s * nfrag + mt * 4, 4, fragf)
    def wfrag(s, nt, h=None):
        b = fr0 + s * nfrag + MT * 4 + nt * 4
        return vr(b, 4, fragf) if h is None else vr(b + 2 * h, 2, fragf)
    def accr(nt, mt): f, b = acc(nt, mt); return vr(b, 4, f)
    VD = 8; assert nD <= 16
    VX = 24; VW = 26; VO = 34
    if acc_agpr: ep0 = fr0
    else: ep0 = vtop; vtop += 64
    vtop = max(vtop, ep0 + 64)
    NP = NT // 2
    nres = (1 if res1 else 0) + (1 if res2 else 0)
    rs0 = vtop; vtop += nres * MT * NP * 4
    cv0 = vtop; vtop += (NP * 8 if colvec is not None else 0)
    assert vtop <= 256, vtop
    accum_off = (vtop + 3) // 4 * 4
    total_v = accum_off + agprs
    assert total_v <= 512 // max(1, NW // 4), (total_v, NW)

    if emb is None:
        A.begin_kernel(name)
        done = A.newlabel("done")
        A.e(f"s_cmp_ge_u32 s2, {ntiles}\ns_cbranch_scc1 {done}")
        per = xm * xn
        nblk_n = GN // xn
        assert ntiles % (8 * per) == 0 or ntiles == 8 * per, (ntiles, per)
        assert per & (per - 1) == 0 and xn & (xn - 1) == 0
        A.e(f"""
        s_and_b32 s3, s2, 7
        s_lshr_b32 s4, s2, 3
        s_lshr_b32 s5, s4, {per.bit_length()-1}      ; round
        s_and_b32 s4, s4, {per-1}                    ; within
        s_lshl_b32 s5, s5, 3
        s_add_u32 s5, s5, s3""")
        if nblk_n & (nblk_n - 1) == 0:
            A.e(f"s_lshr_b32 s6, s5, {nblk_n.bit_length()-1}\ns_and_b32 s7, s5, {nblk_n-1}")
        else:
            magic = (1 << 32) // nblk_n + 1
            A.e(f"s_mul_hi_u32 s6, s5, {magic:#x}\ns_mul_i32 s7, s6, {nblk_n}\ns_sub_u32 s7, s5, s7")
        A.e(f"""
        s_lshr_b32 s8, s4, {xn.bit_length()-1}
        s_and_b32 s9, s4, {xn-1}
        s_mul_i32 s6, s6, {xm}
        s_add_u32 s40, s6, s8                        ; tile_m
        s_mul_i32 s7, s7, {xn}
        s_add_u32 s41, s7, s9                        ; tile_n""")
    else:
        A.label(name)
    if GPROF: A.e("s_memtime s[80:81]")
    nm = len(Ws)
    if multi: A.e("s_lshr_b32 s76, s40, 4\ns_and_b32 s40, s40, 15")
    if ksplit > 1:
        assert GN & (GN - 1) == 0 and nm == 1 and epi == "part"
        A.e(f"s_lshr_b32 s43, s41, {GN.bit_length()-1}\ns_and_b32 s41, s41, {GN-1}")
    if nm > 1:
        assert tiles_per_mat & (tiles_per_mat - 1) == 0
        A.e(f"s_lshr_b32 s42, s41, {tiles_per_mat.bit_length()-1}\ns_and_b32 s41, s41, {tiles_per_mat-1}")
        for i in range(1, nm): assert Ws[i].arg == Ws[0].arg + i and Ws[i].ld == Ws[0].ld
        for i in range(nm): load_ptr(A, 66 + 2 * i, Ws[i].arg)
    else:
        load_ptr(A, 6, Ws[0].arg)
    load_ptr(A, 4, X.arg)
    load_ptr(A, 8, Outs[0].arg)
    if res1: load_ptr(A, 10, res1.arg)
    if res2: load_ptr(A, 46, res2.arg)
    if colvec is not None: load_ptr(A, 48, ARG["ws"])
    A.e(f"""
    v_and_b32 v1, 63, v0             ; lane
    v_lshrrev_b32 v2, 6, v0          ; wave
    v_and_b32 v3, 15, v1             ; lam
    v_lshrrev_b32 v4, 4, v1          ; g""")
    A.e("s_nop 0\nv_readfirstlane_b32 s50, v2")
    A.e(f"s_lshr_b32 s52, s50, {WN.bit_length()-1}\ns_and_b32 s53, s50, {WN-1}")
    A.e(f"s_mul_i32 s54, s40, {TM}   ; m0")
    assert nX % 2 == 0 or nX == 1
    A.e(f"""
    s_mul_i32 s55, s50, {nX}
    s_lshl_b32 s56, s55, 3
    s_add_u32 s56, s56, s54
    {"s_sub_u32 s56, s56, s54" if FAKEX else ""}
    v_lshrrev_b32 v5, 3, v1
    v_add_u32 v5, s56, v5
    s_lshl_b32 s56, s55, 2
    v_add_u32 v6, s56, v4
    v_xor_b32 v6, v6, v1
    v_and_b32 v6, 7, v6
    s_mov_b32 s56, {X.ld}
    v_mul_lo_u32 v5, v5, s56
    v_lshl_add_u32 v{VD}, v6, 4, v5""")
    for j in range(1, nX):
        if j == 1: A.e(f"v_xor_b32 v6, 64, v{VD}\nv_add_u32 v{VD+1}, {8*X.ld}, v6")
        else: A.e(f"v_add_u32 v{VD+j}, {16*X.ld}, v{VD+j-2}")
    A.e(f"s_mul_i32 s57, s41, {TN*2}   ; n0 bytes")
    if FAKEW: A.e(f"s_and_b32 s57, s57, {FAKEW-1}")
    cpr = pitch // 16
    rpi = 64 // cpr if cpr & (cpr - 1) == 0 else 0
    per = max(1, 16 // rpi) if rpi else 10**9
    for j in range(nW):
        if j >= per:
            A.e(f"v_add_u32 v{VD+nX+j}, {per*rpi*Ws[0].ld}, v{VD+nX+j-per}"); continue
        A.e(f"""
        s_mul_i32 s55, s50, {nW}
        s_add_u32 s55, s55, {j}
        s_lshl_b32 s55, s55, 6
        v_add_u32 v5, s55, v1""")
        if cpr & (cpr - 1) == 0:
            A.e(f"v_lshrrev_b32 v6, {cpr.bit_length()-1}, v5\nv_and_b32 v7, {cpr-1}, v5")
        else:
            magic = (1 << 20) // cpr + 1
            for t in range(64 * cpr): assert (t * magic) >> 20 == t // cpr
            A.e(f"v_mul_u32_u24 v6, {magic}, v5\nv_lshrrev_b32 v6, 20, v6\nv_mul_u32_u24 v7, {cpr}, v6\nv_sub_u32 v7, v5, v7")
        if fb == 3:
            A.e("v_and_b32 v5, 3, v6\nv_bfe_u32 v35, v6, 3, 1\nv_lshl_or_b32 v5, v35, 2, v5")
        elif fb == 2:
            A.e("v_bfe_u32 v5, v6, 1, 1\nv_bfe_u32 v35, v6, 3, 1\nv_lshl_or_b32 v5, v35, 1, v5")
        else:
            A.e("v_bfe_u32 v5, v6, 3, 1")
        A.e(f"""
        v_lshlrev_b32 v5, 1, v5
        v_xor_b32 v7, v7, v5
        s_mov_b32 s56, {Ws[0].ld}
        v_mul_lo_u32 v6, v6, s56
        v_lshl_add_u32 v6, v7, 4, v6
        v_add_u32 v{VD+nX+j}, s57, v6""")
    A.e("s_waitcnt lgkmcnt(0)")
    if nm > 1:
        A.e("s_mov_b64 s[6:7], s[66:67]")
        for i in range(1, nm if not FAKEW else 1): A.e(f"s_cmp_eq_u32 s42, {i}\ns_cselect_b64 s[6:7], s[{66+2*i}:{67+2*i}], s[6:7]")
    A.srd(12, 4, X.nbytes, X.off)
    A.srd(16, 6, Ws[0].nbytes, Ws[0].off)
    if nm > 1:
        step = Outs[1].off - Outs[0].off
        for i in range(1, nm): assert Outs[i].off == Outs[0].off + i * step
        A.srd(20, 8, Outs[0].nbytes + (nm - 1) * step, Outs[0].off)
        A.e(f"s_mul_i32 s51, s42, {step}")
    else:
        A.srd(20, 8, Outs[0].nbytes, Outs[0].off)
        A.e("s_mov_b32 s51, 0" if ksplit == 1 else f"s_mul_i32 s51, s43, {pstride or M*N*4}")
    if res1: A.srd(24, 10, res1.nbytes, res1.off)
    if res2: A.srd(28, 46, res2.nbytes, res2.off)
    if colvec is not None: A.srd(32, 48, 6144 * 4, WS["mod"])
    late0 = len(A.lines)
    A.e(f"""
    s_mul_i32 s55, s52, {tm*128}
    v_lshrrev_b32 v5, 1, v3
    v_xor_b32 v5, v5, v4
    v_lshlrev_b32 v5, 4, v5
    v_lshl_add_u32 v5, v3, 7, v5
    v_add_u32 v{VX}, s55, v5
    v_xor_b32 v{VX+1}, 64, v{VX}""")
    A.e(f"""
    v_lshrrev_b32 v5, 2, v3            ; r
    v_and_b32 v6, 3, v3                ; c
    v_lshl_add_u32 v7, v4, 3, v5       ; 8g + r
    v_mul_u32_u24 v7, {pitch}, v7
    v_lshl_add_u32 v7, v6, 3, v7
    v_add_u32 v7, {XB}, v7""")
    if fb == 3:   A.e("v_and_b32 v6, 1, v4\nv_lshl_or_b32 v5, v6, 2, v5")
    elif fb == 2: A.e("v_lshrrev_b32 v5, 1, v5\nv_and_b32 v6, 1, v4\nv_lshl_or_b32 v5, v6, 1, v5")
    else:         A.e("v_and_b32 v5, 1, v4")
    full = 1 << fb
    if NT % full == 0:
        classes = list(range(full))
        A.e(f"s_mul_i32 s55, s53, {NT*32}")
        for c in classes:
            A.e(f"v_xor_b32 v6, {c}, v5\nv_lshl_add_u32 v6, v6, 5, v7\nv_add_u32 v{VW+c}, s55, v6")
        def waddr(nt): return VW + (nt % full), (nt // full) * full * 32
    else:
        assert NT <= 8
        classes = list(range(NT))
        for nt in range(NT):
            A.e(f"s_mul_i32 s55, s53, {NT}\ns_add_u32 s55, s55, {nt}\nv_xor_b32 v6, s55, v5\nv_lshl_add_u32 v{VW+nt}, v6, 5, v7")
        def waddr(nt): return VW + nt, 0
    addr_regs = [VX, VX + 1] + [VW + c for c in classes]
    ldo = Outs[0].ld
    A.e(f"""
    s_mul_i32 s55, s52, {tm}
    s_add_u32 s55, s55, s54
    v_add_u32 v5, s55, v3              ; row
    v_and_b32 v6, 1, v4
    v_lshlrev_b32 v6, 4, v6
    v_lshrrev_b32 v7, 1, v4
    v_lshl_add_u32 v6, v7, 3, v6       ; colbase
    s_mul_i32 s55, s53, {tn}
    s_mul_i32 s56, s41, {TN}
    s_add_u32 s55, s55, s56
    v_add_u32 v6, s55, v6              ; col
    s_mov_b32 s56, {ldo}
    v_mul_lo_u32 v7, v5, s56
    v_lshl_add_u32 v{VO}, v6, 1, v7""")
    if epi == "part":
        A.e(f"v_lshl_add_u32 v6, v4, 2, s55\nv_lshl_add_u32 v{VO}, v6, 2, v7")
    wide = WIDE and NP % 2 == 0
    if wide:
        A.e(f"v_lshrrev_b32 v7, 3, v3\nv_mul_u32_u24 v36, {8*ldo - 64}, v7\nv_sub_u32 v36, v{VO}, v36")
    nextra = 0
    res0 = len(A.lines)
    for ri, (res, srd) in enumerate([(res1, 24), (res2, 28)]):
        if not res: continue
        assert res.ld == ldo
        for mt in range(MT):
            A.e(f"s_mov_b32 s56, {mt*16*ldo}")
            for p in range(NP):
                r = rs0 + ((ri * MT + mt) * NP + p) * 4
                A.e(f"buffer_load_dwordx4 {vr(r,4)}, v{VO}, s[{srd}:{srd+3}], s56 offen offset:{p*64}"); nextra += 1
    if colvec is not None:
        A.e(f"v_lshlrev_b32 v6, 2, v6\ns_mov_b32 s56, {colvec*4096}")
        for p in range(NP):
            for q in range(2):
                A.e(f"buffer_load_dwordx4 {vr(cv0+p*8+q*4,4)}, v6, s[32:35], s56 offen offset:{p*128+q*16}"); nextra += 1
    resl = A.lines[res0:]; del A.lines[res0:]
    for i in range(nacc):
        f, b = acc(0, 0)
        A.e(f"v_accvgpr_write_b32 a{i}, 0" if acc_agpr else f"v_mov_b32 v{b+i}, 0")
    late = A.lines[late0:]; del A.lines[late0:]
    A.e(f"""
    s_mov_b32 s60, 0
    s_mov_b32 s61, 0
    s_mul_i32 s62, s50, {nX*1024}
    s_mul_i32 s63, s50, {nW*1024}
    s_add_u32 s63, s63, {XB}""")
    if ksplit > 1: A.e(f"s_mul_i32 s60, s43, {KS*128}\ns_mul_i32 s61, s43, {KS*64*Ws[0].ld}")
    if KROT and rowshift is None and not emb:
        A.e(f"s_and_b32 s65, s2, 7\ns_mul_i32 s65, s65, {KS//8}\ns_lshl_b32 s60, s65, 7\ns_mul_i32 s61, s65, {64*Ws[0].ld}")
    def dma(st, ks_static=None):
        L = []
        for j in range(nX):
            L.append(f"s_add_u32 m0, s62, {st*STB + j*1024}")
            L.append(f"buffer_load_dwordx4 v{VD+j}, s[12:15], s60 offen lds")
        for j in range(nW):
            L.append(f"s_add_u32 m0, s63, {st*STB + j*1024}")
            L.append(f"buffer_load_dwordx4 v{VD+nX+j}, s[16:19], s61 offen lds")
        L.append(f"s_add_u32 s60, s60, {0 if NOADV & 1 else 128}")
        L.append(f"s_add_u32 s61, s61, {0 if NOADV & 2 else 64*Ws[0].ld}")
        if KROT and rowshift is None and not emb:
            L.append(f"s_cmp_ge_u32 s60, {K*2}")
            L.append(f"s_cselect_b32 s60, 0, s60")
            L.append(f"s_cselect_b32 s61, 0, s61")
        if rowshift is not None:
            L.append("s_add_u32 s65, s65, 1")
            L.append("s_and_b32 s66, s65, 3")
            L.append("s_cmp_eq_u32 s66, 0")
            L.append("s_cselect_b32 s66, s67, 0")
            L.append("s_cselect_b32 s67, s68, s67")
            L.append("s_cselect_b32 s68, s69, s68")
            L.append("s_add_u32 s60, s60, s66")
        return L
    if rowshift is not None:
        base = [(2 + s) * X.ld for s in rowshift]
        d = [(base[i + 1] - base[i]) & 0xffffffff for i in range(3)]
        A.e(f"s_mov_b32 s60, {base[0]}\ns_mov_b32 s65, 0\ns_mov_b32 s67, {d[0]:#x}\ns_mov_b32 s68, {d[1]:#x}\ns_mov_b32 s69, {d[2]:#x}")
    def reads(s, kk):
        L = []
        W = []
        for nt in range(NT):
            a, o = waddr(nt)
            for h in range(2):
                W.append(f"ds_read_b64_tr_b16 {wfrag(s,nt,h)}, v{a} offset:{o + (32*kk+4*h)*pitch}")
        Xr = [f"ds_read_b128 {xfrag(s,mt)}, v{VX+kk} offset:{mt*2048}" for mt in range(MT)]
        if DROP & 1: W = []
        if DROP & 2: Xr = []
        return W, Xr
    def mfmas(s):
        if DROP & 16: return ['s_nop 0'] * (NT * MT)
        if FAKE32: return [f"v_mfma_f32_32x32x16_bf16 a[{(i%(nacc//16))*16}:{(i%(nacc//16))*16+15}], {wfrag(s,i%NT)}, {xfrag(s,i%MT)}, a[{(i%(nacc//16))*16}:{(i%(nacc//16))*16+15}]" for i in range(NT*MT//2)]
        return [f"v_mfma_f32_16x16x32_bf16 {accr(nt,mt)}, {wfrag(s,nt)}, {xfrag(s,mt)}, {accr(nt,mt)}" for nt in range(NT) for mt in range(MT)]
    def adv(delta):
        return [f"v_add_u32 v{r}, {delta & 0xffffffff:#x}, v{r}" for r in addr_regs]
    if GPROF: A.e("s_memtime s[82:83]")
    def mix(a_, b_):
        out = []; i = j = 0
        while i < len(a_) or j < len(b_):
            if j >= len(b_) or (i < len(a_) and i * len(b_) <= j * len(a_)): out.append(a_[i]); i += 1
            else: out.append(b_[j]); j += 1
        return out
    if fs:
        assert acc_agpr and NST >= 3
        npro = min(NST, KS)
        if depwait:
            isw = lambda x: "s63" in x or "s61" in x
            for st in range(npro):
                for x in dma(st):
                    if isw(x): A.e(x)
            A.lines += late
            depwait(npro * nW)
            for st in range(npro):
                for x in dma(st):
                    if not isw(x): A.e(x)
            A.lines += resl
            A.e(f"s_waitcnt vmcnt({nextra})\ns_barrier")
        else:
            for st in range(npro):
                for x in dma(st): A.e(x)
            A.lines += late + resl
            A.e(f"s_waitcnt vmcnt({min(63, (npro-1)*nD + nextra)})\ns_barrier")
        def allreads(par):
            W0, X0 = reads(par * 2, 0); W1, X1 = reads(par * 2 + 1, 1)
            return X0 + W0 + X1 + W1
        if GPROF: A.e("s_memtime s[84:85]")
        for x in allreads(0): A.e(x)
        if dyn:
            assert KS % 2 == 0 and KS >= NST
            OOB = 0x7fff0000
            A.e(f"s_mov_b32 s77, 0\ns_mov_b32 s78, {npro}\ns_mov_b32 s79, 0\ns_mov_b32 s58, 1\ns_mov_b32 s59, {OOB:#x}")
            def dmaD():
                L = [f"s_add_u32 s73, s62, s77", f"s_add_u32 s74, s63, s77"]
                L += [f"s_cmp_ge_u32 s78, {KS}"]
                if multi:
                    L += ["s_cselect_b32 s78, 0, s78", f"s_cselect_b32 s57, {TN*2}, 0", "s_cselect_b32 s56, 1, 0", "s_cselect_b32 s60, 0, s60", "s_add_u32 s79, s79, s57",
                          "s_cmp_lg_u32 s56, 0", "s_cselect_b32 s61, s79, s61", "s_add_u32 s58, s58, s56", "s_cmp_gt_u32 s58, s76"]
                L += ["s_cselect_b32 s60, s59, s60", "s_cselect_b32 s61, s59, s61"]
                for j in range(nX):
                    L += [f"s_add_u32 m0, s73, {j*1024}", f"buffer_load_dwordx4 v{VD+j}, s[12:15], s60 offen lds"]
                for j in range(nW):
                    L += [f"s_add_u32 m0, s74, {j*1024}", f"buffer_load_dwordx4 v{VD+nX+j}, s[16:19], s61 offen lds"]
                L += [x for x in dma(0) if "m0" not in x and "lds" not in x]
                L += ["s_add_u32 s78, s78, 1", f"s_add_u32 s77, s77, s75"]
                return L
            def kstepD(par, vm, extra=(), zero=False):
                M = mfmas(par * 2) + mfmas(par * 2 + 1)
                if zero: M = [x.rsplit(",", 1)[0] + ", 0" for x in M[:len(M) // 2]] + M[len(M) // 2:]
                A.e(f"s_cmp_eq_u32 s77, {(NST-1)*STB}\ns_cselect_b32 s75, {(-(NST-1)*STB) & 0xffffffff:#x}, s55")
                A.e(f"s_waitcnt lgkmcnt(0) vmcnt({min(63, vm)})")
                hd = min(HEAD, len(M) // 4)
                av = [f"v_add_u32 v{r}, s75, v{r}" for r in addr_regs]
                A.interleave(M[:hd], av, 0, hd) if hd else [A.e(x) for x in av]
                A.e("s_barrier")
                R = allreads(par ^ 1); d = dmaD()
                rest = M[hd:]; n = len(rest)
                slots = [[] for _ in range(n)]
                nr = max(1, n * RFRAC // 100)
                for i, x in enumerate(R): slots[i * nr // len(R)].append(x)
                for i, x in enumerate(d): slots[i * n // len(d)].append(x)
                for i, x in enumerate(extra): slots[i * n // len(extra)].append(x)
                for m_, sl in zip(rest, slots):
                    A.e(m_)
                    for x in sl: A.e(x)
            A.e(f"s_mov_b32 s55, {STB}")
            if multi:
                assert epi in ("store", "gelu") and NST == 3
                if epi == "gelu": A.e(f"s_mov_b32 s70, {f2u(GELU_C0):#x}\ns_mov_b32 s71, {f2u(GELU_C1):#x}\nv_mov_b32 v35, s70")
                EK = EKS; units = [(mt, p) for mt in range(MT) for p in range(NP)]
                upk = len(units) // EK; assert upk * EK == len(units) and EK % 2 == 0 and EK <= KS
                tE = 232
                def eunit(mt, p):
                    L = []; vals = list(range(tE, tE + 8)); o = tE + 8; tm_ = tE + 12
                    for q in range(2):
                        for r in range(4): L.append(f"v_accvgpr_read_b32 v{tE+q*4+r}, a{nacc + acc(2*p+q, mt)[1] + r}")
                    if epi == "gelu":
                        for op in ("v_mul_f32 v{t}, v{v}, v{v}", "v_fma_f32 v{t}, v{t}, s71, v35", "v_mul_f32 v{t}, v{t}, v{v}", "v_exp_f32 v{t}, v{t}", "v_add_f32 v{t}, 1.0, v{t}", "v_rcp_f32 v{t}, v{t}", "v_mul_f32 v{t}, v{t}, v{v}"):
                            for i, v in enumerate(vals): L.append(op.format(t=tm_ + i, v=v))
                        vals = [tm_ + i for i in range(8)]
                    for i in range(4): L.append(f"v_cvt_pk_bf16_f32 v{o+i}, v{vals[2*i]}, v{vals[2*i+1]}")
                    L += [f"v_permlane16_swap_b32 v{o}, v{o+2}", f"v_permlane16_swap_b32 v{o+1}, v{o+3}"]
                    L += [f"v_add_u32 v37, {mt*16*ldo}, v{VO}", f"buffer_store_dwordx4 {vr(o,4)}, v37, s[20:23], s80 offen offset:{p*64} sc1"]
                    return L
                A.e("s_mov_b32 s80, s59\ns_mov_b32 s74, 0\ns_mov_b32 s54, 0")
                tl = A.newlabel("tile")
                A.label(tl)
                for ks in range(EK):
                    ex = sum((eunit(*u) for u in units[ks * upk:(ks + 1) * upk]), [])
                    kstepD(ks % 2, nD + (upk if ks > 0 else 0), ex, zero=(ks == 0))
                if KS > EK:
                    lp = A.newlabel("kloop")
                    A.e(f"s_mov_b32 s64, {(KS-EK)//2}")
                    A.label(lp)
                    kstepD(0, nD); kstepD(1, nD)
                    A.e(f"s_sub_u32 s64, s64, 1\ns_cmp_lg_u32 s64, 0\ns_cbranch_scc1 {lp}")
                last = A.newlabel("lasttile")
                A.e(f"s_mul_i32 s80, s54, {TN*2}\ns_add_u32 s80, s80, s51\ns_add_u32 s54, s54, 1\ns_cmp_ge_u32 s54, s76\ns_cbranch_scc1 {last}\ns_nop 7")
                for i in range(nacc): A.e(f"v_accvgpr_mov_b32 a{nacc+i}, a{i}")
                A.e(f"s_branch {tl}")
                A.label(last)
                A.e("s_mov_b32 s51, s80")
            else:
                lp = A.newlabel("kloop")
                A.e(f"s_mov_b32 s64, {KS//2}")
                A.label(lp)
                kstepD(0, (NST - 2) * nD); kstepD(1, (NST - 2) * nD)
                A.e(f"s_sub_u32 s64, s64, 1\ns_cmp_lg_u32 s64, 0\ns_cbranch_scc1 {lp}")
            A.e("s_waitcnt lgkmcnt(0)")
        else:
            def kstepF(ks_par, st, issue, vm, last):
                M = mfmas(ks_par * 2) + mfmas(ks_par * 2 + 1)
                if last:
                    A.e("s_waitcnt lgkmcnt(0)")
                    for x in M: A.e(x)
                    return
                nst = (st + 1) % NST
                A.e(f"s_waitcnt lgkmcnt(0) vmcnt({vm})")
                hd = min(HEAD, len(M) // 4)
                av = adv((nst - st) * STB)
                A.interleave(M[:hd], av, 0, hd) if hd else [A.e(x) for x in av]
                A.e("s_barrier")
                R = allreads(ks_par ^ 1)
                d = dma(st) if issue else []
                rest = M[hd:]; n = len(rest)
                slots = [[] for _ in range(n)]
                nr = max(1, n * RFRAC // 100)
                for i, x in enumerate(R): slots[i * nr // len(R)].append(x)
                for i, x in enumerate(d): slots[i * n // len(d)].append(x)
                for m_, sl in zip(rest, slots):
                    A.e(m_)
                    for x in sl: A.e(x)
            import math
            U = NST * 2 // math.gcd(NST, 2)
            nissue = KS - npro
            nloop = nissue // U
            ks = 0
            if nloop > 0:
                lp = A.newlabel("kloop")
                A.e(f"s_mov_b32 s64, {nloop}")
                A.label(lp)
                for u in range(U): kstepF(u % 2, u % NST, True, (NST - 2) * nD, False)
                A.e(f"s_sub_u32 s64, s64, 1\ns_cmp_lg_u32 s64, 0\ns_cbranch_scc1 {lp}")
                ks = nloop * U
            while ks < KS:
                outstanding = min(ks + NST - 1, KS - 1) - ks
                kstepF(ks % 2, ks % NST, ks + NST < KS, max(0, outstanding - 1) * nD, ks == KS - 1)
                ks += 1
    else:
        spread = NST >= 3 and SPREAD
        h1 = (nD + 1) // 2 if spread else nD
        def halves(st):
            L = dma(st)
            if DROP & 4: L = [x for x in L if 'lds' not in x]; return L[:h1], L[h1:]
            return L[:2 * h1], L[2 * h1:]
        npro = min(NST, KS)
        for st in range(npro):
            d1, d2 = halves(st)
            for x in d1: A.e(x)
            if not (spread and st == npro - 1):
                for x in d2: A.e(x)
        A.lines += late + resl
        A.e(f"s_waitcnt vmcnt({min(63, nextra + ((npro-2)*nD + h1 if spread else (npro-1)*nD))})\ns_barrier")
        if GPROF: A.e("s_memtime s[84:85]")
        Wr, Xr = reads(0, 0)
        for x in Xr + Wr: A.e(x)
        def mix(a_, b_):
            out = []; i = j = 0
            while i < len(a_) or j < len(b_):
                if j >= len(b_) or (i < len(a_) and i * len(b_) <= j * len(a_)): out.append(a_[i]); i += 1
                else: out.append(b_[j]); j += 1
            return out
        def kstep(st, issue, pend, vm_after, last):
            Wr, Xr = reads(1, 1)
            A.e("s_waitcnt lgkmcnt(0)")
            M0 = mfmas(0)
            p2 = halves((st - 1) % NST)[1] if pend else []
            A.interleave(M0, mix(Xr + Wr, p2), 0, max(1, len(M0) * 3 // 4) if not pend else len(M0))
            M1 = mfmas(1)
            if last:
                A.e("s_waitcnt lgkmcnt(0)")
                for x in M1: A.e(x)
                return
            nst = (st + 1) % NST
            a = adv((nst - st) * STB)
            A.e(f"s_waitcnt lgkmcnt(0) vmcnt({vm_after})")
            if not DROP & 8: A.e("s_barrier")
            Wr, Xr = reads(0, 0)
            d = (halves(st)[0] if spread else sum(halves(st), [])) if issue else []
            fill = a + (mix(Xr + Wr, d) if spread else Xr + Wr + d)
            A.interleave(M1, fill, 0, max(1, len(M1) * 7 // 8))
        nissue = KS - npro
        nloop = nissue // NST
        ks = 0
        if nloop > 0:
            lp = A.newlabel("kloop")
            A.e(f"s_mov_b32 s64, {nloop}")
            A.label(lp)
            for st in range(NST):
                kstep(st, True, spread, (NST - 2) * nD, False)
            A.e(f"s_sub_u32 s64, s64, 1\ns_cmp_lg_u32 s64, 0\ns_cbranch_scc1 {lp}")
            ks = nloop * NST
        while ks < KS:
            st = ks % NST
            issue = ks + NST < KS
            pend = spread and (ks - 1 + NST < KS)
            outstanding = min(ks + NST - 1, KS - 1) - ks
            kstep(st, issue, pend, max(0, outstanding - 1) * nD, ks == KS - 1)
            ks += 1
    if GPROF: A.e("s_memtime s[86:87]")
    A.e("s_nop 7\ns_nop 1")
    A.e("s_waitcnt vmcnt(0)")
    if preepi: preepi()
    if epi == "gelu":
        A.e(f"s_mov_b32 s70, {f2u(GELU_C0):#x}\ns_mov_b32 s71, {f2u(GELU_C1):#x}\nv_mov_b32 v35, s70")
    A.e("s_mov_b32 s72, 0xffff0000")
    slot = 0
    if epi == "part":
        for mt in range(MT):
            A.e(f"s_add_u32 s56, s51, {mt*16*ldo}")
            for nt in range(NT):
                A.e(f"buffer_store_dwordx4 {accr(nt,mt)}, v{VO}, s[20:23], s56 offen offset:{nt*64} sc1")
    for mt in range(MT if epi != "part" else 0):
        for p in range(NP):
            t = ep0 + (slot % 2) * 24; slot += 1
            vals = []
            for q in range(2):
                f, b = acc(2 * p + q, mt)
                for r in range(4):
                    if f == "a":
                        A.e(f"v_accvgpr_read_b32 v{t+q*4+r}, a{b+r}"); vals.append(t + q * 4 + r)
                    else: vals.append(b + r)
            o = t + 8 if not wide else ep0 + 48 + (p % 2) * 4 + (((slot - 1) // 2) % 2) * 8
            if epi in ("store", "gelu"):
                if epi == "gelu":
                    tm_ = t + 12
                    for i, v in enumerate(vals): A.e(f"v_mul_f32 v{tm_+i}, v{v}, v{v}")
                    for i, v in enumerate(vals): A.e(f"v_fma_f32 v{tm_+i}, v{tm_+i}, s71, v35")
                    for i, v in enumerate(vals): A.e(f"v_mul_f32 v{tm_+i}, v{tm_+i}, v{v}")
                    for i, v in enumerate(vals): A.e(f"v_exp_f32 v{tm_+i}, v{tm_+i}")
                    for i, v in enumerate(vals): A.e(f"v_add_f32 v{tm_+i}, 1.0, v{tm_+i}")
                    for i, v in enumerate(vals): A.e(f"v_rcp_f32 v{tm_+i}, v{tm_+i}")
                    for i, v in enumerate(vals): A.e(f"v_mul_f32 v{tm_+i}, v{tm_+i}, v{v}")
                    vals = [tm_ + i for i in range(8)]
                A.e(f"v_cvt_pk_bf16_f32 v{o}, v{vals[0]}, v{vals[1]}\nv_cvt_pk_bf16_f32 v{o+1}, v{vals[2]}, v{vals[3]}")
                A.e(f"v_cvt_pk_bf16_f32 v{o+2}, v{vals[4]}, v{vals[5]}\nv_cvt_pk_bf16_f32 v{o+3}, v{vals[6]}, v{vals[7]}")
                A.e(f"v_permlane16_swap_b32 v{o}, v{o+2}\nv_permlane16_swap_b32 v{o+1}, v{o+3}")
            else:
                for r in range(4): A.e(f"v_permlane16_swap_b32 v{vals[r]}, v{vals[4+r]}")
                tm_ = t + 12
                r1 = rs0 + ((0 * MT + mt) * NP + p) * 4
                r2 = rs0 + ((1 * MT + mt) * NP + p) * 4
                if epi == "final":
                    for i in range(4):
                        A.e(f"v_lshlrev_b32 v{tm_}, 16, v{r2+i}\nv_and_b32 v{tm_+1}, s72, v{r2+i}")
                        A.e(f"v_add_f32 v{vals[2*i]}, v{vals[2*i]}, v{tm_}\nv_add_f32 v{vals[2*i+1]}, v{vals[2*i+1]}, v{tm_+1}")
                for i in range(4):
                    A.e(f"v_lshlrev_b32 v{tm_+2}, 16, v{r1+i}\nv_and_b32 v{tm_+3}, s72, v{r1+i}")
                    if epi == "res":
                        A.e(f"v_add_f32 v{vals[2*i]}, v{vals[2*i]}, v{tm_+2}\nv_add_f32 v{vals[2*i+1]}, v{vals[2*i+1]}, v{tm_+3}")
                    else:
                        A.e(f"v_fma_f32 v{vals[2*i]}, v{vals[2*i]}, v{cv0+p*8+2*i}, v{tm_+2}\nv_fma_f32 v{vals[2*i+1]}, v{vals[2*i+1]}, v{cv0+p*8+2*i+1}, v{tm_+3}")
                    A.e(f"v_cvt_pk_bf16_f32 v{o+i}, v{vals[2*i]}, v{vals[2*i+1]}")
            stf = 'sc1' if emb else ''
            if not wide:
                A.e(f"s_add_u32 s56, s51, {mt*16*ldo}")
                if mask0 and mt == 0: A.e("s_add_u32 s57, s40, s52\ns_cmp_eq_u32 s57, 0\ns_cselect_b32 s56, 0x7fff0000, s56")
                A.e(f"buffer_store_dwordx4 {vr(o,4)}, v{VO}, s[20:23], s56 offen offset:{p*64} {stf}")
            elif p % 2 == 1:
                oa = o - 4; tb = t + 12
                for i in range(4): A.e(f"v_mov_b32 v{tb+i}, v{oa+i}")
                for i in range(4): A.e(f"v_mov_b32_dpp v{oa+i}, v{o+i} row_ror:8 row_mask:0xf bank_mask:0xc")
                for i in range(4): A.e(f"v_mov_b32_dpp v{o+i}, v{tb+i} row_ror:8 row_mask:0xf bank_mask:0x3")
                A.e(f"s_add_u32 s56, s51, {mt*16*ldo}\ns_add_u32 s57, s51, {(mt*16+8)*ldo}")
                A.e(f"buffer_store_dwordx4 {vr(oa,4)}, v36, s[20:23], s56 offen offset:{(p-1)*64} {stf}")
                A.e(f"buffer_store_dwordx4 {vr(o,4)}, v36, s[20:23], s57 offen offset:{(p-1)*64} {stf}")
    if GPROF:
        A.e("s_memtime s[88:89]\ns_waitcnt vmcnt(0)\ns_memtime s[90:91]\ns_waitcnt lgkmcnt(0)")
        load_ptr(A, 4, ARG["ws"]); A.e("s_waitcnt lgkmcnt(0)"); A.srd(12, 4, WS_BYTES)
        for i in range(5): A.e(f"s_sub_u32 s3, s{82+2*i}, s{80+2*i}\nv_mov_b32 v{8+i}, s3")
        A.e(f"v_mov_b32 v5, 0\ns_lshl_b32 s3, s2, 5\ns_add_u32 s3, s3, {244*MB + GPROF_ID[0]*65536}\nbuffer_store_dwordx4 v[8:11], v5, s[12:15], s3 offen\nbuffer_store_dword v12, v5, s[12:15], s3 offen offset:16")
        GPROF_ID[0] += 1
    if emb:
        A.e(f"s_waitcnt vmcnt({min(63, MT * (NT if epi == 'part' else NP))})\ns_branch {emb}")
        return dict(lds=NST * STB)
    A.label(done)
    A.e("s_endpgm")
    A.end_kernel(total_v, 96, accum_off)
    return dict(grid=ntiles, block=NW * 64, lds=NST * STB)
```

```python
ARG = dict(x=0, mem0=1, Wq=2, Wk=3, Wv=4, Wo=5, seg=6, Bx=7, w1=8, w2=9, w3=10, w4=11, c=12, wmod=13, out=14, dbg=15, ws=16)
MB = 1 << 20
WS = {}
_off = 0
def _alloc(name, nbytes, align=4096):
    global _off
    _off = (_off + align - 1) // align * align
    WS[name] = _off; _off += nbytes
S, D, H, DH, F = 2048, 1024, 32, 128, 3584
_alloc("mod", 6144 * 4)
_alloc("h", S * D * 2)
_alloc("q", S * 4096 * 2)
_alloc("k", S * 4096 * 2)
_alloc("v", S * 4096 * 2)
_alloc("o", S * 4096 * 2)
_alloc("pad_x1", 16 * 8192)
_alloc("x1", S * D * 2)
_alloc("pad_h2", 16 * 8192)
_alloc("h2", S * D * 2)
_alloc("a1", S * D * 2)
_alloc("pad_g1", 16 * 8192)
_alloc("g1", (S + 4) * D * 2)
_alloc("pad_y1", 16 * 8192)
_alloc("y1", S * D * 2)
_alloc("pad_a3", 16 * 8192)
_alloc("a3", S * D * 2)
_alloc("pad_g3", 16 * 8192)
_alloc("g3", S * F * 2)
_alloc("xch", 6 * MB, 4 * MB)
_alloc("kvm", 16 * MB, 4 * MB)
_alloc("part", 4 * S * D * 4)
_alloc("pad_part2", 16 * 8192)
_alloc("part2", 4 * (S + 64) * D * 4)
WS_END = _off
assert WS_END < 240 * MB
WS_BYTES = 256 * MB
```

```python
from asmgen import *
from layout import *
from gemm import load_ptr, f2u

LOG2E = 1.4426950408889634

def wave_allreduce_add(A, v, t):
    A.e(f"v_add_f32_dpp v{v}, v{v}, v{v} quad_perm:[1,0,3,2] row_mask:0xf bank_mask:0xf")
    A.e(f"v_add_f32_dpp v{v}, v{v}, v{v} quad_perm:[2,3,0,1] row_mask:0xf bank_mask:0xf")
    A.e(f"v_add_f32_dpp v{v}, v{v}, v{v} row_half_mirror row_mask:0xf bank_mask:0xf")
    A.e(f"v_add_f32_dpp v{v}, v{v}, v{v} row_mirror row_mask:0xf bank_mask:0xf")
    A.e(f"v_mov_b32 v{t}, v{v}\nv_permlane16_swap_b32 v{t}, v{v}\nv_add_f32 v{v}, v{v}, v{t}")
    A.e(f"v_mov_b32 v{t}, v{v}\nv_permlane32_swap_b32 v{t}, v{v}\nv_add_f32 v{v}, v{v}, v{t}")

def prefetch_wgs(A, first, args, done):
    skip = A.newlabel("nopf")
    A.e(f"s_cmp_lt_u32 s2, {first}\ns_cbranch_scc1 {skip}\ns_cmp_ge_u32 s2, {first + 128*len(args)}\ns_cbranch_scc1 {done}")
    for i, a in enumerate(args): load_ptr(A, 4 + 2 * i, ARG[a])
    A.e(f"s_sub_u32 s3, s2, {first}\ns_lshr_b32 s20, s3, 7\ns_and_b32 s3, s3, 127\ns_lshl_b32 s3, s3, 16\nv_lshlrev_b32 v1, 7, v0\ns_waitcnt lgkmcnt(0)")
    for i in range(1, len(args)): A.e(f"s_cmp_eq_u32 s20, {i}\ns_cselect_b64 s[4:5], s[{4+2*i}:{5+2*i}], s[4:5]")
    A.srd(12, 4, 8 * MB)
    A.e(f"buffer_load_dword v2, v1, s[12:15], s3 offen\ns_add_u32 s3, s3, 32768\nbuffer_load_dword v3, v1, s[12:15], s3 offen\ns_waitcnt vmcnt(0)\ns_branch {done}")
    A.label(skip)

def mod_kernel(A, name, fill_bytes, pf=(), fuse_ln=False, nmod=192, emb=None, depwait=None):
    NWG = 256
    done = A.newlabel("done"); nofill = A.newlabel("nomod"); nost = A.newlabel("nost")
    if emb:
        A.label(name); depwait()
    else:
        A.begin_kernel(name)
        if pf: prefetch_wgs(A, NWG, pf, done)
        A.e(f"s_cmp_ge_u32 s2, {NWG}\ns_cbranch_scc1 {'front_ln' if fuse_ln else done}\ns_mov_b32 s40, s2")
    load_ptr(A, 4, ARG["c"]); load_ptr(A, 6, ARG["wmod"]); load_ptr(A, 8, ARG["ws"])
    A.e("s_waitcnt lgkmcnt(0)")
    A.srd(12, 4, 2048); A.srd(16, 6, 1024 * 6144 * 2); A.srd(20, 8, WS_BYTES)
    if not emb: A.e(f"s_cmp_ge_u32 s2, {nmod}\ns_cbranch_scc1 {nofill}")
    A.e(f"""
    v_and_b32 v1, 3, v0
    v_lshrrev_b32 v2, 2, v0
    v_mul_u32_u24 v3, {6144*2}, v2
    v_lshl_add_u32 v3, v1, 4, v3
    s_lshl_b32 s24, s40, 6
    v_lshlrev_b32 v4, 1, v2""")
    for i in range(16):
        A.e(f"s_add_u32 s25, s24, {i*64*6144*2}")
        A.e(f"buffer_load_dwordx4 v[{32+4*i}:{35+4*i}], v3, s[16:19], s25 offen")
    for i in range(16):
        A.e(f"buffer_load_ushort v{8+i}, v4, s[12:15], 0 offen offset:{i*128}")
    for i in range(8): A.e(f"v_mov_b32 v{24+i}, 0")
    A.e("s_waitcnt vmcnt(0)")
    A.e(f"s_mov_b32 s26, {f2u(-LOG2E):#x}\ns_mov_b32 s27, 0xffff0000")
    for i in range(16):
        c = 8 + i
        A.e(f"""
        v_lshlrev_b32 v{c}, 16, v{c}
        v_mul_f32 v5, s26, v{c}
        v_exp_f32 v5, v5
        v_add_f32 v5, 1.0, v5
        v_rcp_f32 v5, v5
        v_mul_f32 v5, v5, v{c}
        v_cvt_pk_bf16_f32 v5, v5, v5
        v_and_b32 v{c}, s27, v5""")
        for j in range(4):
            w = 32 + 4 * i + j
            A.e(f"v_lshlrev_b32 v6, 16, v{w}\nv_and_b32 v7, s27, v{w}\nv_fmac_f32 v{24+2*j}, v6, v{c}\nv_fmac_f32 v{25+2*j}, v7, v{c}")
    A.e(f"""
    v_lshlrev_b32 v5, 5, v0
    ds_write_b128 v5, v[24:27]
    ds_write_b128 v5, v[28:31] offset:16
    s_waitcnt lgkmcnt(0)
    s_barrier""")
    A.e(f"""
    v_and_b32 v1, 31, v0
    v_lshrrev_b32 v2, 5, v0
    v_lshlrev_b32 v3, 10, v2
    v_lshl_add_u32 v3, v1, 2, v3""")
    for i in range(8): A.e(f"ds_read_b32 v{8+i}, v3 offset:{i*128}")
    A.e("s_waitcnt lgkmcnt(0)")
    for i in range(1, 8): A.e(f"v_add_f32 v8, v8, v{8+i}")
    A.e(f"""
    s_barrier
    v_lshlrev_b32 v3, 2, v0
    ds_write_b32 v3, v8
    s_waitcnt lgkmcnt(0)
    s_barrier
    v_lshlrev_b32 v3, 2, v1""")
    for i in range(8): A.e(f"ds_read_b32 v{8+i}, v3 offset:{i*128}")
    A.e("s_waitcnt lgkmcnt(0)")
    for i in range(1, 8): A.e(f"v_add_f32 v8, v8, v{8+i}")
    A.e(f"""
    v_cvt_pk_bf16_f32 v8, v8, v8
    v_and_b32 v8, s27, v8
    s_lshl_b32 s24, s40, 7
    s_add_u32 s24, s24, {WS['mod']}
    v_cmp_gt_u32 vcc, 32, v0
    s_and_saveexec_b64 s[36:37], vcc
    s_cbranch_execz {nost}
    buffer_store_dword v8, v3, s[20:23], s24 offen {'sc1' if (fuse_ln or emb) else ''}""")
    A.label(nost)
    A.e("s_mov_b64 exec, s[36:37]")
    if emb:
        A.e(f"s_branch {emb}")
        return dict(lds=8192)
    if fuse_ln:
        load_ptr(A, 28, ARG["dbg"])
        A.e(f"s_cmp_ge_u32 s2, 64\ns_cbranch_scc1 {nofill}\ns_waitcnt vmcnt(0) lgkmcnt(0)\ns_barrier")
        A.srd(32, 28, 256)
        A.e("v_cmp_eq_u32 vcc, 0, v0\ns_and_saveexec_b64 s[36:37], vcc\ns_cbranch_execz front_nosig\nv_mov_b32 v5, 1\nv_mov_b32 v6, 0\nbuffer_atomic_add v5, v6, s[32:35], 0 offen sc1")
        A.label("front_nosig")
        A.e("s_mov_b64 exec, s[36:37]")
    A.label(nofill)
    per = fill_bytes // NWG
    assert per % 4096 == 0
    A.e(f"""
    v_mov_b32 v8, -1
    v_mov_b32 v9, -1
    v_mov_b32 v10, -1
    v_mov_b32 v11, -1
    v_lshlrev_b32 v3, 4, v0
    s_mul_i32 s24, s2, {per}
    s_add_u32 s24, s24, {WS['xch']}
    s_mov_b32 s25, {per//4096}""")
    lp = A.newlabel("fill")
    A.label(lp)
    A.e(f"""
    buffer_store_dwordx4 v[8:11], v3, s[20:23], s24 offen
    s_add_u32 s24, s24, 4096
    s_sub_u32 s25, s25, 1
    s_cmp_lg_u32 s25, 0
    s_cbranch_scc1 {lp}""")
    A.e(f"""
    s_cmp_lt_u32 s2, 254
    s_cbranch_scc1 {done}
    s_cmp_eq_u32 s2, 254
    s_mov_b32 s25, {WS['g1'] + (S+2)*D*2}
    s_cselect_b32 s24, {WS['g1']}, s25
    v_mov_b32 v12, 0
    v_mov_b32 v13, 0
    v_mov_b32 v14, 0
    v_mov_b32 v15, 0
    buffer_store_dwordx4 v[12:15], v3, s[20:23], s24 offen""")
    A.label(done)
    A.e("s_endpgm")
    if fuse_ln:
        def wait_mod():
            lp = A.newlabel("mw"); ok = A.newlabel("mok")
            load_ptr(A, 28, ARG["dbg"]); A.e("s_waitcnt lgkmcnt(0)"); A.srd(32, 28, 256)
            A.e(f"v_mov_b32 v72, 0\ns_mov_b32 s30, 100000\nv_readfirstlane_b32 s31, v0\ns_cmp_lg_u32 s31, 0\ns_cbranch_scc1 {ok}\ns_mov_b64 exec, 1")
            A.label(lp)
            A.e(f"buffer_load_dword v73, v72, s[32:35], 0 offen sc1\ns_waitcnt vmcnt(0)\nv_cmp_gt_u32 vcc, 64, v73\ns_cbranch_vccz {ok}\ns_sleep 24\ns_sub_u32 s30, s30, 1\ns_cmp_gt_i32 s30, 0\ns_cbranch_scc1 {lp}")
            A.label(ok)
            A.e("s_mov_b64 exec, -1\ns_barrier")
        ln_kernel(A, "front_ln", ARG["x"], 0, "mod", "h", None, shift_idx=0, scale_idx=1, fused=(NWG, wait_mod))
    A.end_kernel(96, 48)
    return dict(grid=NWG + 128 * len(pf) + (S // 4 if fuse_ln else 0), block=256, lds=8192)

def ln_stats(A, xs, mean, rstd, t):
    A.e(f"v_add_f32 v{mean}, v{xs[0]}, v{xs[1]}")
    for x in xs[2:]: A.e(f"v_add_f32 v{mean}, v{mean}, v{x}")
    wave_allreduce_add(A, mean, t)
    A.e(f"v_mul_f32 v{mean}, {f2u(1/1024):#x}, v{mean}")
    for x in xs: A.e(f"v_sub_f32 v{x}, v{x}, v{mean}")
    A.e(f"v_mul_f32 v{rstd}, v{xs[0]}, v{xs[0]}")
    for x in xs[1:]: A.e(f"v_fmac_f32 v{rstd}, v{x}, v{x}")
    wave_allreduce_add(A, rstd, t)
    A.e(f"v_mov_b32 v{t}, {f2u(1e-5):#x}\nv_fmac_f32 v{t}, {f2u(1/1024):#x}, v{rstd}\nv_rsq_f32 v{rstd}, v{t}")

def ln_kernel(A, name, src_arg, src_off, mode, out1, out2=None, shift_idx=None, scale_idx=None, emb=None, nrows=4, depwait=None, red=None, pf=(), fused=None, roff=0):
    st = 'sc1' if emb else ''
    if fused:
        A.label(name)
        done = A.newlabel("done")
        A.e(f"s_sub_u32 s3, s2, {fused[0]}\ns_cmp_ge_u32 s3, {S//4}\ns_cbranch_scc1 {done}\ns_lshl_b32 s3, s3, 2")
    elif emb is None:
        A.begin_kernel(name)
        done = A.newlabel("done")
        if pf: prefetch_wgs(A, S // 4, pf, done)
        A.e(f"s_cmp_ge_u32 s2, {S//4}\ns_cbranch_scc1 {done}\ns_lshl_b32 s3, s2, 2")
    else:
        A.label(name)
        A.e(f"s_mul_i32 s3, s40, {4*nrows}\ns_sub_u32 s3, s3, {roff}\ns_mov_b32 s30, {nrows}")
        if depwait: depwait()
        lp = A.newlabel("lnloop")
        A.label(lp)
    load_ptr(A, 4, src_arg); load_ptr(A, 8, ARG["ws"])
    A.e(f"""
    v_and_b32 v1, 63, v0
    v_lshrrev_b32 v2, 6, v0
    v_add_u32 v2, s3, v2               ; row
    v_lshlrev_b32 v3, 11, v2
    v_lshl_add_u32 v3, v1, 4, v3
    v_lshlrev_b32 v4, 5, v1            ; fp32 mod offset: lane*8 cols*4B
    s_waitcnt lgkmcnt(0)""")
    A.srd(12, 4, S * D * 2, src_off); A.srd(20, 8, WS_BYTES)
    A.e("buffer_load_dwordx4 v[8:11], v3, s[12:15], 0 offen\nbuffer_load_dwordx4 v[12:15], v3, s[12:15], 0 offen offset:1024")
    if red:
        A.e("v_lshlrev_b32 v72, 12, v2\nv_lshl_add_u32 v72, v1, 5, v72")
        for sp in range(4):
            A.e(f"s_mov_b32 s24, {WS[red['part']] + sp*red.get('pstride', S*D*4)}")
            for hlf in range(2):
                for q in range(2):
                    b = 80 + sp * 16 + hlf * 8 + q * 4
                    A.e(f"buffer_load_dwordx4 v[{b}:{b+3}], v72, s[20:23], s24 offen offset:{hlf*2048+q*16}")
        A.e(f"s_mov_b32 s24, {WS['mod'] + red['gate']*4096}")
        for hlf in range(2):
            for q in range(2):
                b = 144 + hlf * 8 + q * 4
                A.e(f"buffer_load_dwordx4 v[{b}:{b+3}], v4, s[20:23], s24 offen offset:{hlf*2048+q*16}")
        if red.get("res2"):
            A.e(f"s_mov_b32 s24, {WS[red['res2']]}\nbuffer_load_dwordx4 v[160:163], v3, s[20:23], s24 offen\nbuffer_load_dwordx4 v[164:167], v3, s[20:23], s24 offen offset:1024")
        A.e("s_waitcnt vmcnt(0)\ns_mov_b32 s27, 0xffff0000")
        for i in range(0, 16, 2):
            A.e(f"v_pk_add_f32 v[{80+i}:{81+i}], v[{80+i}:{81+i}], v[{96+i}:{97+i}]\nv_pk_add_f32 v[{112+i}:{113+i}], v[{112+i}:{113+i}], v[{128+i}:{129+i}]")
        for i in range(0, 16, 2): A.e(f"v_pk_add_f32 v[{80+i}:{81+i}], v[{80+i}:{81+i}], v[{112+i}:{113+i}]")
        for i in range(8):
            if red.get("res2"):
                A.e(f"v_lshlrev_b32 v73, 16, v{160+i}\nv_and_b32 v74, s27, v{160+i}\nv_add_f32 v{80+2*i}, v{80+2*i}, v73\nv_add_f32 v{81+2*i}, v{81+2*i}, v74")
            A.e(f"v_lshlrev_b32 v73, 16, v{8+i}\nv_and_b32 v74, s27, v{8+i}\nv_fma_f32 v73, v{80+2*i}, v{144+2*i}, v73\nv_fma_f32 v74, v{81+2*i}, v{145+2*i}, v74\nv_cvt_pk_bf16_f32 v{8+i}, v73, v74")
        if red["final"]:
            load_ptr(A, 28, ARG["out"]); A.e("s_waitcnt lgkmcnt(0)"); A.srd(32, 28, S * D * 2)
            A.e(f"buffer_store_dwordx4 v[8:11], v3, s[32:35], 0 offen {st}\nbuffer_store_dwordx4 v[12:15], v3, s[32:35], 0 offen offset:1024 {st}")
            A.e(f"s_add_u32 s3, s3, 4\ns_sub_u32 s30, s30, 1\ns_cmp_lg_u32 s30, 0\ns_nop 1\ns_cbranch_scc1 {lp}\ns_branch {emb}")
            return dict(lds=0)
        A.e(f"s_mov_b32 s24, {WS['x1']}\nbuffer_store_dwordx4 v[8:11], v3, s[20:23], s24 offen {st}\nbuffer_store_dwordx4 v[12:15], v3, s[20:23], s24 offen offset:1024 {st}")
    def modloads(fl=""):
        for (idx, base) in ((scale_idx, 40), (shift_idx, 56)):
            A.e(f"s_mov_b32 s24, {WS['mod'] + idx*4096}")
            for hlf in range(2):
                for q in range(2):
                    b = base + hlf * 8 + q * 4
                    A.e(f"buffer_load_dwordx4 v[{b}:{b+3}], v4, s[20:23], s24 offen offset:{hlf*2048+q*16} {fl}")
    if mode == "mod" and not fused:
        modloads()
        A.e("s_waitcnt vmcnt(8)")
    else:
        A.e("s_waitcnt vmcnt(0)")
    A.e("s_mov_b32 s27, 0xffff0000")
    xs = list(range(16, 32))
    for i in range(8):
        A.e(f"v_lshlrev_b32 v{16+2*i}, 16, v{8+i}\nv_and_b32 v{17+2*i}, s27, v{8+i}")
    ln_stats(A, xs, 5, 6, 7)
    def pack_store(off):
        for i in range(8): A.e(f"v_cvt_pk_bf16_f32 v{8+i}, v{16+2*i}, v{17+2*i}")
        A.e(f"s_mov_b32 s24, {off}")
        A.e(f"buffer_store_dwordx4 v[8:11], v3, s[20:23], s24 offen {st}\nbuffer_store_dwordx4 v[12:15], v3, s[20:23], s24 offen offset:1024 {st}")
    if mode == "mod":
        if fused: fused[1](); modloads()
        A.e("s_waitcnt vmcnt(0)")
        for i in range(16):
            A.e(f"v_add_f32 v{40+i}, 1.0, v{40+i}\nv_mul_f32 v{16+i}, v{16+i}, v6\nv_fma_f32 v{16+i}, v{16+i}, v{40+i}, v{56+i}")
        pack_store(WS[out1])
        if out2:
            for i in range(8):
                A.e(f"v_lshlrev_b32 v{16+2*i}, 16, v{8+i}\nv_and_b32 v{17+2*i}, s27, v{8+i}")
            ln_stats(A, xs, 5, 6, 7)
            for i in range(16): A.e(f"v_mul_f32 v{16+i}, v{16+i}, v6")
            for i in range(8): A.e(f"v_cvt_pk_bf16_f32 v{32+i}, v{16+2*i}, v{17+2*i}")
            A.e(f"s_mov_b32 s24, {WS[out2]}")
            A.e(f"buffer_store_dwordx4 v[32:35], v3, s[20:23], s24 offen {st}\nbuffer_store_dwordx4 v[36:39], v3, s[20:23], s24 offen offset:1024 {st}")
    else:
        for i in range(16): A.e(f"v_mul_f32 v{16+i}, v{16+i}, v6")
        pack_store(WS[out1])
    if emb:
        A.e(f"s_add_u32 s3, s3, 4\ns_sub_u32 s30, s30, 1\ns_cmp_lg_u32 s30, 0\ns_nop 1\ns_cbranch_scc1 {lp}\ns_branch {emb}")
        return dict(lds=0)
    A.label(done)
    A.e("s_endpgm")
    if fused: return
    A.end_kernel(72, 40)
    return dict(grid=S // 4 + 128 * len(pf), block=256, lds=0)

def mod2_kernel(A, name, fill_bytes):
    NWG = 256
    A.begin_kernel(name)
    done = A.newlabel("done"); nost = A.newlabel("nost"); nz = A.newlabel("nz")
    A.e(f"s_cmp_ge_u32 s2, {NWG}\ns_cbranch_scc1 {done}")
    A.e(f"s_load_dwordx4 s[4:7], s[0:1], {ARG['c']*8}")
    load_ptr(A, 8, ARG["ws"])
    per = fill_bytes // NWG; assert per == 16384
    A.e(f"""
    v_and_b32 v1, 3, v0
    v_lshrrev_b32 v2, 2, v0
    v_mul_u32_u24 v3, {6144*2}, v2
    v_lshl_add_u32 v3, v1, 4, v3
    s_lshl_b32 s24, s2, 6
    v_lshlrev_b32 v4, 1, v2
    v_mov_b32 v40, -1
    v_mov_b32 v41, -1
    v_mov_b32 v42, -1
    v_mov_b32 v43, -1
    v_lshlrev_b32 v44, 4, v0
    s_lshl_b32 s28, s2, 14
    s_add_u32 s28, s28, {WS['xch']}
    s_waitcnt lgkmcnt(0)""")
    A.srd(12, 4, 2048); A.srd(16, 6, 1024 * 6144 * 2); A.srd(20, 8, WS_BYTES)
    A.e(f"buffer_store_dwordx4 v[40:43], v44, s[20:23], s28 offen\ns_cmp_ge_u32 s2, 192\ns_cbranch_scc1 {nz}")
    for i in range(4):
        A.e(f"s_add_u32 s25, s24, {i*256*6144*2}\nbuffer_load_dwordx4 v[{16+4*i}:{19+4*i}], v3, s[16:19], s25 offen\nbuffer_load_ushort v{8+i}, v4, s[12:15], 0 offen offset:{i*512}")
    for i in range(8): A.e(f"v_mov_b32 v{32+i}, 0")
    A.e(f"s_mov_b32 s26, {f2u(-LOG2E):#x}\ns_mov_b32 s27, 0xffff0000\ns_waitcnt vmcnt(0)")
    for i in range(4):
        c = 8 + i
        A.e(f"v_lshlrev_b32 v{c}, 16, v{c}\nv_mul_f32 v5, s26, v{c}\nv_exp_f32 v5, v5\nv_add_f32 v5, 1.0, v5\nv_rcp_f32 v5, v5\nv_mul_f32 v5, v5, v{c}\nv_cvt_pk_bf16_f32 v5, v5, v5\nv_and_b32 v{c}, s27, v5")
        for j in range(4):
            w = 16 + 4 * i + j
            A.e(f"v_lshlrev_b32 v6, 16, v{w}\nv_and_b32 v7, s27, v{w}\nv_fmac_f32 v{32+2*j}, v6, v{c}\nv_fmac_f32 v{33+2*j}, v7, v{c}")
    A.e("""
    v_lshlrev_b32 v5, 5, v0
    ds_write_b128 v5, v[32:35]
    ds_write_b128 v5, v[36:39] offset:16
    v_and_b32 v1, 31, v0
    v_lshrrev_b32 v2, 5, v0
    v_lshlrev_b32 v3, 10, v2
    v_lshl_add_u32 v3, v1, 2, v3
    s_waitcnt lgkmcnt(0)
    s_barrier""")
    def sum8():
        for i in range(8): A.e(f"ds_read_b32 v{8+i}, v3 offset:{i*128}")
        A.e("s_waitcnt lgkmcnt(0)\nv_add_f32 v8, v8, v9\nv_add_f32 v10, v10, v11\nv_add_f32 v12, v12, v13\nv_add_f32 v14, v14, v15\nv_add_f32 v8, v8, v10\nv_add_f32 v12, v12, v14\nv_add_f32 v8, v8, v12")
    sum8()
    A.e("s_barrier\nv_lshlrev_b32 v5, 2, v0\nds_write_b32 v5, v8\nv_and_b32 v2, 3, v2\nv_lshlrev_b32 v3, 10, v2\nv_lshl_add_u32 v3, v1, 2, v3\ns_waitcnt lgkmcnt(0)\ns_barrier")
    sum8()
    A.e("s_barrier\nds_write_b32 v5, v8\nv_lshlrev_b32 v3, 2, v1\ns_waitcnt lgkmcnt(0)\ns_barrier")
    for i in range(4): A.e(f"ds_read_b32 v{8+i}, v3 offset:{i*128}")
    A.e(f"""
    s_waitcnt lgkmcnt(0)
    v_add_f32 v8, v8, v9
    v_add_f32 v10, v10, v11
    v_add_f32 v8, v8, v10
    v_cvt_pk_bf16_f32 v8, v8, v8
    v_and_b32 v8, s27, v8
    s_lshl_b32 s24, s2, 7
    s_add_u32 s24, s24, {WS['mod']}
    v_cmp_gt_u32 vcc, 32, v0
    s_and_saveexec_b64 s[36:37], vcc
    s_cbranch_execz {done}
    buffer_store_dword v8, v3, s[20:23], s24 offen
    s_branch {done}""")
    A.label(nz)
    A.e(f"""
    s_cmp_lt_u32 s2, 254
    s_cbranch_scc1 {done}
    s_cmp_eq_u32 s2, 254
    s_mov_b32 s25, {WS['g1'] + (S+2)*D*2}
    s_cselect_b32 s24, {WS['g1']}, s25
    v_mov_b32 v12, 0
    v_lshlrev_b32 v13, 2, v0
    buffer_store_dword v12, v13, s[20:23], s24 offen""")
    A.label(done)
    A.e("s_endpgm")
    A.end_kernel(48, 48)
    return dict(grid=NWG, block=1024, lds=32768)
```

```python
import re

class Asm:
    def __init__(self):
        self.lines = []; self.launches = []; self.kernels = []; self.uid = 0; self.header = []
    def e(self, s):
        for l in s.strip("\n").split("\n"):
            l = l.strip()
            if l: self.lines.append(l if l.endswith(":") else "    " + l)
    def c(self, s): self.lines.append("    ; " + s)
    def label(self, l): self.lines.append(l + ":")
    def newlabel(self, p="L"):
        self.uid += 1; return f"{p}_{self.uid}"
    def begin_kernel(self, name):
        self.lines += [f".globl {name}", ".p2align 8", f".type {name},@function", f"{name}:"]
        self.cur = name
    def end_kernel(self, vgpr, sgpr=102, accum=None, wgy=False):
        if accum is None: accum = min(256, (vgpr + 3) // 4 * 4)
        self.kernels.append((self.cur, vgpr, sgpr, accum, wgy))
    def launch(self, name, grid, block, lds=0):
        g = tuple(grid) + (1,) * (3 - len(grid)); b = tuple(block) + (1,) * (3 - len(block))
        self.launches.append(f"; @launch kernel={name} grid=({g[0]},{g[1]},{g[2]}) block=({b[0]},{b[1]},{b[2]}) lds={lds}")
    def srd(self, d, base, nbytes, off=0):
        if off < 0:
            self.e(f"s_sub_u32 s{d}, s{base}, {-off:#x}\ns_subb_u32 s{d+1}, s{base+1}, 0\ns_and_b32 s{d+1}, s{d+1}, 0xffff")
        elif off:
            self.e(f"s_add_u32 s{d}, s{base}, {off:#x}\ns_addc_u32 s{d+1}, s{base+1}, 0\ns_and_b32 s{d+1}, s{d+1}, 0xffff")
        else:
            self.e(f"s_mov_b32 s{d}, s{base}\ns_and_b32 s{d+1}, s{base+1}, 0xffff")
        self.e(f"s_mov_b32 s{d+2}, {nbytes:#x}\ns_mov_b32 s{d+3}, 0x20000")
    def interleave(self, main, fill, start=0, end=None):
        n = len(main); end = n if end is None else end
        span = max(1, end - start); fi = 0
        for i, m in enumerate(main):
            self.e(m)
            if start <= i < end:
                tgt = ((i - start + 1) * len(fill) + span - 1) // span
                while fi < min(tgt, len(fill)):
                    self.e(fill[fi]); fi += 1
        while fi < len(fill):
            self.e(fill[fi]); fi += 1
    def text(self, kernarg=136):
        out = list(self.header) + self.launches
        def compact(l):
            if l.startswith("; TYPES"): return l
            return l.split(";")[0].strip().replace(", ", ",")
        out += ['.amdgcn_target "amdgcn-amd-amdhsa--gfx950"', ".text"] + [c for c in (compact(l) for l in self.lines) if c]
        out += ['.section .rodata,"a"']
        for (n, v, s, a, wgy) in self.kernels:
            out += [".p2align 6", f".amdhsa_kernel {n}", f"  .amdhsa_next_free_vgpr {v}", f"  .amdhsa_next_free_sgpr {s}",
                    f"  .amdhsa_accum_offset {a}", "  .amdhsa_group_segment_fixed_size 0", f"  .amdhsa_kernarg_size {kernarg}",
                    "  .amdhsa_user_sgpr_count 2", "  .amdhsa_user_sgpr_kernarg_segment_ptr 1", "  .amdhsa_system_sgpr_workgroup_id_x 1"]
            if wgy: out += ["  .amdhsa_system_sgpr_workgroup_id_y 1"]
            out += [".end_amdhsa_kernel"]
        return "\n".join(out) + "\n"

def vr(b, n=1, f="v"):
    return f"{f}{b}" if n == 1 else f"{f}[{b}:{b+n-1}]"
def ar(b, n=1): return vr(b, n, "a")
def sr(b, n=1): return vr(b, n, "s")

_REG = re.compile(r"^-?\|?(abs\()?([vas])(?:(\d+)|\[(\d+):(\d+)\])\)?\|?$")
def regs(tok):
    tok = tok.strip()
    if tok in ("vcc",): return {("s", 106), ("s", 107)}
    if tok == "vcc_lo": return {("s", 106)}
    if tok == "vcc_hi": return {("s", 107)}
    if tok == "exec": return {("s", 126), ("s", 127)}
    if tok == "exec_lo": return {("s", 126)}
    if tok == "exec_hi": return {("s", 127)}
    if tok == "m0": return {("s", 124)}
    m = _REG.match(tok)
    if not m: return set()
    f = m.group(2)
    if m.group(3) is not None: lo = hi = int(m.group(3))
    else: lo, hi = int(m.group(4)), int(m.group(5))
    return {(f, i) for i in range(lo, hi + 1)}

TRANS = ("v_exp_f32", "v_log_f32", "v_rcp_f32", "v_rsq_f32", "v_sqrt_f32", "v_sin_f32", "v_cos_f32", "v_rcp_iflag_f32")
def passes(mn):
    if "32x32x16" in mn or "32x32x8" in mn or "32x32x32" in mn: return 8
    if "16x16x32" in mn or "16x16x16" in mn or "16x16x64" in mn: return 4
    return 16

class Ins:
    def __init__(self, text, lineno):
        self.text = text; self.lineno = lineno
        t = text.split(";")[0].strip()
        parts = t.split(None, 1)
        self.mn = parts[0]
        rest = parts[1] if len(parts) > 1 else ""
        ops = []; cur = ""; depth = 0
        for ch in rest:
            if ch in "[(": depth += 1
            if ch in "])": depth -= 1
            if ch == "," and depth == 0: ops.append(cur.strip()); cur = ""
            else: cur += ch
        if cur.strip(): ops.append(cur.strip())
        self.mods = ""
        if ops:
            sp = ops[-1].split(None, 1)
            ops[-1] = sp[0]; self.mods = sp[1] if len(sp) > 1 else ""
        self.ops = ops
        mn = self.mn
        self.is_mfma = mn.startswith("v_mfma") or mn.startswith("v_smfmac")
        self.is_valu = mn.startswith("v_") and not self.is_mfma
        self.is_vmem = mn.startswith("buffer_") or mn.startswith("global_")
        self.is_ds = mn.startswith("ds_")
        self.is_salu = mn.startswith("s_")
        self.is_trans = any(mn.startswith(x) for x in TRANS)
        self.is_dpp = "_dpp" in mn or "row_" in self.mods or "quad_perm" in self.mods
        self.is_perm = mn.startswith("v_permlane")
        self.is_rl = mn.startswith("v_readlane") or mn.startswith("v_readfirstlane")
        self.ws = 1
        if mn == "s_nop": self.ws = int(ops[0], 0) + 1
        R = [regs(o) for o in ops]
        self.w = set(); self.r = set(); self.srcC = set(); self.srcAB = set(); self.stdata = set()
        self.is_dma = self.is_vmem and re.search(r"\blds\b", self.mods) is not None
        if self.is_mfma:
            self.w = R[0]; self.srcAB = R[1] | R[2]
            if mn.startswith("v_smfmac"): self.srcC = R[0]; self.srcAB |= R[3]
            else: self.srcC = R[3] if len(R) > 3 else set()
            self.r = self.srcAB | self.srcC
        elif self.is_perm:
            self.w = R[0] | R[1]; self.r = R[0] | R[1]
        elif self.is_valu and not R: pass
        elif self.is_valu:
            self.w = set(R[0]); srcs = R[1:]
            if "_co_" in mn or mn.startswith("v_div_scale") or mn.startswith("v_mad_u64"):
                self.w |= R[1]; srcs = R[2:]
            for s in srcs: self.r |= s
            if mn.startswith("v_fmac") or mn.startswith("v_pk_fmac") or mn.startswith("v_dot2c"): self.r |= R[0]
            if mn.startswith("v_cndmask") and len(ops) == 3: self.r |= regs("vcc")
            if mn.startswith("v_cmpx"): self.w |= regs("exec")
            if self.is_dpp: self.r |= R[0]
        elif self.is_vmem:
            if mn.startswith("buffer_inv") or mn.startswith("buffer_wbl2"): pass
            elif self.is_dma:
                for s in R: self.r |= s
                self.r |= regs("m0")
            elif "store" in mn:
                if mn.startswith("buffer"): self.stdata = R[0]
                else: self.stdata = R[1]
                for s in R: self.r |= s
            elif "atomic" in mn:
                for s in R: self.r |= s
                if "sc0" in self.mods: self.w = R[0]
            else:
                self.w = R[0]
                for s in R[1:]: self.r |= s
        elif self.is_ds:
            if "read" in mn or "permute" in mn or "swizzle" in mn:
                self.w = R[0]
                for s in R[1:]: self.r |= s
            else:
                for s in R: self.r |= s
        elif self.is_salu:
            nodst = ("s_cmp", "s_cbranch", "s_branch", "s_waitcnt", "s_barrier", "s_nop", "s_endpgm", "s_sleep", "s_setprio", "s_bitcmp", "s_setpc")
            if any(mn.startswith(x) for x in nodst):
                for s in R: self.r |= s
            else:
                if R: self.w = set(R[0])
                for s in R[1:]: self.r |= s
                if "saveexec" in mn: self.w |= regs("exec")

def need(p, c):
    n = 0
    vw = {x for x in p.w if x[0] in "va"}; sw = {x for x in p.w if x[0] == "s"}
    if p.is_valu:
        if c.is_mfma and (vw & c.r): n = max(n, 2)
        if c.is_perm and (vw & c.r): n = max(n, 2)
        if c.is_dpp and (vw & c.r): n = max(n, 2)
        if c.is_rl and (vw & c.r): n = max(n, 1)
        if p.is_trans and c.is_valu and not c.is_trans and (vw & c.r): n = max(n, 1)
        if p.is_trans and (c.is_vmem or c.is_ds or c.is_mfma) and (vw & c.r): n = max(n, 2 if c.is_mfma else 1)
        if sw:
            if c.is_valu and (sw & c.r): n = max(n, 4 if c.is_rl else 2)
            if c.is_vmem and (sw & c.r): n = max(n, 5)
            if ("s", 126) in sw and (c.is_mfma or c.is_rl or c.is_perm): n = max(n, 4)
            if ("s", 126) in sw and c.is_dpp: n = max(n, 5)
        if ("sdwa" in p.mn or "op_sel" in p.mods) and "pk_" not in p.mn and c.is_valu and (vw & (c.r | c.w)): n = max(n, 1)
    if p.is_mfma:
        ps = passes(p.mn); big = {2: 5, 4: 8, 8: 12, 16: 20}[ps]
        if c.is_mfma:
            if p.w & c.srcAB: n = max(n, big)
            if p.w & c.srcC:
                if not (p.w == c.srcC and c.mn == p.mn): n = max(n, {2: 4, 4: 6, 8: 10, 16: 18}[ps])
                elif ps == 2: n = max(n, 2)
            elif (p.w & c.w) and not (p.text == c.text): n = max(n, big)
        elif (c.is_valu or c.is_vmem or c.is_ds) and (p.w & (c.r | c.w)): n = max(n, big)
        if c.is_valu and (p.srcC & c.w): n = max(n, {2: 1, 4: 3, 8: 7, 16: 15}[ps])
    if p.is_salu and ("s", 124) in p.w and c.is_dma: n = max(n, 1)
    if p.is_vmem and p.stdata and ("x4" in p.mn or "x3" in p.mn) and (p.stdata & c.w): n = max(n, 2 if c.is_valu else 1)
    return n

def check_hazards(text, verbose=True):
    lines = text.split("\n")
    ins = []; labels = {}
    for i, l in enumerate(lines):
        s = l.split(";")[0].strip()
        if not s or s.startswith("."): continue
        if s.endswith(":"): labels[s[:-1]] = len(ins); continue
        ins.append(Ins(s, i + 1))
    errs = []
    W = 24
    def scan(seq):
        for j in range(len(seq)):
            dist = 0
            for i in range(j - 1, max(-1, j - W), -1):
                p = seq[i]
                if p.mn in ("s_endpgm", "s_branch"): break
                n = need(p, seq[j])
                if n > dist: errs.append((p, seq[j], n, dist))
                dist += p.ws
                if dist >= 21: break
    scan(ins)
    for k, x in enumerate(ins):
        if x.mn.startswith("s_cbranch") or x.mn == "s_branch":
            t = labels.get(x.ops[0])
            if t is None: continue
            pre = ins[max(0, k - W):k]
            cut = 0
            for q, p in enumerate(pre):
                if p.mn in ("s_endpgm", "s_branch"): cut = q + 1
            pre = pre[cut:]
            fake = Ins("s_nop 0", x.lineno)
            seq = pre + [fake] + ins[t:t + W]
            base = len(pre) + 1
            for j in range(base, len(seq)):
                if seq[j - 1].mn in ("s_endpgm", "s_branch") and j - 1 >= base: break
                dist = sum(q.ws for q in seq[base - 1:j])
                for i in range(base - 2, -1, -1):
                    p = seq[i]
                    n = need(p, seq[j])
                    if n > dist: errs.append((p, seq[j], n, dist))
                    dist += p.ws
                    if dist >= 21: break
    seen = set(); out = []
    for (p, c, n, d) in errs:
        key = (p.lineno, c.lineno)
        if key in seen: continue
        seen.add(key); out.append(f"HAZARD need {n} have {d}: L{p.lineno} `{p.text}` -> L{c.lineno} `{c.text}`")
    if verbose:
        for o in out[:40]: print(o)
        print(f"hazard check: {len(ins)} instructions, {len(out)} violations")
    return out

def fix_hazards(lines):
    out = []; hist = []
    for l in lines:
        s = l.split(";")[0].strip()
        if not s or s.startswith(".") or s.endswith(":"):
            out.append(l); continue
        c = Ins(s, 0)
        dist = 0; deficit = 0
        for p in reversed(hist[-24:]):
            if p.mn in ("s_endpgm", "s_branch"): break
            n = need(p, c)
            if n > dist: deficit = max(deficit, n - dist)
            dist += p.ws
            if dist >= 21: break
        while deficit > 0:
            k = min(deficit, 16)
            out.append(f"    s_nop {k-1}"); hist.append(Ins(f"s_nop {k-1}", 0)); deficit -= k
        out.append(l); hist.append(c)
    return out

B128_GROUPS = [[0,1,2,3,12,13,14,15,20,21,22,23,24,25,26,27], [4,5,6,7,8,9,10,11,16,17,18,19,28,29,30,31]]
B128_GROUPS += [[x + 32 for x in g] for g in B128_GROUPS]
def conflicts(addrs, kind):
    if kind == "b128": groups, nb, w = B128_GROUPS, 64, 4
    elif kind == "b64": groups, nb, w = [list(range(32)), list(range(32, 64))], 64, 2
    else: raise ValueError
    tot = 0
    for g in groups:
        banks = {}
        for l in g:
            for d in range(w):
                a = addrs[l] // 4 + d
                banks.setdefault(a % nb, set()).add(a)
        tot += max(len(v) for v in banks.values()) - 1
    return tot
```

```python
ARG = dict(x=0, mem0=1, Wq=2, Wk=3, Wv=4, Wo=5, seg=6, Bx=7, w1=8, w2=9, w3=10, w4=11, c=12, wmod=13, out=14, dbg=15, ws=16)
MB = 1 << 20
WS = {}
_off = 0
def _alloc(name, nbytes, align=4096):
    global _off
    _off = (_off + align - 1) // align * align
    WS[name] = _off; _off += nbytes
S, D, H, DH, F = 2048, 1024, 32, 128, 3584
_alloc("mod", 6144 * 4)
_alloc("modp", 4 * 2048 * 4)
_alloc("h", S * D * 2)
_alloc("hr", S * D * 2)
_alloc("q", S * 4096 * 2)
_alloc("o", S * 4096 * 2)
_alloc("x1", S * D * 2)
_alloc("h2", S * D * 2)
_alloc("a1", S * D * 2)
_alloc("g1", (S + 4) * D * 2)
_alloc("y1", S * D * 2)
_alloc("a3", S * D * 2)
_alloc("g3", S * F * 2)
PROW0 = 1536
PSTR = (S - PROW0) * D * 4
_alloc("part", 4 * PSTR)
_alloc("part2", 4 * PSTR)
_alloc("xch", 6 * MB, 4 * MB)
_alloc("qkv", 128 * MB, 4 * MB)
WS_END = _off
assert WS_END <= 240 * MB, WS_END / MB
WS_BYTES = 256 * MB
```

```python
from asmgen import *
from layout import *
from gemm import load_ptr, f2u
from small import red_c
LOG2E = 1.4426950408889634
X0 = 8; XF = 40; SC = 104; SH = 168
def m1_ln1_loads(A, idx, zbase, flg):
    A.e(f"s_load_dwordx4 s[4:7], s[0:1], {ARG['c']*8}")
    load_ptr(A, 8, ARG["x"])
    A.e(f"""
    v_and_b32 v1, 63, v0
    v_lshrrev_b32 v2, 6, v0            ; wave
    v_and_b32 v3, 7, v0                ; cc
    v_lshrrev_b32 v4, 3, v0            ; r0
    v_mul_u32_u24 v5, {6144*2}, v4
    v_lshl_add_u32 v5, v3, 4, v5
    v_lshlrev_b32 v6, 1, v4
    s_and_b32 s24, s{idx}, 31
    s_lshr_b32 s25, s{idx}, 5
    s_lshl_b32 s26, s24, 7
    s_mul_i32 s27, s25, {256*6144*2}
    s_add_u32 s26, s26, s27
    s_lshl_b32 s27, s25, 9
    s_waitcnt lgkmcnt(0)""")
    A.srd(12, 4, 2048); A.srd(28, 6, 1024 * 6144 * 2); A.srd(32, 8, S * D * 2)
    for j in range(8):
        A.e(f"buffer_load_dwordx4 {vr(64+4*j,4)}, v5, s[28:31], s26 offen")
        if j < 7: A.e(f"s_add_u32 s26, s26, {32*6144*2}")
    for j in range(8): A.e(f"buffer_load_ushort v{96+j}, v6, s[12:15], s27 offen offset:{j*64}")
    A.e(f"""
    v_and_b32 v3, 3, v1                ; t
    v_lshrrev_b32 v4, 2, v1            ; c
    v_lshl_add_u32 v5, v2, 2, v3
    v_lshlrev_b32 v5, 11, v5
    v_lshl_add_u32 v5, v4, 5, v5       ; x offset
    s_lshl_b32 s36, s{idx}, 15""")
    for i in range(4):
        for q in range(2): A.e(f"buffer_load_dwordx4 {vr(X0+i*8+q*4,4)}, v5, s[32:35], s36 offen offset:{i*512+q*16}")
    A.e(f"""
    v_lshrrev_b32 v6, 1, v4
    v_lshlrev_b32 v6, 11, v6
    v_and_b32 v7, 1, v4
    v_lshl_add_u32 v6, v7, 9, v6
    v_and_b32 v7, 1, v2
    v_lshl_add_u32 v6, v7, 10, v6
    v_lshrrev_b32 v7, 1, v2
    v_lshl_add_u32 v7, v7, 2, v3
    v_lshl_add_u32 v6, v7, 4, v6       ; h offset
    v_lshlrev_b32 v4, 6, v4
    s_lshr_b32 s37, s{idx}, 1
    s_lshl_b32 s37, s37, 16
    s_and_b32 s38, s{idx}, 1
    s_lshl_b32 s38, s38, 7
    s_add_u32 s37, s37, s38
    s_add_u32 s37, s37, {WS['h']}
    s_mov_b32 s38, {f2u(-LOG2E):#x}
    s_mov_b32 s39, 0xffff0000""")
    nz = A.newlabel("nz")
    A.e(f"""
    s_cmp_lg_u32 s50, 1
    s_cbranch_scc1 {nz}
    s_lshl_b32 s40, s{idx}, 8
    s_add_u32 s40, s40, {zbase}
    s_and_b32 s41, s{idx}, 63
    s_lshl_b32 s41, s41, 6
    s_add_u32 s41, s41, {WS['g1'] - 256}
    s_add_u32 s42, s41, {(S+2)*D*2}
    s_cmp_lt_u32 s{idx}, 64
    s_cselect_b32 s41, s41, s42
    v_mov_b32 v104, s40
    v_mov_b32 v105, s41
    v_cmp_gt_u32 vcc, 16, v1
    v_cndmask_b32 v104, v105, v104, vcc
    v_lshl_add_u32 v104, v1, 4, v104
    s_lshl_b32 s41, s{idx}, 7
    s_add_u32 s41, s41, {flg}
    v_writelane_b32 v104, s41, 20
    v_mov_b32 v108, 0
    v_mov_b32 v109, 0
    v_mov_b32 v110, 0
    v_mov_b32 v111, 0
    s_mov_b64 exec, 0x1fffff
    buffer_store_dwordx4 v[108:111], v104, s[20:23], 0 offen sc1
    s_mov_b64 exec, -1""")
    A.label(nz)
def m1_compute(A, idx, hook=None):
    for i in range(8): A.e(f"v_mov_b32 v{112+i}, 0")
    A.e("s_waitcnt vmcnt(8)")
    if hook: hook()
    for j in range(8):
        c = 96 + j
        A.e(f"v_lshlrev_b32 v{c}, 16, v{c}\nv_mul_f32 v104, s38, v{c}\nv_exp_f32 v104, v104\nv_add_f32 v104, 1.0, v104\nv_rcp_f32 v104, v104\nv_mul_f32 v104, v104, v{c}\nv_cvt_pk_bf16_f32 v104, v104, v104\nv_and_b32 v{c}, s39, v104")
        for k in range(4):
            w = 64 + 4 * j + k
            A.e(f"v_lshlrev_b32 v105, 16, v{w}\nv_and_b32 v106, s39, v{w}\nv_fmac_f32 v{112+2*k}, v105, v{c}\nv_fmac_f32 v{113+2*k}, v106, v{c}")
    for i in range(4): A.e(f"v_permlane32_swap_b32 v{112+i}, v{116+i}")
    for i in range(4): A.e(f"v_add_f32 v{112+i}, v{112+i}, v{116+i}")
    for i in range(2): A.e(f"v_permlane16_swap_b32 v{112+i}, v{114+i}")
    for i in range(2): A.e(f"v_add_f32 v{112+i}, v{112+i}, v{114+i}")
    for i in range(2): A.e(f"v_add_f32_dpp v{112+i}, v{112+i}, v{112+i} row_ror:8 row_mask:0xf bank_mask:0xf")
    n0 = A.newlabel("m1n0")
    A.e(f"""
    v_and_b32 v104, 7, v1
    v_lshlrev_b32 v104, 5, v104
    v_lshrrev_b32 v105, 5, v1
    v_lshl_add_u32 v104, v105, 4, v104
    v_bfe_u32 v105, v1, 4, 1
    v_lshl_add_u32 v104, v105, 3, v104
    v_lshl_add_u32 v104, v2, 8, v104
    ds_write_b64 v104, v[112:113]
    v_lshlrev_b32 v105, 2, v1
    s_lshl_b32 s40, s25, 13
    s_lshl_b32 s41, s24, 8
    s_add_u32 s40, s40, s41
    s_add_u32 s40, s40, {WS['modp']}
    s_waitcnt lgkmcnt(0)
    s_barrier
    s_cmp_lg_u32 s50, 0
    s_cbranch_scc1 {n0}""")
    for k in range(4): A.e(f"ds_read_b32 v{112+k}, v105 offset:{k*256}")
    A.e("""
    s_waitcnt lgkmcnt(0)
    v_add_f32 v112, v112, v113
    v_add_f32 v114, v114, v115
    v_add_f32 v112, v112, v114
    buffer_store_dword v112, v105, s[20:23], s40 offen sc1""")
    A.label(n0)
    A.e("s_waitcnt vmcnt(0)\ns_barrier")
M = 8; R = 10; Tm = 12
def ln1_stats(A):
    for i in range(31, -1, -1): A.e(f"v_and_b32 v{XF+2*i+1}, s39, v{X0+i}\nv_lshlrev_b32 v{XF+2*i}, 16, v{X0+i}")
    A.e(f"v_pk_add_f32 {vr(M,2)}, {vr(XF,2)}, {vr(XF+2,2)}\nv_pk_add_f32 {vr(M+2,2)}, {vr(XF+4,2)}, {vr(XF+6,2)}")
    for i in range(8, 64, 4): A.e(f"v_pk_add_f32 {vr(M,2)}, {vr(M,2)}, {vr(XF+i,2)}\nv_pk_add_f32 {vr(M+2,2)}, {vr(M+2,2)}, {vr(XF+i+2,2)}")
    A.e(f"v_pk_add_f32 {vr(M,2)}, {vr(M,2)}, {vr(M+2,2)}\nv_add_f32 v{M}, v{M}, v{M+1}")
    red_c(A, M, Tm)
    A.e(f"v_mul_f32 v{M}, {f2u(-1/1024):#x}, v{M}")
    for i in range(0, 64, 2): A.e(f"v_pk_add_f32 {vr(XF+i,2)}, {vr(XF+i,2)}, {vr(M,2)} op_sel_hi:[1,0]")
    A.e(f"v_pk_mul_f32 {vr(R,2)}, {vr(XF,2)}, {vr(XF,2)}\nv_pk_mul_f32 {vr(R+4,2)}, {vr(XF+2,2)}, {vr(XF+2,2)}")
    for i in range(4, 64, 4): A.e(f"v_pk_fma_f32 {vr(R,2)}, {vr(XF+i,2)}, {vr(XF+i,2)}, {vr(R,2)}\nv_pk_fma_f32 {vr(R+4,2)}, {vr(XF+i+2,2)}, {vr(XF+i+2,2)}, {vr(R+4,2)}")
    A.e(f"v_pk_add_f32 {vr(R,2)}, {vr(R,2)}, {vr(R+4,2)}\nv_add_f32 v{R}, v{R}, v{R+1}")
    red_c(A, R, Tm)
    A.e(f"v_mov_b32 v{Tm}, {f2u(1e-5):#x}\nv_fmac_f32 v{Tm}, {f2u(1/1024):#x}, v{R}\nv_rsq_f32 v{R}, v{Tm}")
    for i in range(0, 64, 2): A.e(f"v_pk_mul_f32 {vr(XF+i,2)}, {vr(XF+i,2)}, {vr(R,2)} op_sel_hi:[1,0]")
def ln1_finish(A):
    A.e(f"v_lshlrev_b32 v7, 5, v0\ns_mov_b32 s40, {WS['modp']}")
    for k in range(4):
        for q in range(2): A.e(f"buffer_load_dwordx4 {vr(SC+k*8+q*4,4)}, v7, s[20:23], s40 offen offset:{q*16} sc1")
        if k < 3: A.e("s_add_u32 s40, s40, 8192")
    A.e(f"v_mov_b32 v{Tm+2}, 1.0\nv_cmp_lt_u32 vcc, 127, v0\nv_cndmask_b32 v{Tm+2}, 0, v{Tm+2}, vcc\ns_waitcnt vmcnt(0)")
    for i in range(0, 8, 2): A.e(f"v_pk_add_f32 {vr(SC+i,2)}, {vr(SC+i,2)}, {vr(SC+8+i,2)}\nv_pk_add_f32 {vr(SC+16+i,2)}, {vr(SC+16+i,2)}, {vr(SC+24+i,2)}")
    for i in range(0, 8, 2): A.e(f"v_pk_add_f32 {vr(SC+i,2)}, {vr(SC+i,2)}, {vr(SC+16+i,2)}")
    for i in range(4): A.e(f"v_cvt_pk_bf16_f32 v{SC+8+i}, v{SC+2*i}, v{SC+2*i+1}")
    for i in range(4): A.e(f"v_lshlrev_b32 v{SC+2*i}, 16, v{SC+8+i}\nv_and_b32 v{SC+2*i+1}, s39, v{SC+8+i}")
    for i in range(0, 8, 2): A.e(f"v_pk_add_f32 {vr(SC+i,2)}, {vr(SC+i,2)}, {vr(Tm+2,2)} op_sel_hi:[1,0]")
    A.e(f"ds_write_b128 v7, {vr(SC,4)} offset:4096\nds_write_b128 v7, {vr(SC+4,4)} offset:4112\ns_waitcnt lgkmcnt(0)\ns_barrier")
    for i in range(4):
        for q in range(4):
            A.e(f"ds_read_b128 {vr(SC+i*16+q*4,4)}, v4 offset:{8192+i*1024+q*16}\nds_read_b128 {vr(SH+i*16+q*4,4)}, v4 offset:{4096+i*1024+q*16}")
    A.e(f"s_add_u32 s36, s36, {WS['hr']}")
    for i in range(4):
        A.e(f"s_waitcnt lgkmcnt({min(15, 8*(3-i))})")
        for j in range(i * 16, i * 16 + 16, 2): A.e(f"v_pk_fma_f32 {vr(XF+j,2)}, {vr(XF+j,2)}, {vr(SC+j,2)}, {vr(SH+j,2)}")
        for u in range(2):
            o = 16 + ((i & 1) * 2 + u) * 4
            for j, d in enumerate((0, 4, 1, 5)):
                c = XF + i * 16 + 2 * (d + 2 * u)
                A.e(f"v_cvt_pk_bf16_f32 v{o+j}, v{c}, v{c+1}")
            if u == 0 and i: A.e(f"s_add_u32 s37, s37, 16384")
            A.e(f"buffer_store_dwordx4 {vr(o,4)}, v6, s[20:23], s37 offen offset:{u*256} sc1")
    for i in range(4):
        for q in range(2):
            o = SC + (i * 2 + q) * 4
            for j in range(4): A.e(f"v_cvt_pk_bf16_f32 v{o+j}, v{XF+i*16+q*8+2*j}, v{XF+i*16+q*8+2*j+1}")
            A.e(f"buffer_store_dwordx4 {vr(o,4)}, v5, s[20:23], s36 offen offset:{i*512+q*16} sc1")
```

```python
ARG = dict(x=0, mem0=1, Wq=2, Wk=3, Wv=4, Wo=5, seg=6, Bx=7, w1=8, w2=9, w3=10, w4=11, c=12, wmod=13, out=14, dbg=15, ws=16)
MB = 1 << 20
WS = {}
_off = 0
def _alloc(name, nbytes, align=4096):
    global _off
    _off = (_off + align - 1) // align * align
    WS[name] = _off; _off += nbytes
S, D, H, DH, F = 2048, 1024, 32, 128, 3584
_alloc("mod", 6144 * 4)
_alloc("modp", 4 * 2048 * 4)
_alloc("h", S * D * 2)
_alloc("h2", (S + 64) * D * 2)
_alloc("a1", S * D * 2)
_alloc("g1", 66 * 65536)
_alloc("inb", 2 * MB, MB)
_alloc("xch", 6 * MB, 4 * MB)
_alloc("pad", 2 * MB)
_alloc("qkv", 136 * MB, 4 * MB)
UQ, UO, UX, UY, US, UG, UA, UG1, UH = 0, 32, 64, 72, 80, 81, 112, 120, 0
WS_END = _off
assert WS_END <= 240 * MB, WS_END / MB
assert WS["qkv"] - 2 * MB >= WS["xch"] + 6 * MB
WS_BYTES = 256 * MB
```

```python
from asmgen import *
from layout import *
from gemm import load_ptr, f2u
import start
LOG2E = 1.4426950408889634
SCL = (128 ** -0.5) * LOG2E

XMEAS = WS["xch"]
XCNT = XMEAS + 65536
XHEAD = XCNT + 2048
XTC = XCNT + 4096
CRL = 136
CTGT = 1792
CR0 = 8
CLN = 176; CPZ = 184
XLOC = WS["xch"] + 2 * MB
XO = 65536; XQK = 131072; XKT = 262144; XHI = 524288
XFLG = XMEAS + 131072
RFLG = XMEAS + 196608
NRDY = 144
DPAR = 32; DRDY = 36; DM1F = 160; DM1S = 164
QB = WS["qkv"]
OOB = 0x7fff0000
LB = 131072
LM = 0; LVT = 16384; LVM = 24576; LBP = 25600; LFL = LB + 27648; L_ROLE = LB + 27904
LDS_BYTES = LB + 28672
HALF = 0x00ff00ff
FORCE_SLOW = False
PROF = False
BUDGET = 400000
THM = 25; NOM = 2; THO = 50; NOO = 1; D2 = 200; NF2 = 2; DP = 450; UPB = 8; CGB = 2
N1 = 16; P1 = (15, 55); N2 = 10; P2 = (100, 128); NRD2 = 4; SPFD = 5
NA = 12; DA = 300; NB3 = 0; NC = 0; GA = 16
SIGLAG = 5
PC = 0
DBG = 0
SPOS = dict(k0='E', v0='A', k1='E', v1='A', sig=None)
NPZ = 8
WPF = 0
CPF = 1
WNT = 'nt'
PNT = ''
PFD = 0
DWT = 0
PFW = ''
NQE = 0
SLP = 2
CPERM = 0; CPERM2 = 0

def rec_kernel(A, name, worker=None, nsteps=64):
    L = A.newlabel
    def delay(n):
        while n >= 64:
            A.e("s_nop 15"); n -= 64
        n //= 4
        if n > 0: A.e(f"s_nop {n-1}")
    A.begin_kernel(name)
    done = L("done")
    wexit = worker if worker else done
    def rts(lane):
        if PROF: A.e(f"s_memrealtime s[100:101]\ns_waitcnt lgkmcnt(0)\nv_writelane_b32 v255, s100, {lane}\ns_memtime s[100:101]\ns_waitcnt lgkmcnt(0)\nv_writelane_b32 v255, s100, {lane-16}")
    A.e(f"s_cmp_ge_u32 s2, 256\ns_cbranch_scc1 {done}")
    A.e(f"s_load_dwordx4 s[16:19], s[0:1], {ARG['dbg']*8}")
    A.e("s_load_dword s3, s[0:1], 0")
    def cpf():
        if not CPF: return
        A.e("buffer_load_dword v181, v180, s[8:11], 0 offen\ns_mov_b32 s12, 0x8000\nbuffer_load_dword v182, v180, s[8:11], s12 offen")
        if worker: A.e("s_lshr_b32 s12, s2, 3\ns_and_b32 s12, s12, 7\ns_add_u32 s12, s12, 2\ns_lshl_b32 s12, s12, 15\nbuffer_load_dword v183, v180, s[8:11], s12 offen")
    if CPF:
        pc0 = L("pc"); c0 = L("nocpf")
        A.e(f"s_getpc_b64 s[4:5]\n{pc0}:\ns_sub_u32 s8, s4, {pc0}-{name}\ns_subb_u32 s9, s5, 0\ns_and_b32 s9, s9, 0xffff\ns_mov_b32 s10, code_end-{name}\ns_mov_b32 s11, 0x20000")
        A.e(f"v_lshlrev_b32 v180, 7, v0\nv_cmp_gt_u32 vcc, 64, v0\ns_cbranch_vccnz {c0}")
        cpf()
        A.label(c0)
    A.e(f"""
    v_and_b32 v1, 63, v0
    v_lshrrev_b32 v2, 6, v0
    s_getreg_b32 s51, hwreg(HW_REG_XCC_ID)
    v_readfirstlane_b32 s50, v2        ; wave
    s_and_b32 s51, s51, 7
    s_waitcnt lgkmcnt(0)""")
    A.srd(20, 18, WS_BYTES)
    A.srd(44, 16, 256)
    A.e(f"s_mov_b32 s90, {BUDGET}\ns_mov_b32 s91, s50")
    rts(58)
    norole = L("norole"); setup = L("setup"); verify = L("verify"); loops = L("loops"); pre = L("pre"); post = L("post")
    A.e(f"""
    v_mov_b32 v187, {L_ROLE}
    s_cmp_lg_u32 s50, 0
    s_cbranch_scc1 {norole}
    s_mov_b64 exec, 1
    v_mov_b32 v184, 1
    v_mov_b32 v185, 0
    s_and_b32 s52, s51, 3
    s_lshl_b32 s52, s52, 2
    s_lshr_b32 s53, s51, 2
    s_lshl_b32 s53, s53, 7
    s_add_u32 s52, s52, s53
    buffer_atomic_add v184, v185, s[44:47], s52 offen sc0 sc1
    s_mov_b64 exec, -1""")
    cpf()
    A.e(f"""
    s_mov_b64 exec, 1
    s_waitcnt vmcnt({(2 + (1 if worker else 0)) if CPF else 0})
    ds_write_b32 v187, v184
    s_waitcnt lgkmcnt(0)
    s_mov_b64 exec, -1""")
    A.label(norole)
    A.e(f"""
    s_barrier
    ds_read_b32 v186, v187
    s_waitcnt lgkmcnt(0)
    v_readfirstlane_b32 s54, v186
    s_mov_b32 s56, 2
    s_lshl_b32 s57, s51, 5
    s_add_u32 s57, s57, s54
    s_cmp_lt_u32 s54, 32
    s_cselect_b32 s57, s57, 999
    s_cmp_ge_u32 s57, 256
    s_cbranch_scc1 {verify}
    s_cmp_ge_u32 s57, 128
    s_cbranch_scc1 {pre}""")
    slow = L("slowrole")
    def tickets(par):
        vp = L("vpoll"); vg = L("vgot"); vs = L("vslp")
        A.e(f"v_and_b32 v184, 3, v1\nv_bfe_u32 v185, v1, 2, 1\nv_lshlrev_b32 v184, 2, v184\nv_lshl_add_u32 v184, v185, 7, v184\nv_writelane_b32 v184, {DPAR}, 8\ns_mov_b64 exec, 0x1ff")
        A.label(vp)
        A.e("buffer_load_dword v185, v184, s[44:47], 0 offen sc1\ns_waitcnt vmcnt(0)")
        for x in range(8): A.e(f"v_readlane_b32 s{92+x}, v185, {x}")
        A.e("v_readlane_b32 s61, v185, 8\ns_add_u32 s64, s92, s93")
        for x in range(2, 8): A.e(f"s_add_u32 s64, s64, s{92+x}")
        A.e(f"""
        s_min_u32 s65, s92, s93
        s_min_u32 s66, s94, s95
        s_min_u32 s65, s65, s66
        s_min_u32 s66, s96, s97
        s_min_u32 s65, s65, s66
        s_min_u32 s66, s98, s99
        s_min_u32 s65, s65, s66
        s_cmp_lt_u32 s65, {33 if FORCE_SLOW else 32}
        s_cselect_b32 s65, 1, 0
        s_cmp_lt_u32 s64, 256
        s_cbranch_scc1 {vs}""")
        if par: A.e(f"s_or_b32 s66, s65, s61\ns_cmp_lg_u32 s66, 0\ns_cbranch_scc1 {vg}")
        else: A.e(f"s_branch {vg}")
        A.label(vs)
        A.e(f"s_sleep 8\ns_sub_u32 s90, s90, 1\ns_cmp_gt_i32 s90, 0\ns_cbranch_scc1 {vp}")
        A.label(vg)
        A.e("s_mov_b64 exec, -1\ns_and_b32 s61, s61, 1\ns_lshl_b32 s61, s61, 13")
    def slowid():
        A.e("s_mov_b32 s66, s54")
        for x in range(7):
            A.e(f"s_cmp_gt_u32 s51, {x}\ns_cselect_b32 s64, s{92+x}, 0\ns_add_u32 s66, s66, s64")
        if FORCE_SLOW: A.e("s_mul_i32 s66, s66, 37\ns_add_u32 s66, s66, 11\ns_and_b32 s66, s66, 255")
    def share(body, wv=0):
        n0 = L("sh0")
        A.e(f"v_mov_b32 v187, {L_ROLE}\ns_cmp_lg_u32 s50, {wv}\ns_cbranch_scc1 {n0}")
        body()
        A.e("v_mov_b32 v184, s65\nv_mov_b32 v185, s66\nv_mov_b32 v186, s61\nds_write_b96 v187, v[184:186] offset:16\ns_waitcnt lgkmcnt(0)")
        A.label(n0)
        A.e(f"""
        s_barrier
        ds_read_b96 v[184:186], v187 offset:16
        s_waitcnt lgkmcnt(0)
        v_readfirstlane_b32 s65, v184
        v_readfirstlane_b32 s66, v185
        v_readfirstlane_b32 s61, v186""")
    def doverify(par):
        def body(): tickets(par); slowid()
        share(body)
        A.e(f"s_cmp_lg_u32 s65, 0\ns_cbranch_scc1 {slow}\ns_mov_b32 s56, 0")
    def dpoll(srd, off, cond, sl=4, voff=None, lanes=None):
        lp_ = L("dp"); ok_ = L("dpok")
        if voff is None: A.e("v_mov_b32 v184, 0")
        if lanes: A.e(f"s_mov_b64 exec, {lanes:#x}")
        A.label(lp_)
        A.e(f"buffer_load_dword v185, v184, {srd}, {off} offen sc1\ns_waitcnt vmcnt(0)\n{cond}\ns_cbranch_vccz {ok_}\ns_sleep {sl}\ns_sub_u32 s90, s90, 1\ns_cmp_gt_i32 s90, 0\ns_cbranch_scc1 {lp_}")
        A.label(ok_)
        if lanes: A.e("s_mov_b64 exec, -1")
    def getpar():
        dpoll("s[44:47]", DPAR, "v_cmp_eq_u32 vcc, 0, v185")
        A.e("v_readfirstlane_b32 s65, v185\ns_and_b32 s65, s65, 1\ns_lshl_b32 s61, s65, 13")
    def arrive(v):
        A.e(f"s_and_b32 s64, s56, 1\ns_lshl_b32 s64, s64, 2\ns_add_u32 s64, s64, {DRDY}\ns_mov_b64 exec, 1\nv_mov_b32 v{v}, 1\nv_mov_b32 v185, 0\nbuffer_atomic_add v{v}, v185, s[44:47], s64 offen sc0 sc1\ns_mov_b64 exec, -1")
    def raiseall(v):
        na = L("narr"); np_ = L("nopar")
        A.e(f"v_readfirstlane_b32 s64, v{v}\ns_cmp_lg_u32 s64, {NRDY-1}\ns_cbranch_scc1 {na}\ns_mov_b32 s65, 0\ns_cmp_eq_u32 s56, 1\ns_cbranch_scc1 {np_}")
        getpar()
        A.label(np_)
        A.e(f"""
        s_add_u32 s65, s65, 2
        v_lshlrev_b32 v184, 7, v1
        v_mov_b32 v185, s65
        s_mov_b32 s64, {RFLG}
        s_mov_b32 s65, {RFLG + 8192}
        buffer_store_dword v185, v184, s[20:23], s64 offen sc1
        buffer_store_dword v185, v184, s[20:23], s65 offen sc1""")
        A.label(na)
    A.label(setup)
    rts(59)
    A.e(f"s_load_dwordx8 s[4:11], s[0:1], {ARG['mem0']*8}")
    A.e(f"s_load_dwordx2 s[12:13], s[0:1], {ARG['Wo']*8}")
    A.e(f"""
    v_and_b32 v3, 15, v1               ; lam
    v_lshrrev_b32 v4, 4, v1            ; g
    v_lshlrev_b32 v16, 4, v1           ; lane*16
    v_lshrrev_b32 v30, 2, v1
    v_and_b32 v31, 3, v1
    v_lshlrev_b32 v7, 13, v30
    v_lshl_add_u32 v7, v31, 4, v7
    v_lshlrev_b32 v8, 11, v30
    v_lshl_add_u32 v8, v31, 4, v8
    s_lshr_b32 s58, s57, 5             ; group x
    s_and_b32 s59, s57, 31             ; rank r
    s_xor_b32 s60, s57, {CPERM}
    s_lshl_b32 s60, s60, 6             ; E0 bytes
    s_lshl_b32 s61, s50, 14
    s_lshl_b32 s62, s50, 21
    s_add_u32 s62, s62, s60
    s_lshl_b32 s63, s58, 21
    s_lshl_b32 s64, s50, 19
    s_add_u32 s63, s63, s64
    s_xor_b32 s64, s59, {CPERM2}
    s_lshl_b32 s64, s64, 6
    s_add_u32 s63, s63, s64
    s_waitcnt lgkmcnt(0)""")
    A.srd(28, 8, 8 * MB); A.srd(32, 10, 8 * MB); A.srd(36, 6, 8 * MB); A.srd(40, 12, 8 * MB)
    A.srd(8, 4, 16384)
    A.e(f"""
    v_lshlrev_b32 v9, 7, v3
    v_lshl_add_u32 v10, v4, 11, v9
    v_lshl_add_u32 v9, v4, 13, v9
    s_lshl_b32 s64, s59, 2
    s_add_u32 s64, s64, s50
    s_lshl_b32 s65, s64, 16
    s_lshl_b32 s66, s58, 11
    s_add_u32 s65, s65, s66
    s_lshl_b32 s66, s64, 14
    s_lshl_b32 s67, s58, 21
    s_add_u32 s66, s66, s67""")
    def wpf(mat):
        if not WPF: return 0
        for h in range(2):
            if mat < 3: A.e(f"s_add_u32 s64, s65, {h*4*8192}\nbuffer_load_dword v{200+mat*2+h}, v9, s[{28+mat*4}:{31+mat*4}], s64 offen {PNT}")
            else: A.e(f"s_add_u32 s64, s66, {h*4*2048}\nbuffer_load_dword v{200+mat*2+h}, v10, s[40:43], s64 offen {PNT}")
        return 2
    def wissue(mat):
        buf = mat & 1
        for J in range(16):
            if mat < 3:
                A.e(f"s_add_u32 s64, s62, {J*16*8192}\ns_add_u32 m0, s61, {buf*65536+J*1024}\nbuffer_load_dwordx4 v7, s[{28+mat*4}:{31+mat*4}], s64 offen {WNT} lds")
            else:
                A.e(f"s_add_u32 s64, s63, {J*16*2048}\ns_add_u32 m0, s61, {buf*65536+J*1024}\nbuffer_load_dwordx4 v8, s[40:43], s64 offen {WNT} lds")
    def wread(base, addr, nch, tiles):
        for j in range(nch):
            for t in range(tiles):
                a = base + (j * tiles + t) * 8
                for R in range(2):
                    for h in range(2):
                        A.e(f"ds_read_b64_tr_b16 {ar(a+4*R+2*h,2)}, v{addr} offset:{(64*j + 32*R + 2*h)*64 + t*32}")
            if j % 2 == 1 or tiles == 2: A.e("s_waitcnt lgkmcnt(0)")
    if SLP:
        A.e(f"""
        v_and_b32 v9, 7, v1
        v_lshrrev_b32 v10, 3, v1
        s_cmp_eq_u32 s58, 3
        s_cselect_b32 s64, 15, 3
        v_mov_b32 v11, 3
        v_cmp_eq_u32 vcc, 1, v10
        v_cndmask_b32 v11, v11, 11, vcc
        v_lshlrev_b32 v12, 7, v11
        v_lshl_add_u32 v12, v9, 11, v12
        v_mov_b32 v13, s64
        v_cmp_eq_u32 vcc, 2, v10
        v_cndmask_b32 v11, v11, v13, vcc
        v_lshlrev_b32 v11, 7, v11
        v_lshl_add_u32 v11, v9, 13, v11""")
    def slp(mats):
        A.e("s_mov_b64 exec, 0xffffff")
        for m_ in mats:
            if m_ < 3: A.e(f"buffer_load_dword v{200+m_}, v11, s[{28+m_*4}:{31+m_*4}], s65 offen {PNT}")
            else: A.e(f"s_mov_b64 exec, 0xffff\nbuffer_load_dword v203, v12, s[40:43], s66 offen {PNT}")
        A.e("s_mov_b64 exec, -1")
        return len(mats)
    if SLP == 1: slp([0, 1, 2, 3])
    WQ = 32; ZERO = 100; RV = 204; VZP = 206
    for i in range(4): A.e(f"v_mov_b32 v{ZERO+i}, 0")
    A.e("s_mov_b32 s53, s65\ns_mov_b32 s55, s66")
    A.e(f"""
    v_and_b32 v22, 7, v3
    v_lshlrev_b32 v31, 11, v22
    v_lshl_add_u32 v31, v4, 4, v31
    s_lshr_b32 s64, s59, 3
    s_lshl_b32 s64, s64, 14
    s_and_b32 s65, s59, 7
    s_lshl_b32 s65, s65, 10
    s_add_u32 s64, s64, s65
    s_lshl_b32 s65, s58, 16
    s_add_u32 s64, s64, s65
    s_add_u32 s64, s64, {QB + 112*16384}
    s_lshr_b32 s65, s57, 3
    s_add_u32 s65, s65, 96
    s_lshl_b32 s65, s65, 14
    s_and_b32 s66, s57, 7
    s_lshl_b32 s66, s66, 10
    s_add_u32 s65, s65, s66
    s_add_u32 s65, s65, {QB}
    v_add_u32 v{VZP}, s64, v16
    v_add_u32 v{VZP+1}, s65, v16
    s_and_b32 s64, s50, 1
    s_lshl_b32 s64, s64, 21
    s_lshr_b32 s65, s50, 1
    s_lshl_b32 s65, s65, 13
    s_add_u32 s64, s64, s65
    buffer_store_dwordx4 {vr(ZERO,4)}, v{VZP}, s[20:23], s64 offen sc1
    buffer_store_dwordx4 {vr(ZERO,4)}, v{VZP+1}, s[20:23], s64 offen sc1
    s_lshl_b32 s64, s50, 20
    s_add_u32 s64, s64, {XLOC}
    s_cmp_lt_u32 s50, 2
    s_cselect_b32 s67, s64, {OOB:#x}
    s_lshl_b32 s65, s57, 10
    s_add_u32 s65, s65, {XQK}
    s_add_u32 s65, s65, s67
    buffer_store_dwordx4 {vr(ZERO,4)}, v16, s[20:23], s65 offen sc1
    s_lshl_b32 s65, s57, 9
    s_add_u32 s65, s65, s67
    s_add_u32 s66, s65, {XO}
    s_mov_b32 exec_hi, 0
    buffer_store_dwordx4 {vr(ZERO,4)}, v16, s[20:23], s65 offen sc1
    buffer_store_dwordx4 {vr(ZERO,4)}, v16, s[20:23], s66 offen sc1
    s_lshl_b32 s65, s57, 2
    s_add_u32 s65, s65, s64
    s_add_u32 s65, s65, {XHI}
    s_lshl_b32 s52, s57, 7
    s_add_u32 s52, s52, {RFLG}
    s_mov_b64 exec, 1
    buffer_store_dword v{ZERO}, v{ZERO}, s[20:23], s65 offen sc1
    buffer_store_dword v{ZERO}, v{ZERO}, s[20:23], s65 offen offset:512 sc1
    buffer_store_dword v{ZERO}, v{ZERO}, s[20:23], s52 offen sc1
    s_mov_b64 exec, -1""")
    A.e("s_mov_b32 s65, s53\ns_mov_b32 s66, s55")
    wissue(0)
    n_ = slp([1, 2, 3]) if SLP == 2 else 0
    wissue(1)
    A.e("s_lshl_b32 s64, s59, 6\nbuffer_load_dwordx4 v[216:219], v31, s[8:11], s64 offen")
    nz_ = 1
    def qissue(J0, J1):
        for J in range(J0, J1): A.e(f"s_add_u32 s64, s62, {J*16*8192}\nbuffer_load_dwordx4 {vr(WQ+4*J,4)}, v7, s[36:39], s64 offen {WNT}")
    qissue(0, NQE)
    rts(29)
    A.e(f"""
    v_lshrrev_b32 v184, 3, v3            ; r'>>1
    v_bfe_u32 v185, v3, 2, 1             ; r'&1
    v_lshrrev_b32 v186, 1, v4            ; gB>>1
    v_and_b32 v187, 1, v4                ; gB&1
    v_lshl_add_u32 v188, v184, 3, v185
    v_lshl_add_u32 v188, v186, 4, v188
    v_lshl_add_u32 v188, v187, 2, v188
    v_lshl_add_u32 v189, v184, 2, v185
    v_lshl_add_u32 v189, v186, 3, v189
    v_lshl_add_u32 v189, v187, 4, v189
    v_and_b32 v187, 3, v3                ; c'
    v_lshlrev_b32 v187, 3, v187
    v_lshl_add_u32 v188, v188, 6, v187
    v_lshl_add_u32 v189, v189, 6, v187
    s_lshr_b32 s64, s50, 1
    s_lshl_b32 s64, s64, 5               ; tile (w>>1) * 32B
    v_add_u32 v190, s64, v188
    v_add_u32 v191, 0x10000, v190
    s_lshl_b32 s64, s64, 10
    v_add_u32 v192, s64, v189
    s_add_u32 s64, s61, 0x10000
    v_add_u32 v193, s64, v16
    s_add_u32 s68, s50, 1""")
    s1 = L("ws"); s3 = L("ws"); s4 = L("ws"); s5 = L("ws"); rq = L("rq"); rqb = L("rqb")
    A.e(f"s_mov_b32 s69, 0\ns_waitcnt vmcnt({n_ + 16 + nz_ + NQE})")
    A.e("s_barrier")
    rts(30)
    A.e(f"s_cmp_lg_u32 s50, 1\ns_cbranch_scc1 {s5}")
    arrive(RV)
    A.label(s5)
    A.e(f"s_bitcmp1_b32 s68, 1\ns_cbranch_scc0 {s1}")
    A.label(rq)
    wread(0, 190, 16, 1)
    A.e(f"s_cmp_lg_u32 s69, 0\ns_cbranch_scc1 {rqb}")
    A.label(s1)
    qissue(NQE, 16)
    A.e("s_barrier")
    for J in range(16): A.e(f"s_add_u32 s64, s63, {J*16*2048}\ns_add_u32 m0, s61, {J*1024}\nbuffer_load_dwordx4 v8, s[40:43], s64 offen {WNT} lds")
    A.e(f"s_waitcnt vmcnt(32)\ns_barrier"); rts(31)
    A.e(f"s_bitcmp1_b32 s68, 1\ns_cbranch_scc0 {s3}")
    wread(128, 191, 16, 1)
    A.label(s3)
    A.e("s_waitcnt vmcnt(16)\ns_barrier")
    for J in range(16): A.e(f"ds_write_b128 v193, {vr(WQ+4*J,4)} offset:{J*1024}")
    A.e(f"s_mov_b32 s69, 1\nv_mov_b32 v190, v191\ns_waitcnt lgkmcnt(0)\ns_barrier"); rts(32)
    A.e(f"s_bitcmp1_b32 s68, 1\ns_cbranch_scc0 {rq}")
    A.label(rqb)
    A.e(f"s_waitcnt vmcnt(0)\ns_barrier\ns_bitcmp1_b32 s68, 1\ns_cbranch_scc1 {s4}")
    wread(128, 192, 8, 2)
    A.label(s4)
    rts(60)
    def started():
        lp_ = L("stl"); ok_ = L("stok")
        if DWT: A.e(f"s_mov_b64 exec, 1\nv_mov_b32 v184, 1\nv_mov_b32 v185, 0\ns_mov_b32 s64, {DWT}\nbuffer_atomic_add v184, v185, s[44:47], s64 offen sc1\ns_mov_b64 exec, -1")
        raiseall(RV)
        A.e("s_mov_b32 s53, 0")
        A.label(lp_)
        A.e(f"""
        v_mov_b32 v184, 0
        buffer_load_dword v185, v184, s[20:23], s52 offen sc1
        s_waitcnt vmcnt(0)
        v_readfirstlane_b32 s64, v185
        s_mov_b32 s65, 0
        s_and_b32 s61, s64, 1
        s_lshl_b32 s61, s61, 13
        s_cmp_lg_u32 s64, 0
        s_cbranch_scc1 {ok_}
        s_sub_u32 s90, s90, 1
        s_cmp_lt_i32 s90, 0
        s_cbranch_scc1 {ok_}
        s_add_u32 s53, s53, 1
        s_and_b32 s64, s53, 31
        s_cbranch_scc1 {lp_}
        s_cmp_eq_u32 s56, 1
        s_cbranch_scc1 {lp_}""")
        tickets(False); slowid()
        A.e(f"s_cmp_eq_u32 s65, 0\ns_cbranch_scc1 {lp_}")
        A.label(ok_)
    share(started, 1)
    A.e(f"s_cmp_lg_u32 s65, 0\ns_cbranch_scc1 {slow}\ns_and_b32 s56, s56, 1\ns_branch {loops}")
    A.label(pre)
    rts(50)
    A.e("s_sub_u32 s55, s57, 128")
    start.m1_ln1_loads(A, 55, XCNT, XFLG)
    rts(51)
    start.m1_compute(A, 55, lambda: rts(52))
    rts(53)
    def dbgadd(off_expr):
        nk = L("nadd")
        A.e(f"s_cmp_lg_u32 s50, 0\ns_cbranch_scc1 {nk}\ns_mov_b64 exec, 1\nv_mov_b32 v184, 1\nv_mov_b32 v185, 0\n{off_expr}\nbuffer_atomic_add v184, v185, s[44:47], s52 offen sc1\ns_mov_b64 exec, -1")
        A.label(nk)
    nl = L("notlast")
    A.e(f"""
    s_cmp_lg_u32 s50, 0
    s_cbranch_scc1 {post}
    s_mov_b64 exec, 1
    v_mov_b32 v184, 1
    v_mov_b32 v185, 0
    s_and_b32 s52, s56, 1
    s_lshl_b32 s52, s52, 2
    s_add_u32 s52, s52, {DM1F}
    buffer_atomic_add v184, v185, s[44:47], s52 offen sc0 sc1
    s_waitcnt vmcnt(0)
    v_readfirstlane_b32 s64, v184
    s_mov_b64 exec, -1
    s_cmp_eq_u32 s56, 1
    s_cbranch_scc1 {post}
    s_cmp_lg_u32 s64, 127
    s_cbranch_scc1 {post}""")
    tickets(False)
    A.e(f"""
    s_cmp_lg_u32 s65, 0
    s_cbranch_scc1 {post}
    v_lshlrev_b32 v184, 7, v1
    v_mov_b32 v185, 1
    s_mov_b32 s64, {XFLG}
    s_mov_b32 s65, {XFLG + 8192}
    buffer_store_dword v185, v184, s[20:23], s64 offen sc1
    buffer_store_dword v185, v184, s[20:23], s65 offen sc1
    s_branch {post}""")
    A.label(verify)
    doverify(False)
    A.e(f"s_branch {done}")
    A.label(slow)
    A.e(f"s_mov_b32 s57, s66\ns_mov_b32 s56, 1\ns_waitcnt vmcnt(0)\ns_barrier\ns_cmp_ge_u32 s57, 128\ns_cbranch_scc1 {pre}")
    dbgadd(f"s_mov_b32 s52, {DM1S}")
    A.e(f"s_branch {setup}")
    A.label(post)
    wk = L("nomeas")
    if PFW:
        npf = L("npf")
        A.e(f"""
        s_cmp_lt_u32 s55, 16
        s_cbranch_scc1 {npf}
        s_cmp_eq_u32 s55, 127
        s_cbranch_scc1 {npf}
        s_load_dwordx2 s[64:65], s[0:1], {ARG['Wo']*8}
        s_load_dwordx2 s[66:67], s[0:1], {ARG['Wq']*8}
        s_sub_u32 s52, s55, 16
        s_lshl_b32 s52, s52, 2
        s_add_u32 s52, s52, s50
        s_lshl_b32 s52, s52, 13
        v_lshlrev_b32 v184, 7, v1
        s_waitcnt lgkmcnt(0)""")
        A.srd(68, 64, 8 * MB); A.srd(72, 66, 8 * MB)
        for m_ in PFW:
            for k_ in range(3): A.e(f"s_add_u32 s53, s52, {k_*444*8192}\nbuffer_load_dword v{240+k_}, v184, s[{68 if m_ == 'o' else 72}:{71 if m_ == 'o' else 75}], s53 offen")
        A.label(npf)
    A.e(f"""
    s_sub_u32 s65, s57, 255
    s_and_b32 s66, s56, 1
    s_or_b32 s65, s65, s66
    s_or_b32 s65, s65, s50
    s_cmp_lg_u32 s65, 0
    s_cbranch_scc1 {wk}
    s_mov_b64 exec, 1
    v_mov_b32 v184, 0
    s_mov_b32 s52, {XMEAS}
    s_mov_b32 s53, {XMEAS+8192}
    s_mov_b32 s70, 0x7fffffff
    s_mov_b32 s71, 0x7fffffff""")
    for rep in range(4):
        for (so, acc) in ((52, 70), (53, 71)):
            A.e(f"""
            s_memtime s[72:73]
            s_waitcnt lgkmcnt(0)
            buffer_store_dword v184, v184, s[20:23], s{so} offen sc1
            s_waitcnt vmcnt(0)
            s_memtime s[74:75]
            s_waitcnt lgkmcnt(0)
            s_sub_u32 s74, s74, s72
            s_min_u32 s{acc}, s{acc}, s74""")
    A.e(f"""
    s_cmp_gt_u32 s71, s70
    s_cselect_b32 s65, 3, 2
    v_mov_b32 v185, s65
    buffer_store_dword v185, v184, s[44:47], {DPAR} offen sc1
    s_mov_b64 exec, -1""")
    A.label(wk)
    rts(54)
    start.ln1_stats(A)
    rts(55)
    def m1wait():
        sl_ = L("m1s"); lp_ = L("m1l"); ok_ = L("m1ok")
        A.e(f"s_mov_b32 s65, 0\ns_cmp_eq_u32 s56, 1\ns_cbranch_scc1 {sl_}\ns_lshl_b32 s52, s55, 7\ns_add_u32 s52, s52, {XFLG}\ns_mov_b32 s53, 0")
        A.label(lp_)
        A.e(f"""
        v_mov_b32 v184, 0
        buffer_load_dword v185, v184, s[20:23], s52 offen sc1
        s_waitcnt vmcnt(0)
        v_readfirstlane_b32 s64, v185
        s_mov_b32 s65, 0
        s_cmp_eq_u32 s64, 1
        s_cbranch_scc1 {ok_}
        s_sub_u32 s90, s90, 1
        s_cmp_lt_i32 s90, 0
        s_cbranch_scc1 {ok_}
        s_add_u32 s53, s53, 1
        s_and_b32 s64, s53, 31
        s_cbranch_scc1 {lp_}""")
        tickets(False); slowid()
        A.e(f"s_cmp_eq_u32 s65, 0\ns_cbranch_scc1 {lp_}\ns_branch {ok_}")
        A.label(sl_)
        A.e(f"s_mov_b32 s53, 256\ns_mov_b32 s52, {DM1S}")
        dpoll("s[44:47]", "s52", "v_cmp_ne_u32 vcc, s53, v185", 8)
        A.label(ok_)
    share(m1wait)
    A.e(f"s_cmp_lg_u32 s65, 0\ns_cbranch_scc1 {slow}\ns_and_b32 s56, s56, 1")
    rts(56)
    start.ln1_finish(A)
    rts(57)
    if PROF: A.e(f"s_lshl_b32 s64, s57, 2\ns_add_u32 s64, s64, s50\ns_lshl_b32 s64, s64, 8\ns_add_u32 s64, s64, {241*MB}\nv_lshlrev_b32 v184, 2, v1\nbuffer_store_dword v255, v184, s[20:23], s64 offen")
    A.e("s_waitcnt vmcnt(0)\ns_barrier")
    def fin0():
        n1_ = L("nodln"); np_ = L("nopar")
        A.e(f"s_cmp_ge_u32 s55, 16\ns_cbranch_scc1 {n1_}")
        arrive(184)
        A.e("s_waitcnt vmcnt(0)")
        raiseall(184)
        A.label(n1_)
        A.e(f"s_mov_b32 s61, 0\ns_cmp_eq_u32 s56, 1\ns_cbranch_scc1 {np_}")
        getpar()
        A.label(np_)
    share(fin0)
    nsig = L("nsig")
    A.e(f"s_sub_u32 s55, s57, 128\ns_cmp_lg_u32 s50, 0\ns_cbranch_scc1 {nsig}\ns_lshr_b32 s95, s55, 4\ns_lshl_b32 s95, s95, 6\ns_add_u32 s95, s95, {XTC + CLN*64}")
    A.e(f"s_mov_b64 exec, 1\nv_mov_b32 v184, {CTGT // 16}\nv_mov_b32 v185, 0\nbuffer_atomic_add v184, v185, s[20:23], s95 offen sc1\ns_mov_b64 exec, -1")
    A.label(nsig)
    A.e(f"s_branch {wexit}")

    A.label(loops)
    V16, VHL, VHS, VIDX, VQP, VSEL, VLM, VFL, VST, VH, VOUT = 16, 18, 13, 14, 19, 15, 24, 21, 25, 20, 17
    VG = 26
    GB = 32; KTF = 96; VT = 128; VM = 136; PM = 144; PF = 148; ONE = 152; NEGC = 156; SD = 160; KVM = 172
    ACC = 176; ACB = 184; BACC = 192; OUT = 208; T = 216; HP = 248; HF = 64; ZERO = 100
    SP, SS = "s[24:27]", "s[28:31]"
    sQ2 = 12; IMM = ('E',); STN = ((), ('k0', 'v0'), ('k1', 'v1'), ())
    sSL, sSO, sSN, sSR, sPS, sPR, sQO, sKV, sH, sSPF = 70, 71, 72, 73, 74, 75, 76, 77, 78, 80
    rts(62)
    A.e(f"s_lshl_b32 s64, s50, 14")
    for q in range(4):
        A.e(f"s_add_u32 m0, s64, {q*4096}\ns_add_u32 s65, s64, {WS['h'] + q*4096}")
        for i in range(4): A.e(f"buffer_load_dwordx4 v{V16}, s[20:23], s65 offen offset:{i*1024} lds")
    rts(38)
    A.e(f"""
    s_mov_b64 s[24:25], s[20:21]
    s_mov_b64 s[28:29], s[20:21]
    s_mov_b32 s27, 0x20000
    s_mov_b32 s31, 0x20000
    s_cmp_eq_u32 s56, 0
    s_cselect_b32 s26, s22, 0
    s_cselect_b32 s30, 0, s22
    s_lshl_b32 s64, s58, 14
    s_add_u32 s64, s64, {XLOC}
    v_add_u32 v{VG}, s64, v{V16}
    v_add_u32 v{VG+1}, 4096, v{VG}
    v_add_u32 v{VG+2}, 8192, v{VG}
    v_add_u32 v{VG+3}, 12288, v{VG}
    s_lshl_b32 s65, s59, 9
    s_add_u32 s66, s64, s65
    s_lshl_b32 s64, s58, 7
    s_add_u32 s64, s64, {XLOC + XHI}
    v_and_b32 v{VHL}, 31, v1
    v_lshl_add_u32 v{VHL}, v{VHL}, 2, s64
    s_lshl_b32 s65, s59, 2
    s_add_u32 s64, s64, s65
    v_mov_b32 v{VHS}, s64
    v_mov_b32 v{VIDX}, 0x4444
    v_mov_b32 v22, 0xeeee
    v_cmp_lt_u32 vcc, 7, v3
    v_cndmask_b32 v{VIDX}, v{VIDX}, v22, vcc
    v_and_b32 v22, 1, v3
    v_cmp_eq_u32 vcc, 0, v22
    v_mov_b32 v{VSEL}, 0x03020706
    v_mov_b32 v23, 0x05040100
    v_cndmask_b32 v{VSEL}, v{VSEL}, v23, vcc
    v_lshlrev_b32 v{VQP}, 5, v22
    v_lshl_add_u32 v{VQP}, v4, 6, v{VQP}
    v_lshrrev_b32 v23, 1, v3
    v_lshl_add_u32 v{VQP}, v23, 2, v{VQP}
    s_lshl_b32 s67, s57, 10
    s_add_u32 s67, s67, {XLOC + XQK}
    s_lshl_b32 s64, s50, 2
    s_lshr_b32 s64, 0x1320, s64
    s_and_b32 s64, s64, 3
    s_lshl_b32 s64, s64, 8
    s_add_u32 s64, s64, s67
    v_add_u32 v{VQP}, s64, v{VQP}
    v_add_u32 v{VLM}, {LB}, v{V16}
    v_mov_b32 v{VFL}, {LFL}
    v_mov_b32 v{VST}, 0
    v_mov_b32 v{VH}, v{V16}
    v_and_b32 v22, 1, v4
    v_lshrrev_b32 v23, 1, v4
    v_lshl_add_u32 v23, v23, 4, v3
    v_lshlrev_b32 v23, 4, v23
    v_lshl_add_u32 v23, v22, 10, v23
    s_lshr_b32 s64, s50, 1
    s_lshl_b32 s64, s64, 9
    v_add_u32 v23, s64, v23
    s_lshr_b32 s64, s57, 2             ; head
    s_add_u32 s65, s64, 32
    s_lshl_b32 s65, s65, 14
    s_and_b32 s68, s57, 3
    s_lshl_b32 s68, s68, 11            ; c*2K
    s_add_u32 s65, s65, s68
    s_add_u32 s65, s65, {QB}
    v_add_u32 v{VOUT}, s65, v23
    s_lshl_b32 s69, s57, 11
    s_add_u32 s69, s69, {XLOC + XKT}
    v_add_u32 v2, s69, v23
    s_mov_b32 s81, {f2u(SCL):#x}
    s_mov_b32 s84, {HALF:#x}
    s_mov_b32 s85, {HALF:#x}
    s_mov_b32 s86, 0x33333333
    s_mov_b32 s87, 0x33333333
    s_mov_b32 s62, 0x10000
    s_mov_b32 s79, -2
    ds_write_b32 v{VFL}, v{VST}
    ds_write_b32 v{VFL}, v{VST} offset:4
    ds_write_b32 v{VFL}, v{VST} offset:8
    ds_write_b32 v{VFL}, v{VST} offset:12
    ds_write_b32 v{VFL}, v{VST} offset:16""")
    VKT = 2
    for i in range(4): A.e(f"v_mov_b32 v{ZERO+i}, 0")
    def pub(instr):
        A.e(instr.replace("{S}", SP))
    def pub2(instr):
        if not DBG & 32: A.e(instr.replace("{S}", SS) + " sc1")
    VP = 8
    A.e(f"""
    s_lshr_b32 s64, s59, 3
    s_lshl_b32 s64, s64, 14
    s_and_b32 s65, s59, 7
    s_lshl_b32 s65, s65, 10
    s_add_u32 s64, s64, s65
    s_lshl_b32 s65, s58, 16
    s_add_u32 s64, s64, s65
    s_add_u32 s64, s64, {QB + 112*16384}
    v_add_u32 v{VP}, s64, v{V16}""")

    def book(w, d):
        A.e(f"""
        s_add_u32 s63, s79, {d}
        s_and_b32 s64, s63, 3
        s_lshl_b32 s{sSL}, s64, 20
        s_add_u32 s65, s63, 2
        s_and_b32 s65, s65, 3
        s_lshl_b32 s{sSR}, s65, 20
        s_add_u32 s55, s63, 3
        s_lshl_b32 s{sH}, s55, 16
        s_add_u32 s{sH}, s{sH}, {WS['h']}
        s_cmp_lt_u32 s55, {nsteps}
        s_cselect_b32 s{sH}, s{sH}, {OOB:#x}""")
        for (dd, reg) in ((1, sQO), (2, sQ2)):
            if not any((SPOS[n] in IMM) == (dd == 2) for n in STN[w]): continue
            A.e(f"""
            s_add_u32 s60, s63, {dd}
            s_lshl_b32 s{reg}, s60, 21
            s_lshl_b32 s55, s60, 13
            s_and_b32 s55, s55, 0x2000
            s_xor_b32 s55, s55, s61
            s_add_u32 s{reg}, s{reg}, s55
            s_cmp_lt_u32 s60, {nsteps}
            s_cselect_b32 s{reg}, s{reg}, {OOB:#x}""")
            if DBG & 16: A.e(f"s_mov_b32 s{reg}, s61")
        if w in (0, 3):
            A.e(f"s_add_u32 s{sSO}, s{sSL}, {XO}\ns_add_u32 s60, s63, 1\ns_and_b32 s60, s60, 3\ns_lshl_b32 s{sSN}, s60, 20")
            for i in range(8): A.e(f"v_mov_b32 v{ACB+i}, 0")
        if w == 0:
            A.e(f"s_lshl_b32 s{sKV}, s63, 21\ns_lshl_b32 s55, s63, 13\ns_and_b32 s55, s55, 0x2000\ns_xor_b32 s55, s55, s61\ns_add_u32 s{sKV}, s{sKV}, s55")
            if DBG & 16: A.e(f"s_mov_b32 s{sKV}, s61")
        if w == 3:
            A.e(f"s_lshl_b32 s{sPS}, s63, 21\ns_lshl_b32 s55, s63, 13\ns_and_b32 s55, s55, 0x2000\ns_xor_b32 s55, s55, s61\ns_add_u32 s{sPS}, s{sPS}, s55")
        if w == 1 and SPOS['sig'] is None: A.e(f"s_add_u32 s{sSO}, s{sSR}, {XO}")
        elif w == 1:
            A.e(f"""
            s_sub_u32 s55, s63, {SIGLAG}
            s_lshl_b32 s{sKV}, s55, 4
            s_add_u32 s{sKV}, s{sKV}, {XTC + CR0*64}
            s_and_b32 s55, s55, 0x80000003
            s_or_b32 s55, s55, s57
            s_cmp_eq_u32 s55, 0
            s_cselect_b32 s{sKV}, s{sKV}, {OOB:#x}
            s_add_u32 s{sSO}, s{sSR}, {XO}""")
        if w == 2:
            A.e(f"s_add_u32 s55, s63, {SPFD}\ns_min_u32 s55, s55, {nsteps-1}\ns_lshl_b32 s55, s55, 16\ns_lshl_b32 s60, s59, 11\ns_add_u32 s{sSPF}, s55, s60\ns_add_u32 s{sSPF}, s{sSPF}, {WS['h']}")
        for i in range(8 if w in (1, 2) else 4): A.e(f"v_mov_b32 v{ACC+i}, 0")
    tail = []
    nst = [0]
    def stamp():
        if PROF and PROF != 3: A.e(f"{'s_memrealtime' if PROF == 2 else 's_memtime'} s[{32+2*nst[0]}:{33+2*nst[0]}]"); nst[0] += 1
    def accum():
        if not PROF or PROF == 3: return
        A.e("s_waitcnt lgkmcnt(0)")
        n = nst[0]
        A.e(f"s_sub_u32 s64, s32, s82\ns_add_u32 s92, s92, s64")
        for k in range(1, n): A.e(f"s_sub_u32 s64, s{32+2*k}, s{30+2*k}\ns_add_u32 s{92+k}, s{92+k}, s64")
        A.e(f"s_mov_b32 s82, s{32+2*(n-1)}")
        nst[0] = 0
    def hintpoll(so, off, TH, NO):
        hl = L("hl"); hg = L("hg")
        need = (32 * TH + 99) // 100
        ld = lambda k: f"buffer_load_dword v{HP+k}, v{VHL}, s[20:23], s{so} offen offset:{off} sc1"
        for k in range(NO - 1): A.e(ld(k)); delay(200 // NO - 12)
        A.label(hl)
        for k in range(NO):
            A.e(ld((k + NO - 1) % NO))
            A.e(f"s_waitcnt vmcnt({NO-1})\nv_cmp_eq_u32 vcc, v{VST}, v{HP+k}\ns_bcnt1_i32_b32 s64, vcc_lo\ns_cmp_ge_u32 s64, {need}\ns_cbranch_scc1 {hg}")
        A.e(f"s_sub_u32 s90, s90, 1\ns_cmp_gt_i32 s90, 0\ns_cbranch_scc1 {hl}")
        A.label(hg)
    def waitflag(off):
        wf = L("wf")
        A.label(wf)
        A.e(f"ds_read_b32 v23, v{VFL} offset:{off}\ns_sub_u32 s90, s90, 1\ns_waitcnt lgkmcnt(0)\nv_cmp_ne_u32 vcc, v23, v{VST}\ns_cmp_lt_i32 s90, 0\ns_cselect_b64 vcc, 0, vcc\ns_cbranch_vccnz {wf}")
    def gather(n, c0, work):
        base = GB; cg = CGB
        def ld(j): return f"buffer_load_dwordx4 {vr(base+4*j,4)}, v{VG + ((j+c0)>>2)}, s[20:23], s{sSO} offen offset:{((j+c0)&3)*1024} sc1"
        hintpoll(sSL, 512, THO, NOO)
        stamp()
        tb = base + 4 * n
        def ld2(j): return ld(j).replace(vr(base+4*j,4), vr(tb+4*j,4))
        m0_ = min(n, UPB)
        for j in range(m0_): A.e(ld(j))
        A.e("s_mov_b32 s68, 0")
        ng = n // cg
        def mins(b):
            regs = list(range(b, b + 4 * cg)); o = [f"v_min3_u32 v22, v{regs[0]}, v{regs[1]}, v{regs[2]}"]; regs = regs[3:]
            while len(regs) >= 2: o.append(f"v_min3_u32 v22, v22, v{regs[0]}, v{regs[1]}"); regs = regs[2:]
            if regs: o.append(f"v_min_u32 v22, v22, v{regs[0]}")
            return o
        issued = m0_; miss = []
        for g in range(ng):
            b = base + 4 * g * cg
            W = []
            last = g * cg + cg - 1
            A.e(f"s_waitcnt vmcnt({issued-1-last})")
            for j in range(g * cg, last + 1): W += work(j)
            F = mins(b) + [f"v_cmp_eq_u32 s[{52+2*(g&1)}:{53+2*(g&1)}], 0, v22"]
            if g > 0:
                ms = L("ms"); bk = L("bk"); miss.append((ms, bk, g - 1))
                F = F[:1] + [f"s_cmp_lg_u64 s[{52+2*((g-1)&1)}:{53+2*((g-1)&1)}], 0", f"s_cbranch_scc1 {ms}\n{bk}:"] + F[1:]
            for _ in range(cg):
                if issued < n: F = [ld(issued)] + F; issued += 1
            A.interleave(W, F, 0, len(W))
        assert issued == n and m0_ == n
        fin = L("fin"); rl = L("rl")
        ms = L("ms"); bk = L("bk"); miss.append((ms, bk, ng - 1)); rl2 = L("rl2")
        A.e(f"s_cmp_lg_u64 s[{52+2*((ng-1)&1)}:{53+2*((ng-1)&1)}], 0\ns_cbranch_scc1 {ms}\n{bk}:\ns_cmp_lg_u32 s68, 0\ns_cbranch_scc1 {rl2}")
        A.label(fin)
        stamp()
        def deferred():
            for (ms, bk, g) in miss:
                A.label(ms)
                A.e("s_waitcnt vmcnt(0)")
                for j in range(g * cg, g * cg + cg): A.e(ld2(j))
                A.e(f"s_bitset1_b32 s68, {g}\ns_branch {bk}")
            def scan(body):
                for j in range(ng):
                    sk = L("sk")
                    A.e(f"s_bitcmp1_b32 s68, {j}\ns_cbranch_scc0 {sk}")
                    body(j)
                    A.label(sk)
            A.label(rl)
            scan(lambda g: [A.e(ld2(j)) for j in range(g * cg, g * cg + cg)])
            A.label(rl2)
            A.e(f"s_sub_u32 s90, s90, 1\ns_cmp_lt_i32 s90, 0\ns_cbranch_scc1 {fin}\ns_waitcnt vmcnt(0)")
            def proc(g):
                b = base + 4 * g * cg; t = tb + 4 * g * cg
                nb = L("nb")
                for x in mins(t): A.e(x)
                A.e(f"v_cmp_eq_u32 vcc, 0, v22")
                for r in range(4 * cg): A.e(f"v_xor_b32 v{t+r}, v{b+r}, v{t+r}")
                A.e(f"s_cbranch_vccnz {nb}\ns_bitset0_b32 s68, {g}")
                for j in range(g * cg, g * cg + cg):
                    for x in work(j): A.e(x.replace(vr(base+4*j,4), vr(tb+4*j,4)))
                A.label(nb)
            scan(proc)
            A.e(f"s_cmp_lg_u32 s68, 0\ns_cbranch_scc1 {rl}\ns_nop 2\ns_branch {fin}")
        tail.append(deferred)
    QP = "quad_perm:[1,0,3,2] row_mask:0xf bank_mask:0xf"
    QP2 = "quad_perm:[2,3,0,1] row_mask:0xf bank_mask:0xf"
    DPP8 = "row_ror:8 row_mask:0xf bank_mask:0xf"
    cnts = {(1, 1): N1, (1, 2): N1, (2, 1): N2, (2, 2): N2, ('A', 3): NA, ('S', 3): NB3, ('B', 0): NC}
    assert sum(cnts.values()) == 64, sum(cnts.values())
    start_ = {}; p = 0
    for k_, n_ in cnts.items(): start_[k_] = p; p += n_
    def dmas(win, w):
        n = cnts.get((win, w), 0); p = start_.get((win, w), 0); o = []
        for i in range(n):
            if i % 4 == 0: o.append([f"s_add_u32 m0, s62, {(p+i)*1024}", f"s_add_u32 s69, s{sH}, {(p+i)*1024}"])
            if not DBG & 4: o.append([f"buffer_load_dwordx4 v{V16}, s[20:23], s69 offen offset:{(i%4)*1024} lds"])
        return o
    def dmaburst(win, w):
        for x in dmas(win, w):
            for y in x: A.e(y)
            if "lds" in x[0]: delay(GA)
    def slows(w, pos):
        so = []
        for k_, n in enumerate(STN[w]):
            p_ = SPOS[n]; imm = p_ in IMM
            if p_ == pos or (pos == 'def' and not imm) or (pos == 'imm' and p_ == 'P'):
                if not ((DBG & 8) and pos not in ('def', 'imm')): so.append(f"buffer_store_dwordx4 {vr(OUT+4*k_,4)}, v{12 if k_ else VOUT}, s[20:23], s{sQ2 if imm else sQO} offen sc1")
        if w == 1 and worker and SPOS['sig'] == pos: so.append(f"s_mov_b64 exec, 1\nbuffer_store_dword v10, v11, s[20:23], s{sKV} offen sc1\ns_mov_b64 exec, -1")
        return so
    def combine2(a):
        return f"""
        v_permlane32_swap_b32 v{a}, v{a+2}
        v_permlane32_swap_b32 v{a+1}, v{a+3}
        v_add_f32 v{a}, v{a}, v{a+2}
        v_add_f32 v{a+1}, v{a+1}, v{a+3}
        v_cvt_pk_bf16_f32 v{T}, v{a}, v{a+1}"""
    def phaseA(w):
        A.e("s_barrier")
        stamp()
        hintpoll(sSL, 0, THM, NOM)
        stamp()
        own = [4 * w + j for j in range(4)]
        ld = lambda c: f"buffer_load_dwordx4 {vr(GB+4*c,4)}, v{VG + (c>>2)}, s[20:23], s{sSL} offen offset:{(c&3)*1024} sc1"
        sm = lambda c, t=0: f"v_smfmac_f32_16x16x64_bf16 {vr(ACC+t*4,4)}, {vr(GB+c*4,4)}, {ar(t*128+c*8,8)}, v{VIDX}"
        rt = L("art"); bk = L("abk")
        def body():
            for c in own: A.e(ld(c))
            for j, c in enumerate(own):
                b = GB + 4 * c
                A.e(f"s_waitcnt vmcnt({3-j})\nds_write_b128 v{VLM}, {vr(b,4)} offset:{LM+c*1024}")
                A.e(f"v_min3_u32 v22, v{b}, v{b+1}, v{b+2}\nv_min_u32 v22, v22, v{b+3}" if j == 0 else f"v_min3_u32 v22, v22, v{b}, v{b+1}\nv_min3_u32 v22, v22, v{b+2}, v{b+3}")
            A.e(f"v_cmp_eq_u32 vcc, 0, v22\ns_cbranch_vccnz {rt}")
        body()
        A.label(bk)
        def retry():
            A.label(rt)
            A.e(f"s_sub_u32 s90, s90, 1\ns_cmp_lt_i32 s90, 0\ns_cbranch_scc1 {bk}")
            body()
            A.e(f"s_branch {bk}")
        tail.append(retry)
        A.e(sm(own[0]))
        A.e("s_waitcnt lgkmcnt(0)\ns_barrier")
        stamp()
        oth = [c % 16 for c in range(4 * w + 4, 4 * w + 16)]
        R_ = [f"ds_read_b128 {vr(GB+4*c,4)}, v{VLM} offset:{LM+c*1024}" for c in oth]
        for x in R_[:4]: A.e(x)
        for x in slows(w, 'A'): A.e(x)
        A.interleave([sm(c) for c in own[1:]], R_[4:10], 0, 3)
        k = 10
        for i, c in enumerate(oth):
            A.e(f"s_waitcnt lgkmcnt({min(k, 12) - 1 - i})")
            A.e(sm(c))
            if k < 12: A.e(R_[k]); k += 1
        if w in (1, 2): A.e(sm(0, 1)); A.e(sm(1, 1))
        A.e(combine2(ACC))
        A.e(f"v_mov_b32_dpp v{T+1}, v{T} {QP}\nv_perm_b32 v{T}, v{T+1}, v{T}, v{VSEL}\nv_max_u32 v{T}, 1, v{T}")
        st = f"buffer_store_dword v{T}, v{VQP}, {{S}}, s{sSL} offen"
        pub(st); pub2(st)
        stamp()
        if w in (1, 2):
            for c in range(2, 16): A.e(sm(c, 1))
            A.e(combine2(ACC + 4))
            A.e(f"v_max_u32 v{T}, 1, v{T}\nds_write_b32 v31, v{T}\nds_write_b32 v{VFL}, v{VST} offset:{4*(w-1)}")
    def bg(w, pro=False):
        ex = L("bgx")
        if not pro: A.e(f"s_cmp_ge_i32 s79, {nsteps-2}\ns_cbranch_scc1 {ex}")
        skipi = len(A.lines) - 1
        nm = 2; NRD = NRD2
        rd = lambda i: f"ds_read_b128 {vr(HF+(i%NRD)*4,4)}, v{VH} offset:{i*1024}" if not (DBG & 1 and i >= NRD) else "s_nop 0"
        pos = {}
        d1 = dmas(1, w); d2 = dmas(2, w)
        if pro: d1 = d2 = []
        sc = lambda p: p if nm == 2 else p - 16
        for i, x in enumerate(d1): pos.setdefault(max(0, sc(P1[0]) + i * (P1[1] - P1[0]) // len(d1)), []).extend(x)
        for i, x in enumerate(d2): pos.setdefault(P2[0] + i * (P2[1] - P2[0]) // len(d2), []).extend(x)
        ints = []
        for p_ in range(128):
            x = slows(w, p_)
            if x: pos.setdefault(p_, []).extend(x); ints += x
        if ints:
            sk = L("bgsk")
            def skipped():
                A.label(sk)
                for x in ints: A.e(x)
                A.e(f"s_branch {ex}")
            tail.append(skipped)
            A.lines[skipi] = f"    s_cbranch_scc1 {sk}"
        for i in range(NRD - 1): A.e(rd(i))
        for i in range(64):
            if nm == 2 or i % 2 == 0: A.e(f"s_waitcnt lgkmcnt({max(0, min(NRD-2, 63-i) - (2-nm))})")
            for t in range(nm):
                d = vr(BACC + (t * 2 + (i & 1)) * 4, 4)
                wr = ar(t * 128 + (i >> 1) * 4, 4); hr = vr(HF + (i % NRD) * 4, 4)
                A.e(f"v_mfma_f32_16x16x32_bf16 {d}, {wr if t == 0 else hr}, {hr if t == 0 else wr}, {d if i > 1 else 0}" if not (DBG & 2 and i >= 4) else "s_nop 2")
                if t == 0 and i + NRD - 1 < 64: A.e(rd(i + NRD - 1))
                for x in pos.pop(nm * i + t, []): A.e(x)
                if PC: A.e(f"s_nop {PC-1}")
        for k in sorted(pos):
            for x in pos[k]: A.e(x)
            delay(24)
        A.e(f"v_xor_b32 v{VH}, 0x10000, v{VH}\ns_xor_b32 s62, s62, 0x10000")
        if nm == 2: A.e(f"s_lshr_b32 s64, s{sSR}, 9\nv_add_u32 v22, s64, v{VLM}")
        for i in range(4 * nm): A.e(f"v_cvt_pk_bf16_f32 v{OUT+i}, v{BACC+2*i}, v{BACC+2*i+1}")
        A.e(f"v_permlane16_swap_b32 v{OUT}, v{OUT+2}\nv_permlane16_swap_b32 v{OUT+1}, v{OUT+3}")
        st = f"buffer_store_dwordx4 {vr(OUT,4)}, v{VKT}, {{S}}, s{sSR} offen"
        pub(st); pub2(st)
        if nm == 2: A.e(f"ds_write_b128 v22, {vr(OUT+4,4)} offset:{LVT+(w-1)*1024}")
        for x in slows(w, 'E'): A.e(x)
        A.label(ex)
    smb = lambda j: [f"v_smfmac_f32_16x16x64_bf16 {vr(ACB+t*4,4)}, {vr(GB+j*4,4)}, {ar(128+(j*2+t)*8,8)}, v{VIDX}" for t in range(2)]
    def combineB():
        a_ = ACB
        for r in range(4): A.e(f"v_permlane32_swap_b32 v{a_+r}, v{a_+4+r}")
        A.e(f"v_pk_add_f32 {vr(a_,2)}, {vr(a_,2)}, {vr(a_+4,2)}\nv_pk_add_f32 {vr(a_+2,2)}, {vr(a_+2,2)}, {vr(a_+6,2)}")
    end = L("end")
    lab = [L("w0"), L("w1"), L("w2"), L("w3")]
    A.e(f"s_cmp_eq_u32 s50, 3\ns_cbranch_scc1 {lab[3]}\ns_cmp_eq_u32 s50, 1\ns_cbranch_scc1 {lab[1]}\ns_cmp_eq_u32 s50, 2\ns_cbranch_scc1 {lab[2]}")
    def gom(w, lp, pre_loop=None):
        A.e(f"v_mov_b32 v{VST}, 1\ns_waitcnt vmcnt({len(slows(w, 'E'))}) lgkmcnt(0)\ns_barrier")
        if pre_loop: pre_loop()
        rts(61)
        if PROF:
            A.e(f"{'s_memrealtime' if PROF == 2 else 's_memtime'} s[82:83]\ns_waitcnt lgkmcnt(0)")
            for k in range(10): A.e(f"s_mov_b32 s{92+k}, 0")
        A.e(f"s_branch {lp}")
    def prologue(w, lp):
        book(w, 0)
        rts(33)
        A.e(f"s_waitcnt vmcnt(0) lgkmcnt(0)")
        l1 = L("pn1"); l2 = L("pn2")
        A.label(l1)
        A.e("s_barrier")
        rts(34)
        bg(w, True)
        book(w, 1)
        A.e(f"s_add_u32 s79, s79, 1\ns_cmp_eq_u32 s79, 0\ns_cbranch_scc1 {l2}")
        for x in slows(w, 'def'): A.e(x)
        rts(35)
        A.e(f"s_waitcnt lgkmcnt(0)\ns_branch {l1}")
        A.label(l2)
        rts(37)
        gom(w, lp)
    def prologue03(w, lp, pre_loop=None):
        def hl(sg):
            for q in range(8):
                o_ = (w // 3) * 32768 + q * 4096
                A.e(f"s_mov_b32 m0, {o_ + (sg & 1) * 65536}\ns_mov_b32 s65, {WS['h'] + sg*65536 + o_}")
                for i in range(4): A.e(f"buffer_load_dwordx4 v{V16}, s[20:23], s65 offen offset:{i*1024} lds")
        A.e("s_waitcnt vmcnt(0) lgkmcnt(0)\ns_barrier")
        hl(1)
        for st_ in range(2 + (w // 3) * 3, 5 + (w // 3) * 3):
            A.e(f"s_xor_b32 s64, s61, {(st_ << 21) + ((st_ & 1) << 13)}")
            for k_ in range(2): A.e(f"buffer_store_dwordx4 {vr(ZERO,4)}, v{VZP+k_}, s[20:23], s64 offen sc1")
        A.e("s_waitcnt vmcnt(6)\ns_barrier")
        hl(2)
        A.e("s_mov_b32 s79, 0")
        book(w, 0)
        gom(w, lp, pre_loop)
    def flush():
        for f in tail: f()
        tail.clear()
    A.label(lab[0])
    VX = 8; VK = (2, 5, 6, 7); VOP = 30; VMR = 31; VKR = 12; VKO = 3
    A.e(f"""
    v_and_b32 v22, 7, v3               ; m
    v_lshrrev_b32 v23, 2, v22
    v_and_b32 v5, 2, v22
    v_or_b32 v23, v23, v5
    v_and_b32 v5, 1, v22
    v_lshl_add_u32 v23, v23, 1, v5     ; pos
    v_lshlrev_b32 v23, 5, v23
    v_lshrrev_b32 v5, 3, v3
    v_lshl_add_u32 v23, v5, 9, v23
    v_lshrrev_b32 v5, 1, v4
    v_lshl_add_u32 v23, v5, 8, v23
    v_and_b32 v5, 1, v4
    v_lshl_add_u32 v23, v5, 4, v23
    v_add_u32 v{VX}, s67, v23
    v_xor_b32 v{VX+1}, 1024, v{VX}
    v_xor_b32 v{VX+2}, 2048, v{VX}
    v_xor_b32 v{VX+3}, 3072, v{VX}
    v_lshlrev_b32 v{VMR}, 4, v3
    v_lshl_add_u32 v{VMR}, v5, 3, v{VMR}
    v_add_u32 v{VMR}, {LB + LVM}, v{VMR}
    v_lshl_add_u32 v23, v4, 3, v22
    v_lshlrev_b32 v23, 4, v23
    v_add_u32 v{VKR}, {LB + LVM}, v23
    v_add_u32 v{VOP}, s66, v23
    v_cmp_gt_u32 vcc, 8, v3
    v_cmp_lt_u32 s[52:53], 1, v4
    s_and_b64 vcc, vcc, s[52:53]
    v_mov_b32 v22, {f2u(-1e30):#x}
    v_cndmask_b32 v{NEGC}, v22, 0, vcc
    v_mov_b32 v{NEGC+1}, v{NEGC}
    v_mov_b32 v{NEGC+2}, v{NEGC}
    v_mov_b32 v{NEGC+3}, v{NEGC}
    v_add_u32 v{VK[0]}, s69, v{V16}
    v_xor_b32 v{VK[1]}, 2048, v{VK[0]}
    v_xor_b32 v{VK[2]}, 4096, v{VK[0]}
    v_xor_b32 v{VK[3]}, 6144, v{VK[0]}
    s_lshr_b32 s64, s57, 3
    s_add_u32 s64, s64, 96
    s_lshl_b32 s64, s64, 14
    s_and_b32 s65, s57, 7
    s_lshl_b32 s65, s65, 10
    s_add_u32 s64, s64, s65
    s_add_u32 s64, s64, {QB}
    v_add_u32 v{VKO}, s64, v{V16}""")
    for i in range(12): A.e(f"v_mov_b32 v{VM+i}, 0")
    for i in range(4): A.e(f"v_mov_b32 v{ONE+i}, 0x3f803f80")
    f0 = L("first"); A.e(f"s_branch {f0}")
    lp = L("loop"); pn = L("pn")
    A.label(lp)
    phaseA(0)
    ktl = lambda so: [f"buffer_load_dwordx4 {vr(KTF+(p*2+i)*4,4)}, v{VK[p]}, s[20:23], s{so} offen offset:{i*1024} sc1" for p in range(4) for i in range(2)]
    k0 = L("kt0"); k0b = L("kt0b")
    A.e(f"s_lshr_b32 s64, s{sSL}, 9\nv_add_u32 v22, s64, v{VLM}\ns_cmp_eq_u32 s79, 0\nds_read_b128 {vr(VT,4)}, v22 offset:{LVT}\nds_read_b128 {vr(VT+4,4)}, v22 offset:{LVT+1024}\ns_cbranch_scc1 {k0}")
    A.label(k0b)
    def kt0():
        A.label(k0)
        for x in ktl(sSL): A.e(x)
        A.e(f"s_branch {k0b}")
    tail.append(kt0)
    delay(D2 - 24)
    def ldq(k): return [f"buffer_load_dwordx4 {vr(GB+k*16+p*4,4)}, v{VX+p}, s[20:23], s{sSL} offen sc1" for p in range(4)]
    sp = L("scp"); sok = L("scok")
    for k in range(NF2 - 1):
        for x in ldq(k): A.e(x)
        delay(200 // NF2 - 60)
    A.label(sp)
    for k in range(NF2):
        for x in ldq((k + NF2 - 1) % NF2): A.e(x)
        b = GB + k * 16
        M = []
        for p in range(4):
            M.append(f"v_mfma_f32_16x16x32_bf16 {vr(SD+8,4)}, {vr(b+p*4,4)}, {vr(b+p*4,4)}, {vr(SD+8,4) if p else vr(NEGC,4)}")
            for i in (1, 0): M.append(f"v_mfma_f32_16x16x32_bf16 {vr(SD+i*4,4)}, {vr(KTF+(p*2+i)*4,4)}, {vr(b+p*4,4)}, {vr(SD+i*4,4) if p else 0}")
        C = [f"v_min3_u32 v22, v{b}, v{b+1}, v{b+2}"] + [f"v_min3_u32 v22, v22, v{b+i}, v{b+i+1}" for i in range(3, 15, 2)] + [f"v_min_u32 v22, v22, v{b+15}", f"v_cmp_eq_u32 vcc, 0, v22"]
        A.e(f"s_waitcnt vmcnt({4*(NF2-1)})")
        nx = L("nx")
        A.interleave(M[:5], C, 0, 5)
        A.e(f"s_cbranch_vccnz {nx}")
        A.interleave(M[5:], [f"v_mov_b32 v{KVM+i}, v{b+i}" for i in range(4)], 0, 4)
        A.e(f"s_nop 1\ns_branch {sok}")
        A.label(nx)
    A.e(f"s_sub_u32 s90, s90, 1\ns_cmp_gt_i32 s90, 0\ns_cbranch_scc1 {sp}\ns_nop 7")
    A.label(sok)
    last0 = L("last0")
    vmr = f"ds_read_b64 {vr(T+4,2)}, v{VFL}\nds_read_b64 {vr(VM,2)}, v{VMR}\nds_read_b64 {vr(VM+4,2)}, v{VMR} offset:256"
    A.e(vmr)
    A.e(f"s_cmp_eq_u32 s79, {nsteps-1}\ns_cbranch_scc1 {last0}")
    stamp()
    if NB3: A.e(f"ds_write_b32 v{VFL}, v{VST} offset:16")
    mx = T; OD = T + 8; SM = T + 16
    A.e(f"v_max3_f32 v{mx}, v{SD+8}, v{SD+9}, v{SD+10}")
    for i in range(4): A.e(f"v_mov_b32_dpp v{SD+i}, v{SD+4+i} row_ror:8 row_mask:0xf bank_mask:0xc")
    A.e(f"""
    v_max3_f32 v{mx+1}, v{SD+11}, v{SD}, v{SD+1}
    v_max3_f32 v{mx}, v{mx}, v{SD+2}, v{SD+3}
    v_max_f32 v{mx}, v{mx}, v{mx+1}
    v_max_f32_dpp v{mx}, v{mx}, v{mx} {DPP8}
    v_mov_b32 v{mx+1}, v{mx}
    v_permlane16_swap_b32 v{mx+1}, v{mx}
    v_max_f32 v{mx}, v{mx}, v{mx+1}
    v_mov_b32 v{mx+1}, v{mx}
    v_permlane32_swap_b32 v{mx+1}, v{mx}
    v_max_f32 v{mx}, v{mx}, v{mx+1}
    v_mul_f32 v{mx}, s81, v{mx}""")
    vals = [SD, SD + 1, SD + 2, SD + 3, SD + 8, SD + 9, SD + 10, SD + 11]
    for v in vals: A.e(f"v_fma_f32 v{v}, v{v}, s81, -v{mx}")
    for v in vals: A.e(f"v_exp_f32 v{v}, v{v}")
    A.e(f"""
    v_cvt_pk_bf16_f32 v{PF}, v{SD}, v{SD+1}
    v_cvt_pk_bf16_f32 v{PF+1}, v{SD+2}, v{SD+3}
    v_cvt_pk_bf16_f32 v{PM}, v{SD+8}, v{SD+9}
    v_mov_b32_dpp v{PF+2}, v{PF} {DPP8}
    v_mov_b32_dpp v{PF+3}, v{PF+1} {DPP8}
    v_cvt_pk_bf16_f32 v{PM+1}, v{SD+10}, v{SD+11}
    s_waitcnt lgkmcnt(0)
    v_min_u32 v{T+4}, v{T+4}, v{T+5}
    v_mfma_f32_16x16x32_bf16 {vr(SM,4)}, {vr(ONE,4)}, {vr(PF,4)}, 0
    v_cmp_ne_u32 vcc, v{T+4}, v{VST}
    v_mfma_f32_16x16x32_bf16 {vr(SM,4)}, {vr(ONE,4)}, {vr(PM,4)}, {vr(SM,4)}""")
    for tt in range(2): A.e(f"v_mfma_f32_16x16x32_bf16 {vr(OD+tt*4,4)}, {vr(VT+tt*4,4)}, {vr(PF,4)}, 0")
    vw = L("vw"); vb = L("vb")
    A.e(f"s_cbranch_vccnz {vw}")
    A.label(vb)
    for tt in range(2): A.e(f"v_mfma_f32_16x16x32_bf16 {vr(OD+tt*4,4)}, {vr(VM+tt*4,4)}, {vr(PM,4)}, {vr(OD+tt*4,4)}")
    def vwait():
        A.label(vw)
        waitflag(0); waitflag(4)
        A.e(vmr); A.e(f"s_waitcnt lgkmcnt(0)\ns_branch {vb}")
    tail.append(vwait)
    A.e(f"s_mov_b64 exec, s[84:85]\nv_rcp_f32 v{SM+4}, v{SM}")
    for i in range(4): A.e(f"v_pk_mul_f32 {vr(OD+2*i,2)}, {vr(OD+2*i,2)}, {vr(SM+4,2)} op_sel_hi:[1,0]")
    for i in range(4): A.e(f"v_cvt_pk_bf16_f32 v{T+i}, v{OD+2*i}, v{OD+1+2*i}")
    for i in range(4): A.e(f"v_max_u32 v{T+i}, 1, v{T+i}")
    st = f"buffer_store_dwordx4 {vr(T,4)}, v{VOP}, {{S}}, s{sSO} offen"; sh = f"buffer_store_dword v{VST}, v{VHS}, {{S}}, s{sSL} offen offset:512"
    pub(st); pub2(st); A.e("s_mov_b64 exec, 1"); pub(sh); pub2(sh)
    A.e(f"s_mov_b64 exec, -1\nds_write_b32 v{VFL}, v{VST} offset:8")
    stamp()
    gather(8, 0, smb)
    combineB()
    A.e(f"ds_write_b128 v{VLM}, {vr(ACB,4)} offset:{LBP}\nds_write_b32 v{VFL}, v{VST} offset:12")
    def kvmstore():
        A.e(f"s_mov_b64 exec, s[84:85]\nds_read_b128 {vr(KVM,4)}, v{VKR}\ns_mov_b64 exec, -1")
    kvmstore()
    for x in ktl(sSN): A.e(x)
    A.e(f"s_waitcnt lgkmcnt(0)\nbuffer_store_dwordx4 {vr(KVM,4)}, v{VKO}, s[20:23], s{sKV} offen sc1")
    dmaburst('B', 0)
    A.e("s_xor_b32 s62, s62, 0x10000")
    stamp()
    book(0, 1)
    accum()
    A.e(f"s_add_u32 s79, s79, 1\nv_add_u32 v{VST}, 1, v{VST}\ns_waitcnt vmcnt(0) lgkmcnt(0)\ns_branch {lp}")
    A.label(last0)
    waitflag(0); waitflag(4)
    kvmstore()
    A.e(f"s_waitcnt lgkmcnt(0)\nbuffer_store_dwordx4 {vr(KVM,4)}, v{VKO}, s[20:23], s{sKV} offen sc1\ns_branch {end}")
    flush()
    A.label(f0); prologue03(0, lp)
    for w in (1, 2):
        A.label(lab[w])
        A.e(f"""
        s_lshr_b32 s64, s57, 2
        s_add_u32 s64, s64, 64
        s_lshl_b32 s64, s64, 14
        s_add_u32 s64, s64, s68
        s_add_u32 s64, s64, {QB + (w-1)*1024}
        v_add_u32 v12, s64, v{V16}
        v_and_b32 v22, 1, v4
        v_lshrrev_b32 v23, 1, v4
        v_lshl_add_u32 v22, v22, 1, v23
        v_lshlrev_b32 v22, 2, v22
        v_lshl_add_u32 v22, v3, 4, v22
        v_add_u32 v31, {LB + LVM + (w-1)*256}, v22""")
        if w == 1: A.e(f"v_add_u32 v8, s66, v{V16}\nv_add_u32 v9, s67, v{V16}\nv_mov_b32 v10, {CTGT}\nv_mov_b32 v11, 0")
        f0 = L("first"); A.e(f"s_branch {f0}")
        lp = L("loop"); pn = L("pn")
        A.label(lp)
        phaseA(w)
        A.e(f"s_cmp_eq_u32 s79, {nsteps-1}\ns_cbranch_scc1 {end}")
        stamp()
        bg(w)
        if w == 1:
            for x in slows(1, 'X'): A.e(x)
            for f in (pub, pub2): f(f"buffer_store_dwordx4 {vr(ZERO,4)}, v9, {{S}}, s{sSR} offen")
            A.e("s_mov_b32 exec_hi, 0")
            for f in (pub, pub2):
                f(f"buffer_store_dwordx4 {vr(ZERO,4)}, v8, {{S}}, s{sSR} offen"); f(f"buffer_store_dwordx4 {vr(ZERO,4)}, v8, {{S}}, s{sSO} offen")
            A.e("s_mov_b64 exec, -1")
        A.e("s_waitcnt lgkmcnt(0)")
        stamp()
        accum()
        if w == 2:
            ck = L("late"); ckb = L("lateb")
            A.e(f"s_andn2_b32 s64, s79, 4\ns_cmp_eq_u32 s64, 2\ns_cbranch_scc1 {ck}")
            A.label(ckb)
            def late():
                A.label(ck)
                A.e(f"v_lshlrev_b32 v184, 2, v{V16}\ns_mov_b32 s52, {XTC + CLN*64}\ns_mov_b32 s53, {CTGT}")
                A.e("s_add_u32 s64, s79, 0xfd\ns_and_b32 exec_lo, s64, 0x1fc\ns_cmp_eq_u32 s79, 2\ns_cselect_b32 exec_lo, s64, exec_lo\ns_mov_b32 exec_hi, 0")
                dpoll("s[20:23]", "s52", "v_cmp_ne_u32 vcc, s53, v185", 2, voff=1)
                A.e("s_mov_b64 exec, -1")
                A.e(f"s_branch {ckb}")
            tail.append(late)
        if w == 2 and not DBG & 64:
            for r in range(32): A.e(f"s_buffer_load_dword s48, s[20:23], s{sSPF} offset:{r*64}")
        book(w, 1)
        A.e(f"s_add_u32 s79, s79, 1\nv_add_u32 v{VST}, 1, v{VST}\ns_waitcnt vmcnt(0)\ns_branch {lp}")
        flush()
        A.label(f0); prologue(w, lp)
    A.label(lab[3])
    VMP = 30
    A.e(f"""
    v_xor_b32 v{VP+1}, 0x10000, v{VP}
    v_xor_b32 v{VP+2}, 0x20000, v{VP}
    v_xor_b32 v{VP+3}, 0x30000, v{VP}
    v_and_b32 v22, 2, v4
    v_lshrrev_b32 v23, 3, v3
    v_add_u32 v22, v22, v23            ; 2tt + (q>>1)
    v_lshlrev_b32 v22, 3, v22
    v_and_b32 v23, 1, v4
    v_lshl_add_u32 v22, v23, 2, v22
    v_and_b32 v23, 3, v3
    v_add_u32 v22, v22, v23
    v_lshlrev_b32 v22, 4, v22
    v_bfe_u32 v23, v3, 2, 1
    v_lshl_add_u32 v22, v23, 3, v22
    v_add_u32 v{VMP}, s66, v22
    v_and_b32 v22, 7, v3
    v_lshl_add_u32 v12, v4, 3, v22
    v_lshlrev_b32 v12, 4, v12
    v_add_u32 v12, s66, v12""")
    f0 = L("first"); A.e(f"s_branch {f0}")
    lp = L("loop"); pn = L("pn")
    A.label(lp)
    phaseA(3)
    A.e(f"s_cmp_eq_u32 s79, {nsteps-1}\ns_cbranch_scc1 {end}")
    if NA: delay(DA); dmaburst('A', 3)
    if NB3: waitflag(16); dmaburst('S', 3)
    A.e("s_xor_b32 s62, s62, 0x10000")
    stamp()
    waitflag(8)
    gather(8, 8, smb)
    combineB()
    wf = L("wf")
    A.label(wf)
    A.e(f"ds_read_b32 v23, v{VFL} offset:12\nds_read_b128 {vr(T,4)}, v{VLM} offset:{LBP}\ns_sub_u32 s90, s90, 1\ns_waitcnt lgkmcnt(0)\nv_cmp_ne_u32 vcc, v23, v{VST}\ns_cmp_lt_i32 s90, 0\ns_cselect_b64 vcc, 0, vcc")
    A.e(f"v_pk_add_f32 {vr(T,2)}, {vr(T,2)}, {vr(ACB,2)}\nv_pk_add_f32 {vr(T+2,2)}, {vr(T+2,2)}, {vr(ACB+2,2)}\ns_cbranch_vccnz {wf}")
    for i in range(4): A.e(f"v_max_u32 v{T+i}, 1, v{T+i}")
    A.e(f"buffer_store_dwordx4 {vr(T,4)}, v{VP}, s[20:23], s{sPS} offen sc1")
    stamp()
    A.e(f"s_mov_b32 s88, s{sPS}\ns_mov_b32 s89, s{sSN}\nv_add_u32 v{VST}, 1, v{VST}")
    book(3, 1)
    delay(max(0, DP - 170))
    pp_ = L("pp"); pok = L("pok")
    A.label(pp_)
    for p in range(3): A.e(f"buffer_load_dwordx4 {vr(GB+p*4,4)}, v{VP+1+p}, s[20:23], s88 offen sc1")
    b = GB
    A.e(f"s_waitcnt vmcnt(2)\nv_min3_u32 v22, v{b}, v{b+1}, v{b+2}\nv_pk_add_f32 {vr(T+4,2)}, {vr(T,2)}, {vr(b,2)}\nv_pk_add_f32 {vr(T+6,2)}, {vr(T+2,2)}, {vr(b+2,2)}\ns_waitcnt vmcnt(0)")
    for i in range(3, 11, 2): A.e(f"v_min3_u32 v22, v22, v{b+i}, v{b+i+1}")
    A.e(f"""
    v_min_u32 v22, v22, v{b+11}
    v_pk_add_f32 {vr(b+4,2)}, {vr(b+4,2)}, {vr(b+8,2)}
    v_cmp_eq_u32 vcc, 0, v22
    v_pk_add_f32 {vr(b+6,2)}, {vr(b+6,2)}, {vr(b+10,2)}
    s_cbranch_vccz {pok}
    s_sub_u32 s90, s90, 1
    s_cmp_gt_i32 s90, 0
    s_cbranch_scc1 {pp_}""")
    A.label(pok)
    stamp()
    A.e(f"""
    v_pk_add_f32 {vr(T+4,2)}, {vr(T+4,2)}, {vr(b+4,2)}
    v_pk_add_f32 {vr(T+6,2)}, {vr(T+6,2)}, {vr(b+6,2)}
    s_mov_b64 vcc, s[86:87]
    v_cvt_pk_bf16_f32 v{T}, v{T+4}, v{T+5}
    v_cvt_pk_bf16_f32 v{T+1}, v{T+6}, v{T+7}
    v_mov_b32_dpp v{T+2}, v{T} {QP}
    v_mov_b32_dpp v{T+3}, v{T+1} {QP}
    v_perm_b32 v{T}, v{T+2}, v{T}, v{VSEL}
    v_perm_b32 v{T+1}, v{T+3}, v{T+1}, v{VSEL}
    v_cndmask_b32_dpp v{T+4}, v{T+1}, v{T}, vcc {QP2}
    s_not_b64 vcc, vcc
    v_cndmask_b32_dpp v{T+5}, v{T}, v{T+1}, vcc {QP2}
    v_max_u32 v{T+4}, 1, v{T+4}
    v_max_u32 v{T+5}, 1, v{T+5}""")
    st = f"buffer_store_dwordx2 {vr(T+4,2)}, v{VMP}, {{S}}, s89 offen"; sh = f"buffer_store_dword v{VST}, v{VHS}, {{S}}, s89 offen"
    pub(st); pub2(st); A.e("s_mov_b64 exec, 1"); pub(sh); pub2(sh); A.e("s_mov_b64 exec, -1")
    stamp()
    accum()
    A.e(f"s_add_u32 s79, s79, 1\ns_branch {lp}")
    flush()
    A.label(f0)
    def mem0pub():
        assert T == 216
        for i in range(4): A.e(f"v_max_u32 v{T+i}, 1, v{T+i}")
        A.e("s_mov_b64 exec, s[84:85]")
        st = f"buffer_store_dwordx4 {vr(T,4)}, v12, {{S}}, s{sSL} offen"; sh = f"buffer_store_dword v{VST}, v{VHS}, {{S}}, s{sSL} offen"
        pub(st); pub2(st); A.e("s_mov_b64 exec, 1"); pub(sh); pub2(sh); A.e("s_mov_b64 exec, -1")
    prologue03(3, lp, mem0pub)
    A.label(end)
    A.e("s_waitcnt vmcnt(0)\ns_barrier\ns_mov_b32 s50, s91")
    if PROF:
        for k in range(10): A.e(f"v_writelane_b32 v255, s{92+k}, {k}")
        rts(63)
        A.e(f"v_writelane_b32 v255, s90, 57\ns_lshl_b32 s64, s57, 2\ns_add_u32 s64, s64, s50\ns_lshl_b32 s64, s64, 8\ns_add_u32 s64, s64, {241*MB}\nv_lshrrev_b32 v5, 2, v{V16}\nbuffer_store_dword v255, v5, s[20:23], s64 offen")
    A.label(done)
    A.e("s_endpgm")
    if worker: return
    A.label("code_end")
    A.end_kernel(512, 102, 256)
    return dict(grid=256, block=256, lds=160 * 1024)
```

```python
from asmgen import *
from layout import *
from gemm import load_ptr, f2u

LOG2E = 1.4426950408889634

def wave_allreduce_add(A, v, t):
    A.e(f"v_add_f32_dpp v{v}, v{v}, v{v} quad_perm:[1,0,3,2] row_mask:0xf bank_mask:0xf")
    A.e(f"v_add_f32_dpp v{v}, v{v}, v{v} quad_perm:[2,3,0,1] row_mask:0xf bank_mask:0xf")
    A.e(f"v_add_f32_dpp v{v}, v{v}, v{v} row_half_mirror row_mask:0xf bank_mask:0xf")
    A.e(f"v_add_f32_dpp v{v}, v{v}, v{v} row_mirror row_mask:0xf bank_mask:0xf")
    A.e(f"v_mov_b32 v{t}, v{v}\nv_permlane16_swap_b32 v{t}, v{v}\nv_add_f32 v{v}, v{v}, v{t}")
    A.e(f"v_mov_b32 v{t}, v{v}\nv_permlane32_swap_b32 v{t}, v{v}\nv_add_f32 v{v}, v{v}, v{t}")

def prefetch_wgs(A, first, args, done):
    skip = A.newlabel("nopf")
    A.e(f"s_cmp_lt_u32 s2, {first}\ns_cbranch_scc1 {skip}\ns_cmp_ge_u32 s2, {first + 128*len(args)}\ns_cbranch_scc1 {done}")
    for i, a in enumerate(args): load_ptr(A, 4 + 2 * i, ARG[a])
    A.e(f"s_sub_u32 s3, s2, {first}\ns_lshr_b32 s20, s3, 7\ns_and_b32 s3, s3, 127\ns_lshl_b32 s3, s3, 16\nv_lshlrev_b32 v1, 7, v0\ns_waitcnt lgkmcnt(0)")
    for i in range(1, len(args)): A.e(f"s_cmp_eq_u32 s20, {i}\ns_cselect_b64 s[4:5], s[{4+2*i}:{5+2*i}], s[4:5]")
    A.srd(12, 4, 8 * MB)
    A.e(f"buffer_load_dword v2, v1, s[12:15], s3 offen\ns_add_u32 s3, s3, 32768\nbuffer_load_dword v3, v1, s[12:15], s3 offen\ns_waitcnt vmcnt(0)\ns_branch {done}")
    A.label(skip)

def mod_kernel(A, name, fill_bytes, pf=(), fuse_ln=False, nmod=192, emb=None, depwait=None):
    NWG = 256
    done = A.newlabel("done"); nofill = A.newlabel("nomod"); nost = A.newlabel("nost")
    if emb:
        A.label(name); depwait()
    else:
        A.begin_kernel(name)
        if pf: prefetch_wgs(A, NWG, pf, done)
        A.e(f"s_cmp_ge_u32 s2, {NWG}\ns_cbranch_scc1 {'front_ln' if fuse_ln else done}\ns_mov_b32 s40, s2")
    load_ptr(A, 4, ARG["c"]); load_ptr(A, 6, ARG["wmod"]); load_ptr(A, 8, ARG["ws"])
    A.e("s_waitcnt lgkmcnt(0)")
    A.srd(12, 4, 2048); A.srd(16, 6, 1024 * 6144 * 2); A.srd(20, 8, WS_BYTES)
    if not emb: A.e(f"s_cmp_ge_u32 s2, {nmod}\ns_cbranch_scc1 {nofill}")
    A.e(f"""
    v_and_b32 v1, 3, v0
    v_lshrrev_b32 v2, 2, v0
    v_mul_u32_u24 v3, {6144*2}, v2
    v_lshl_add_u32 v3, v1, 4, v3
    s_lshl_b32 s24, s40, 6
    v_lshlrev_b32 v4, 1, v2""")
    for i in range(16):
        A.e(f"s_add_u32 s25, s24, {i*64*6144*2}")
        A.e(f"buffer_load_dwordx4 v[{32+4*i}:{35+4*i}], v3, s[16:19], s25 offen")
    for i in range(16):
        A.e(f"buffer_load_ushort v{8+i}, v4, s[12:15], 0 offen offset:{i*128}")
    for i in range(8): A.e(f"v_mov_b32 v{24+i}, 0")
    A.e("s_waitcnt vmcnt(0)")
    A.e(f"s_mov_b32 s26, {f2u(-LOG2E):#x}\ns_mov_b32 s27, 0xffff0000")
    for i in range(16):
        c = 8 + i
        A.e(f"""
        v_lshlrev_b32 v{c}, 16, v{c}
        v_mul_f32 v5, s26, v{c}
        v_exp_f32 v5, v5
        v_add_f32 v5, 1.0, v5
        v_rcp_f32 v5, v5
        v_mul_f32 v5, v5, v{c}
        v_cvt_pk_bf16_f32 v5, v5, v5
        v_and_b32 v{c}, s27, v5""")
        for j in range(4):
            w = 32 + 4 * i + j
            A.e(f"v_lshlrev_b32 v6, 16, v{w}\nv_and_b32 v7, s27, v{w}\nv_fmac_f32 v{24+2*j}, v6, v{c}\nv_fmac_f32 v{25+2*j}, v7, v{c}")
    A.e(f"""
    v_lshlrev_b32 v5, 5, v0
    ds_write_b128 v5, v[24:27]
    ds_write_b128 v5, v[28:31] offset:16
    s_waitcnt lgkmcnt(0)
    s_barrier""")
    A.e(f"""
    v_and_b32 v1, 31, v0
    v_lshrrev_b32 v2, 5, v0
    v_lshlrev_b32 v3, 10, v2
    v_lshl_add_u32 v3, v1, 2, v3""")
    for i in range(8): A.e(f"ds_read_b32 v{8+i}, v3 offset:{i*128}")
    A.e("s_waitcnt lgkmcnt(0)")
    for i in range(1, 8): A.e(f"v_add_f32 v8, v8, v{8+i}")
    A.e(f"""
    s_barrier
    v_lshlrev_b32 v3, 2, v0
    ds_write_b32 v3, v8
    s_waitcnt lgkmcnt(0)
    s_barrier
    v_lshlrev_b32 v3, 2, v1""")
    for i in range(8): A.e(f"ds_read_b32 v{8+i}, v3 offset:{i*128}")
    A.e("s_waitcnt lgkmcnt(0)")
    for i in range(1, 8): A.e(f"v_add_f32 v8, v8, v{8+i}")
    A.e(f"""
    v_cvt_pk_bf16_f32 v8, v8, v8
    v_and_b32 v8, s27, v8
    s_lshl_b32 s24, s40, 7
    s_add_u32 s24, s24, {WS['mod']}
    v_cmp_gt_u32 vcc, 32, v0
    s_and_saveexec_b64 s[36:37], vcc
    s_cbranch_execz {nost}
    buffer_store_dword v8, v3, s[20:23], s24 offen {'sc1' if (fuse_ln or emb) else ''}""")
    A.label(nost)
    A.e("s_mov_b64 exec, s[36:37]")
    if emb:
        A.e(f"s_branch {emb}")
        return dict(lds=8192)
    if fuse_ln:
        load_ptr(A, 28, ARG["dbg"])
        A.e(f"s_cmp_ge_u32 s2, 64\ns_cbranch_scc1 {nofill}\ns_waitcnt vmcnt(0) lgkmcnt(0)\ns_barrier")
        A.srd(32, 28, 256)
        A.e("v_cmp_eq_u32 vcc, 0, v0\ns_and_saveexec_b64 s[36:37], vcc\ns_cbranch_execz front_nosig\nv_mov_b32 v5, 1\nv_mov_b32 v6, 0\nbuffer_atomic_add v5, v6, s[32:35], 0 offen sc1")
        A.label("front_nosig")
        A.e("s_mov_b64 exec, s[36:37]")
    A.label(nofill)
    per = fill_bytes // NWG
    assert per % 4096 == 0
    A.e(f"""
    v_mov_b32 v8, -1
    v_mov_b32 v9, -1
    v_mov_b32 v10, -1
    v_mov_b32 v11, -1
    v_lshlrev_b32 v3, 4, v0
    s_mul_i32 s24, s2, {per}
    s_add_u32 s24, s24, {WS['xch']}
    s_mov_b32 s25, {per//4096}""")
    lp = A.newlabel("fill")
    A.label(lp)
    A.e(f"""
    buffer_store_dwordx4 v[8:11], v3, s[20:23], s24 offen
    s_add_u32 s24, s24, 4096
    s_sub_u32 s25, s25, 1
    s_cmp_lg_u32 s25, 0
    s_cbranch_scc1 {lp}""")
    A.e(f"""
    s_cmp_lt_u32 s2, 254
    s_cbranch_scc1 {done}
    s_cmp_eq_u32 s2, 254
    s_mov_b32 s25, {WS['g1'] + (S+2)*D*2}
    s_cselect_b32 s24, {WS['g1']}, s25
    v_mov_b32 v12, 0
    v_mov_b32 v13, 0
    v_mov_b32 v14, 0
    v_mov_b32 v15, 0
    buffer_store_dwordx4 v[12:15], v3, s[20:23], s24 offen""")
    A.label(done)
    A.e("s_endpgm")
    if fuse_ln:
        def wait_mod():
            lp = A.newlabel("mw"); ok = A.newlabel("mok")
            load_ptr(A, 28, ARG["dbg"]); A.e("s_waitcnt lgkmcnt(0)"); A.srd(32, 28, 256)
            A.e(f"v_mov_b32 v72, 0\ns_mov_b32 s30, 100000\nv_readfirstlane_b32 s31, v0\ns_cmp_lg_u32 s31, 0\ns_cbranch_scc1 {ok}\ns_mov_b64 exec, 1")
            A.label(lp)
            A.e(f"buffer_load_dword v73, v72, s[32:35], 0 offen sc1\ns_waitcnt vmcnt(0)\nv_cmp_gt_u32 vcc, 64, v73\ns_cbranch_vccz {ok}\ns_sleep 24\ns_sub_u32 s30, s30, 1\ns_cmp_gt_i32 s30, 0\ns_cbranch_scc1 {lp}")
            A.label(ok)
            A.e("s_mov_b64 exec, -1\ns_barrier")
        ln_kernel(A, "front_ln", ARG["x"], 0, "mod", "h", None, shift_idx=0, scale_idx=1, fused=(NWG, wait_mod))
    A.end_kernel(96, 48)
    return dict(grid=NWG + 128 * len(pf) + (S // 4 if fuse_ln else 0), block=256, lds=8192)

def ln_stats(A, xs, mean, rstd, t):
    A.e(f"v_add_f32 v{mean}, v{xs[0]}, v{xs[1]}")
    for x in xs[2:]: A.e(f"v_add_f32 v{mean}, v{mean}, v{x}")
    wave_allreduce_add(A, mean, t)
    A.e(f"v_mul_f32 v{mean}, {f2u(1/1024):#x}, v{mean}")
    for x in xs: A.e(f"v_sub_f32 v{x}, v{x}, v{mean}")
    A.e(f"v_mul_f32 v{rstd}, v{xs[0]}, v{xs[0]}")
    for x in xs[1:]: A.e(f"v_fmac_f32 v{rstd}, v{x}, v{x}")
    wave_allreduce_add(A, rstd, t)
    A.e(f"v_mov_b32 v{t}, {f2u(1e-5):#x}\nv_fmac_f32 v{t}, {f2u(1/1024):#x}, v{rstd}\nv_rsq_f32 v{rstd}, v{t}")

def ln_kernel(A, name, src_arg, src_off, mode, out1, out2=None, shift_idx=None, scale_idx=None, emb=None, nrows=4, depwait=None, red=None, pf=(), fused=None, roff=0):
    st = 'sc1' if emb else ''
    if fused:
        A.label(name)
        done = A.newlabel("done")
        A.e(f"s_sub_u32 s3, s2, {fused[0]}\ns_cmp_ge_u32 s3, {S//4}\ns_cbranch_scc1 {done}\ns_lshl_b32 s3, s3, 2")
    elif emb is None:
        A.begin_kernel(name)
        done = A.newlabel("done")
        if pf: prefetch_wgs(A, S // 4, pf, done)
        A.e(f"s_cmp_ge_u32 s2, {S//4}\ns_cbranch_scc1 {done}\ns_lshl_b32 s3, s2, 2")
    else:
        A.label(name)
        A.e(f"s_mul_i32 s3, s40, {4*nrows}\ns_sub_u32 s3, s3, {roff}\ns_mov_b32 s30, {nrows}")
        if depwait: depwait()
        lp = A.newlabel("lnloop")
        A.label(lp)
    load_ptr(A, 4, src_arg); load_ptr(A, 8, ARG["ws"])
    A.e(f"""
    v_and_b32 v1, 63, v0
    v_lshrrev_b32 v2, 6, v0
    v_add_u32 v2, s3, v2               ; row
    v_lshlrev_b32 v3, 11, v2
    v_lshl_add_u32 v3, v1, 4, v3
    v_lshlrev_b32 v4, 5, v1            ; fp32 mod offset: lane*8 cols*4B
    s_waitcnt lgkmcnt(0)""")
    A.srd(12, 4, S * D * 2, src_off); A.srd(20, 8, WS_BYTES)
    A.e("buffer_load_dwordx4 v[8:11], v3, s[12:15], 0 offen\nbuffer_load_dwordx4 v[12:15], v3, s[12:15], 0 offen offset:1024")
    if red:
        A.e("v_lshlrev_b32 v72, 12, v2\nv_lshl_add_u32 v72, v1, 5, v72")
        for sp in range(4):
            A.e(f"s_mov_b32 s24, {WS[red['part']] - PROW0*4096 + sp*PSTR}")
            for hlf in range(2):
                for q in range(2):
                    b = 80 + sp * 16 + hlf * 8 + q * 4
                    A.e(f"buffer_load_dwordx4 v[{b}:{b+3}], v72, s[20:23], s24 offen offset:{hlf*2048+q*16}")
        A.e(f"s_mov_b32 s24, {WS['mod'] + red['gate']*4096}")
        for hlf in range(2):
            for q in range(2):
                b = 144 + hlf * 8 + q * 4
                A.e(f"buffer_load_dwordx4 v[{b}:{b+3}], v4, s[20:23], s24 offen offset:{hlf*2048+q*16}")
        if red.get("res2"):
            A.e(f"s_mov_b32 s24, {WS[red['res2']]}\nbuffer_load_dwordx4 v[160:163], v3, s[20:23], s24 offen\nbuffer_load_dwordx4 v[164:167], v3, s[20:23], s24 offen offset:1024")
        A.e("s_waitcnt vmcnt(0)\ns_mov_b32 s27, 0xffff0000")
        for i in range(0, 16, 2):
            A.e(f"v_pk_add_f32 v[{80+i}:{81+i}], v[{80+i}:{81+i}], v[{96+i}:{97+i}]\nv_pk_add_f32 v[{112+i}:{113+i}], v[{112+i}:{113+i}], v[{128+i}:{129+i}]")
        for i in range(0, 16, 2): A.e(f"v_pk_add_f32 v[{80+i}:{81+i}], v[{80+i}:{81+i}], v[{112+i}:{113+i}]")
        for i in range(8):
            if red.get("res2"):
                A.e(f"v_lshlrev_b32 v73, 16, v{160+i}\nv_and_b32 v74, s27, v{160+i}\nv_add_f32 v{80+2*i}, v{80+2*i}, v73\nv_add_f32 v{81+2*i}, v{81+2*i}, v74")
            A.e(f"v_lshlrev_b32 v73, 16, v{8+i}\nv_and_b32 v74, s27, v{8+i}\nv_fma_f32 v73, v{80+2*i}, v{144+2*i}, v73\nv_fma_f32 v74, v{81+2*i}, v{145+2*i}, v74\nv_cvt_pk_bf16_f32 v{8+i}, v73, v74")
        if red["final"]:
            load_ptr(A, 28, ARG["out"]); A.e("s_waitcnt lgkmcnt(0)"); A.srd(32, 28, S * D * 2)
            A.e(f"buffer_store_dwordx4 v[8:11], v3, s[32:35], 0 offen {st}\nbuffer_store_dwordx4 v[12:15], v3, s[32:35], 0 offen offset:1024 {st}")
            A.e(f"s_add_u32 s3, s3, 4\ns_sub_u32 s30, s30, 1\ns_cmp_lg_u32 s30, 0\ns_nop 1\ns_cbranch_scc1 {lp}\ns_branch {emb}")
            return dict(lds=0)
        A.e(f"s_mov_b32 s24, {WS['x1']}\nbuffer_store_dwordx4 v[8:11], v3, s[20:23], s24 offen {st}\nbuffer_store_dwordx4 v[12:15], v3, s[20:23], s24 offen offset:1024 {st}")
    def modloads(fl=""):
        for (idx, base) in ((scale_idx, 40), (shift_idx, 56)):
            A.e(f"s_mov_b32 s24, {WS['mod'] + idx*4096}")
            for hlf in range(2):
                for q in range(2):
                    b = base + hlf * 8 + q * 4
                    A.e(f"buffer_load_dwordx4 v[{b}:{b+3}], v4, s[20:23], s24 offen offset:{hlf*2048+q*16} {fl}")
    if mode == "mod" and not fused:
        modloads()
        A.e("s_waitcnt vmcnt(8)")
    else:
        A.e("s_waitcnt vmcnt(0)")
    A.e("s_mov_b32 s27, 0xffff0000")
    xs = list(range(16, 32))
    for i in range(8):
        A.e(f"v_lshlrev_b32 v{16+2*i}, 16, v{8+i}\nv_and_b32 v{17+2*i}, s27, v{8+i}")
    ln_stats(A, xs, 5, 6, 7)
    def pack_store(off):
        for i in range(8): A.e(f"v_cvt_pk_bf16_f32 v{8+i}, v{16+2*i}, v{17+2*i}")
        A.e(f"s_mov_b32 s24, {off}")
        A.e(f"buffer_store_dwordx4 v[8:11], v3, s[20:23], s24 offen {st}\nbuffer_store_dwordx4 v[12:15], v3, s[20:23], s24 offen offset:1024 {st}")
    if mode == "mod":
        if fused: fused[1](); modloads()
        A.e("s_waitcnt vmcnt(0)")
        for i in range(16):
            A.e(f"v_add_f32 v{40+i}, 1.0, v{40+i}\nv_mul_f32 v{16+i}, v{16+i}, v6\nv_fma_f32 v{16+i}, v{16+i}, v{40+i}, v{56+i}")
        pack_store(WS[out1])
        if out2:
            for i in range(8):
                A.e(f"v_lshlrev_b32 v{16+2*i}, 16, v{8+i}\nv_and_b32 v{17+2*i}, s27, v{8+i}")
            ln_stats(A, xs, 5, 6, 7)
            for i in range(16): A.e(f"v_mul_f32 v{16+i}, v{16+i}, v6")
            for i in range(8): A.e(f"v_cvt_pk_bf16_f32 v{32+i}, v{16+2*i}, v{17+2*i}")
            A.e(f"s_mov_b32 s24, {WS[out2]}")
            A.e(f"buffer_store_dwordx4 v[32:35], v3, s[20:23], s24 offen {st}\nbuffer_store_dwordx4 v[36:39], v3, s[20:23], s24 offen offset:1024 {st}")
    else:
        for i in range(16): A.e(f"v_mul_f32 v{16+i}, v{16+i}, v6")
        pack_store(WS[out1])
    if emb:
        A.e(f"s_add_u32 s3, s3, 4\ns_sub_u32 s30, s30, 1\ns_cmp_lg_u32 s30, 0\ns_nop 1\ns_cbranch_scc1 {lp}\ns_branch {emb}")
        return dict(lds=0)
    A.label(done)
    A.e("s_endpgm")
    if fused: return
    A.end_kernel(72, 40)
    return dict(grid=S // 4 + 128 * len(pf), block=256, lds=0)

def mod2_kernel(A, name, fill_bytes):
    NWG = 256
    A.begin_kernel(name)
    done = A.newlabel("done"); nost = A.newlabel("nost"); nz = A.newlabel("nz")
    A.e(f"s_cmp_ge_u32 s2, {NWG}\ns_cbranch_scc1 {done}")
    A.e(f"s_load_dwordx4 s[4:7], s[0:1], {ARG['c']*8}")
    load_ptr(A, 8, ARG["ws"])
    per = fill_bytes // NWG; assert per == 16384
    A.e(f"""
    v_and_b32 v1, 3, v0
    v_lshrrev_b32 v2, 2, v0
    v_mul_u32_u24 v3, {6144*2}, v2
    v_lshl_add_u32 v3, v1, 4, v3
    s_lshl_b32 s24, s2, 6
    v_lshlrev_b32 v4, 1, v2
    v_mov_b32 v40, 0
    v_mov_b32 v41, 0
    v_mov_b32 v42, 0
    v_mov_b32 v43, 0
    v_lshlrev_b32 v44, 4, v0
    s_lshl_b32 s28, s2, 14
    s_add_u32 s28, s28, {WS['xch']}
    s_waitcnt lgkmcnt(0)""")
    A.srd(12, 4, 2048); A.srd(16, 6, 1024 * 6144 * 2); A.srd(20, 8, WS_BYTES)
    A.e(f"buffer_store_dwordx4 v[40:43], v44, s[20:23], s28 offen")
    A.e(f"s_lshr_b32 s28, s2, 2\ns_lshl_b32 s28, s28, 21\ns_and_b32 s29, s2, 3\ns_lshl_b32 s29, s29, 16\ns_add_u32 s28, s28, s29\ns_add_u32 s28, s28, {WS['qkv'] + 112*16384}")
    for i in range(4): A.e(f"buffer_store_dwordx4 v[40:43], v44, s[20:23], s28 offen\ns_add_u32 s28, s28, 16384")
    A.e(f"s_cmp_ge_u32 s2, 192\ns_cbranch_scc1 {nz}")
    for i in range(4):
        A.e(f"s_add_u32 s25, s24, {i*256*6144*2}\nbuffer_load_dwordx4 v[{16+4*i}:{19+4*i}], v3, s[16:19], s25 offen\nbuffer_load_ushort v{8+i}, v4, s[12:15], 0 offen offset:{i*512}")
    for i in range(8): A.e(f"v_mov_b32 v{32+i}, 0")
    A.e(f"s_mov_b32 s26, {f2u(-LOG2E):#x}\ns_mov_b32 s27, 0xffff0000\ns_waitcnt vmcnt(0)")
    for i in range(4):
        c = 8 + i
        A.e(f"v_lshlrev_b32 v{c}, 16, v{c}\nv_mul_f32 v5, s26, v{c}\nv_exp_f32 v5, v5\nv_add_f32 v5, 1.0, v5\nv_rcp_f32 v5, v5\nv_mul_f32 v5, v5, v{c}\nv_cvt_pk_bf16_f32 v5, v5, v5\nv_and_b32 v{c}, s27, v5")
        for j in range(4):
            w = 16 + 4 * i + j
            A.e(f"v_lshlrev_b32 v6, 16, v{w}\nv_and_b32 v7, s27, v{w}\nv_fmac_f32 v{32+2*j}, v6, v{c}\nv_fmac_f32 v{33+2*j}, v7, v{c}")
    A.e("""
    v_lshlrev_b32 v5, 5, v0
    ds_write_b128 v5, v[32:35]
    ds_write_b128 v5, v[36:39] offset:16
    v_and_b32 v1, 31, v0
    v_lshrrev_b32 v2, 5, v0
    v_lshlrev_b32 v3, 10, v2
    v_lshl_add_u32 v3, v1, 2, v3
    s_waitcnt lgkmcnt(0)
    s_barrier""")
    def sum8():
        for i in range(8): A.e(f"ds_read_b32 v{8+i}, v3 offset:{i*128}")
        A.e("s_waitcnt lgkmcnt(0)\nv_add_f32 v8, v8, v9\nv_add_f32 v10, v10, v11\nv_add_f32 v12, v12, v13\nv_add_f32 v14, v14, v15\nv_add_f32 v8, v8, v10\nv_add_f32 v12, v12, v14\nv_add_f32 v8, v8, v12")
    sum8()
    A.e("s_barrier\nv_lshlrev_b32 v5, 2, v0\nds_write_b32 v5, v8\nv_and_b32 v2, 3, v2\nv_lshlrev_b32 v3, 10, v2\nv_lshl_add_u32 v3, v1, 2, v3\ns_waitcnt lgkmcnt(0)\ns_barrier")
    sum8()
    A.e("s_barrier\nds_write_b32 v5, v8\nv_lshlrev_b32 v3, 2, v1\ns_waitcnt lgkmcnt(0)\ns_barrier")
    for i in range(4): A.e(f"ds_read_b32 v{8+i}, v3 offset:{i*128}")
    A.e(f"""
    s_waitcnt lgkmcnt(0)
    v_add_f32 v8, v8, v9
    v_add_f32 v10, v10, v11
    v_add_f32 v8, v8, v10
    v_cvt_pk_bf16_f32 v8, v8, v8
    v_and_b32 v8, s27, v8
    s_lshl_b32 s24, s2, 7
    s_add_u32 s24, s24, {WS['mod']}
    v_cmp_gt_u32 vcc, 32, v0
    s_and_saveexec_b64 s[36:37], vcc
    s_cbranch_execz {done}
    buffer_store_dword v8, v3, s[20:23], s24 offen
    s_branch {done}""")
    A.label(nz)
    A.e(f"""
    s_cmp_lt_u32 s2, 252
    s_cbranch_scc1 {done}
    s_cmp_eq_u32 s2, 254
    s_mov_b32 s25, {WS['g1'] + (S+2)*D*2}
    s_cselect_b32 s24, {WS['g1']}, s25
    s_cmp_eq_u32 s2, 253
    s_cselect_b32 s24, {WS['xch'] + 4*MB + 524288}, s24
    s_cmp_eq_u32 s2, 252
    s_cselect_b32 s24, {WS['xch'] + 5*MB + 524288}, s24
    v_mov_b32 v12, 0
    v_lshlrev_b32 v13, 2, v0
    buffer_store_dword v12, v13, s[20:23], s24 offen""")
    A.label(done)
    A.e("s_endpgm")
    A.end_kernel(48, 48)
    return dict(grid=NWG, block=1024, lds=32768)

def red_c(A, v, t):
    A.e(f"v_add_f32_dpp v{v}, v{v}, v{v} row_ror:4 row_mask:0xf bank_mask:0xf")
    A.e(f"v_add_f32_dpp v{v}, v{v}, v{v} row_ror:8 row_mask:0xf bank_mask:0xf")
    A.e(f"v_mov_b32 v{t}, v{v}\nv_permlane16_swap_b32 v{t}, v{v}\nv_add_f32 v{v}, v{v}, v{t}")
    A.e(f"v_mov_b32 v{t}, v{v}\nv_permlane32_swap_b32 v{t}, v{v}\nv_add_f32 v{v}, v{v}, v{t}")

def ln1f_kernel(A, name, emb=None, depwait=None, modload=None):
    st = 'sc1' if emb else ''
    if emb is None:
        A.begin_kernel(name)
        done = A.newlabel("done")
        A.e(f"s_cmp_ge_u32 s2, {S//16}\ns_cbranch_scc1 {done}\ns_mov_b32 s40, s2")
    else: A.label(name)
    load_ptr(A, 4, ARG["x"]); load_ptr(A, 8, ARG["ws"])
    X0 = 8; XF = 40; SC = 104; SH = 168
    A.e(f"""
    v_and_b32 v1, 63, v0
    v_lshrrev_b32 v2, 6, v0            ; wave
    v_and_b32 v3, 3, v1                ; t
    v_lshrrev_b32 v4, 2, v1            ; c
    v_lshl_add_u32 v5, v2, 2, v3
    v_lshlrev_b32 v5, 11, v5
    v_lshl_add_u32 v5, v4, 5, v5       ; x offset
    s_lshl_b32 s24, s40, 15
    v_lshrrev_b32 v6, 1, v4
    v_lshlrev_b32 v6, 11, v6
    v_and_b32 v7, 1, v4
    v_lshl_add_u32 v6, v7, 9, v6
    v_and_b32 v7, 1, v2
    v_lshl_add_u32 v6, v7, 10, v6
    v_lshrrev_b32 v7, 1, v2
    v_lshl_add_u32 v7, v7, 2, v3
    v_lshl_add_u32 v6, v7, 4, v6       ; h offset
    v_lshlrev_b32 v4, 6, v4            ; mod offset
    s_lshr_b32 s25, s40, 1
    s_lshl_b32 s25, s25, 16
    s_and_b32 s26, s40, 1
    s_lshl_b32 s26, s26, 7
    s_add_u32 s25, s25, s26
    s_add_u32 s25, s25, {WS['h']}
    s_waitcnt lgkmcnt(0)""")
    A.srd(12, 4, S * D * 2); A.srd(20, 8, WS_BYTES)
    for i in range(4):
        for q in range(2): A.e(f"buffer_load_dwordx4 {vr(X0+i*8+q*4,4)}, v5, s[12:15], s24 offen offset:{i*512+q*16}")
    if modload is None:
        for (idx, base) in ((1, SC), (0, SH)):
            A.e(f"s_mov_b32 s26, {WS['mod'] + idx*4096}")
            for i in range(4):
                for q in range(4): A.e(f"buffer_load_dwordx4 {vr(base+i*16+q*4,4)}, v4, s[20:23], s26 offen offset:{i*1024+q*16}")
        A.e("s_waitcnt vmcnt(32)")
    else: A.e("s_waitcnt vmcnt(0)")
    A.e("s_mov_b32 s27, 0xffff0000")
    for i in range(32): A.e(f"v_lshlrev_b32 v{XF+2*i}, 16, v{X0+i}\nv_and_b32 v{XF+2*i+1}, s27, v{X0+i}")
    M = 8; R = 10; Tm = 12
    A.e(f"v_pk_add_f32 {vr(M,2)}, {vr(XF,2)}, {vr(XF+2,2)}\nv_pk_add_f32 {vr(M+2,2)}, {vr(XF+4,2)}, {vr(XF+6,2)}")
    for i in range(8, 64, 4): A.e(f"v_pk_add_f32 {vr(M,2)}, {vr(M,2)}, {vr(XF+i,2)}\nv_pk_add_f32 {vr(M+2,2)}, {vr(M+2,2)}, {vr(XF+i+2,2)}")
    A.e(f"v_pk_add_f32 {vr(M,2)}, {vr(M,2)}, {vr(M+2,2)}\nv_add_f32 v{M}, v{M}, v{M+1}")
    red_c(A, M, Tm)
    A.e(f"v_mul_f32 v{M}, {f2u(-1/1024):#x}, v{M}")
    for i in range(0, 64, 2): A.e(f"v_pk_add_f32 {vr(XF+i,2)}, {vr(XF+i,2)}, {vr(M,2)} op_sel_hi:[1,0]")
    A.e(f"v_pk_mul_f32 {vr(R,2)}, {vr(XF,2)}, {vr(XF,2)}\nv_pk_mul_f32 {vr(R+4,2)}, {vr(XF+2,2)}, {vr(XF+2,2)}")
    for i in range(4, 64, 4): A.e(f"v_pk_fma_f32 {vr(R,2)}, {vr(XF+i,2)}, {vr(XF+i,2)}, {vr(R,2)}\nv_pk_fma_f32 {vr(R+4,2)}, {vr(XF+i+2,2)}, {vr(XF+i+2,2)}, {vr(R+4,2)}")
    A.e(f"v_pk_add_f32 {vr(R,2)}, {vr(R,2)}, {vr(R+4,2)}\nv_add_f32 v{R}, v{R}, v{R+1}")
    red_c(A, R, Tm)
    A.e(f"v_mov_b32 v{Tm}, {f2u(1e-5):#x}\nv_fmac_f32 v{Tm}, {f2u(1/1024):#x}, v{R}\nv_rsq_f32 v{R}, v{Tm}\nv_mov_b32 v{Tm+2}, 1.0")
    if modload is None: A.e("s_waitcnt vmcnt(0)")
    else: modload(SC, SH)
    for i in range(0, 64, 2): A.e(f"v_pk_mul_f32 {vr(XF+i,2)}, {vr(XF+i,2)}, {vr(R,2)} op_sel_hi:[1,0]\nv_pk_add_f32 {vr(SC+i,2)}, {vr(SC+i,2)}, {vr(Tm+2,2)} op_sel_hi:[1,0]")
    for i in range(0, 64, 2): A.e(f"v_pk_fma_f32 {vr(XF+i,2)}, {vr(XF+i,2)}, {vr(SC+i,2)}, {vr(SH+i,2)}")
    for i in range(4):
        for u in range(2):
            o = 16 + ((i * 2 + u) % 4) * 4
            for j, d in enumerate((0, 4, 1, 5)):
                c = XF + i * 16 + 2 * (d + 2 * u)
                A.e(f"v_cvt_pk_bf16_f32 v{o+j}, v{c}, v{c+1}")
            if u == 0 and i: A.e(f"s_add_u32 s25, s25, 16384")
            A.e(f"buffer_store_dwordx4 {vr(o,4)}, v6, s[20:23], s25 offen offset:{u*256} {st}")
    if emb:
        A.e(f"s_branch {emb}")
        return dict(lds=0)
    A.label(done)
    A.e("s_endpgm")
    A.end_kernel(232, 40)
    return dict(grid=S // 16, block=256, lds=0)
```

```python
from asmgen import *
from layout import *
from gemm import load_ptr, f2u
from small import red_c
LOG2E = 1.4426950408889634
NT = 'nt'; NTX = ''
X0 = 8; XF = 40; SC = 104; SH = 168
def m1_ln1_loads(A, idx, zbase, flg):
    A.e(f"s_load_dwordx4 s[4:7], s[0:1], {ARG['c']*8}")
    load_ptr(A, 8, ARG["x"])
    A.e(f"""
    v_and_b32 v1, 63, v0
    v_lshrrev_b32 v2, 6, v0            ; wave
    v_and_b32 v3, 7, v0                ; cc
    v_lshrrev_b32 v4, 3, v0            ; r0
    v_mul_u32_u24 v5, {6144*2}, v4
    v_lshl_add_u32 v5, v3, 4, v5
    v_lshlrev_b32 v6, 1, v4
    s_and_b32 s24, s{idx}, 31
    s_lshr_b32 s25, s{idx}, 5
    s_lshl_b32 s26, s24, 7
    s_mul_i32 s27, s25, {256*6144*2}
    s_add_u32 s26, s26, s27
    s_lshl_b32 s27, s25, 9
    s_waitcnt lgkmcnt(0)""")
    A.srd(12, 4, 2048); A.srd(28, 6, 1024 * 6144 * 2); A.srd(32, 8, S * D * 2)
    for j in range(8):
        A.e(f"buffer_load_dwordx4 {vr(64+4*j,4)}, v5, s[28:31], s26 offen {NT}")
        if j < 7: A.e(f"s_add_u32 s26, s26, {32*6144*2}")
    for j in range(8): A.e(f"buffer_load_ushort v{96+j}, v6, s[12:15], s27 offen offset:{j*64}")
    A.e(f"""
    v_and_b32 v3, 3, v1                ; t
    v_lshrrev_b32 v4, 2, v1            ; c
    v_lshl_add_u32 v5, v2, 2, v3
    v_lshlrev_b32 v5, 11, v5
    v_lshl_add_u32 v5, v4, 5, v5       ; x offset
    s_lshl_b32 s36, s{idx}, 15""")
    for i in range(4):
        for q in range(2): A.e(f"buffer_load_dwordx4 {vr(X0+i*8+q*4,4)}, v5, s[32:35], s36 offen offset:{i*512+q*16} {NTX}")
    A.e(f"""
    v_lshrrev_b32 v6, 1, v4
    v_lshlrev_b32 v6, 11, v6
    v_and_b32 v7, 1, v4
    v_lshl_add_u32 v6, v7, 9, v6
    v_and_b32 v7, 1, v2
    v_lshl_add_u32 v6, v7, 10, v6
    v_lshrrev_b32 v7, 1, v2
    v_lshl_add_u32 v7, v7, 2, v3
    v_lshl_add_u32 v6, v7, 4, v6       ; h offset
    v_lshlrev_b32 v4, 6, v4
    s_lshr_b32 s37, s{idx}, 1
    s_lshl_b32 s37, s37, 16
    s_and_b32 s38, s{idx}, 1
    s_lshl_b32 s38, s38, 7
    s_add_u32 s37, s37, s38
    s_add_u32 s37, s37, {WS['h']}
    s_mov_b32 s38, {f2u(-LOG2E):#x}
    s_mov_b32 s39, 0xffff0000""")
    nz = A.newlabel("nz")
    A.e(f"""
    s_cmp_lg_u32 s50, 1
    s_cbranch_scc1 {nz}
    s_lshl_b32 s40, s{idx}, 8
    s_add_u32 s40, s40, {zbase}
    s_lshr_b32 s41, s{idx}, 2
    s_lshl_b32 s41, s41, 11
    s_and_b32 s42, s{idx}, 3
    s_lshl_b32 s42, s42, 8
    s_add_u32 s41, s41, s42
    s_add_u32 s42, s41, {WS['g1'] + 64*65536 - 20*16}
    s_add_u32 s41, s41, {WS['g1'] - 16*16}
    v_mov_b32 v104, s40
    v_mov_b32 v105, s41
    v_cmp_gt_u32 vcc, 16, v1
    v_cndmask_b32 v104, v105, v104, vcc
    v_mov_b32 v105, s42
    v_cmp_gt_u32 vcc, 20, v1
    v_cndmask_b32 v104, v105, v104, vcc
    v_lshl_add_u32 v104, v1, 4, v104
    s_lshl_b32 s41, s{idx}, 7
    s_add_u32 s41, s41, {flg}
    v_writelane_b32 v104, s41, 24
    v_mov_b32 v108, 0
    v_mov_b32 v109, 0
    v_mov_b32 v110, 0
    v_mov_b32 v111, 0
    s_mov_b64 exec, 0x1ffffff
    buffer_store_dwordx4 v[108:111], v104, s[20:23], 0 offen sc1
    s_mov_b64 exec, -1""")
    A.label(nz)
def m1_compute(A, idx, hook=None):
    for i in range(8): A.e(f"v_mov_b32 v{112+i}, 0")
    A.e("s_waitcnt vmcnt(8)")
    if hook: hook()
    for j in range(8):
        c = 96 + j
        A.e(f"v_lshlrev_b32 v{c}, 16, v{c}\nv_mul_f32 v104, s38, v{c}\nv_exp_f32 v104, v104\nv_add_f32 v104, 1.0, v104\nv_rcp_f32 v104, v104\nv_mul_f32 v104, v104, v{c}\nv_cvt_pk_bf16_f32 v104, v104, v104\nv_and_b32 v{c}, s39, v104")
        for k in range(4):
            w = 64 + 4 * j + k
            A.e(f"v_lshlrev_b32 v105, 16, v{w}\nv_and_b32 v106, s39, v{w}\nv_fmac_f32 v{112+2*k}, v105, v{c}\nv_fmac_f32 v{113+2*k}, v106, v{c}")
    for i in range(4): A.e(f"v_permlane32_swap_b32 v{112+i}, v{116+i}")
    for i in range(4): A.e(f"v_add_f32 v{112+i}, v{112+i}, v{116+i}")
    for i in range(2): A.e(f"v_permlane16_swap_b32 v{112+i}, v{114+i}")
    for i in range(2): A.e(f"v_add_f32 v{112+i}, v{112+i}, v{114+i}")
    for i in range(2): A.e(f"v_add_f32_dpp v{112+i}, v{112+i}, v{112+i} row_ror:8 row_mask:0xf bank_mask:0xf")
    n0 = A.newlabel("m1n0")
    A.e(f"""
    v_and_b32 v104, 7, v1
    v_lshlrev_b32 v104, 5, v104
    v_lshrrev_b32 v105, 5, v1
    v_lshl_add_u32 v104, v105, 4, v104
    v_bfe_u32 v105, v1, 4, 1
    v_lshl_add_u32 v104, v105, 3, v104
    v_lshl_add_u32 v104, v2, 8, v104
    ds_write_b64 v104, v[112:113]
    v_lshlrev_b32 v105, 2, v1
    s_lshl_b32 s40, s25, 13
    s_lshl_b32 s41, s24, 8
    s_add_u32 s40, s40, s41
    s_add_u32 s40, s40, {WS['modp']}
    s_waitcnt lgkmcnt(0)
    s_barrier
    s_cmp_lg_u32 s50, 0
    s_cbranch_scc1 {n0}""")
    for k in range(4): A.e(f"ds_read_b32 v{112+k}, v105 offset:{k*256}")
    A.e("""
    s_waitcnt lgkmcnt(0)
    v_add_f32 v112, v112, v113
    v_add_f32 v114, v114, v115
    v_add_f32 v112, v112, v114
    buffer_store_dword v112, v105, s[20:23], s40 offen sc1""")
    A.label(n0)
    A.e("s_waitcnt vmcnt(0)\ns_barrier")
M = 8; R = 10; Tm = 12
def ln1_stats(A):
    for i in range(31, -1, -1): A.e(f"v_and_b32 v{XF+2*i+1}, s39, v{X0+i}\nv_lshlrev_b32 v{XF+2*i}, 16, v{X0+i}")
    A.e(f"v_pk_add_f32 {vr(M,2)}, {vr(XF,2)}, {vr(XF+2,2)}\nv_pk_add_f32 {vr(M+2,2)}, {vr(XF+4,2)}, {vr(XF+6,2)}")
    for i in range(8, 64, 4): A.e(f"v_pk_add_f32 {vr(M,2)}, {vr(M,2)}, {vr(XF+i,2)}\nv_pk_add_f32 {vr(M+2,2)}, {vr(M+2,2)}, {vr(XF+i+2,2)}")
    A.e(f"v_pk_add_f32 {vr(M,2)}, {vr(M,2)}, {vr(M+2,2)}\nv_add_f32 v{M}, v{M}, v{M+1}")
    red_c(A, M, Tm)
    A.e(f"v_mul_f32 v{M}, {f2u(-1/1024):#x}, v{M}")
    for i in range(0, 64, 2): A.e(f"v_pk_add_f32 {vr(XF+i,2)}, {vr(XF+i,2)}, {vr(M,2)} op_sel_hi:[1,0]")
    A.e(f"v_pk_mul_f32 {vr(R,2)}, {vr(XF,2)}, {vr(XF,2)}\nv_pk_mul_f32 {vr(R+4,2)}, {vr(XF+2,2)}, {vr(XF+2,2)}")
    for i in range(4, 64, 4): A.e(f"v_pk_fma_f32 {vr(R,2)}, {vr(XF+i,2)}, {vr(XF+i,2)}, {vr(R,2)}\nv_pk_fma_f32 {vr(R+4,2)}, {vr(XF+i+2,2)}, {vr(XF+i+2,2)}, {vr(R+4,2)}")
    A.e(f"v_pk_add_f32 {vr(R,2)}, {vr(R,2)}, {vr(R+4,2)}\nv_add_f32 v{R}, v{R}, v{R+1}")
    red_c(A, R, Tm)
    A.e(f"v_mov_b32 v{Tm}, {f2u(1e-5):#x}\nv_fmac_f32 v{Tm}, {f2u(1/1024):#x}, v{R}\nv_rsq_f32 v{R}, v{Tm}")
    for i in range(0, 64, 2): A.e(f"v_pk_mul_f32 {vr(XF+i,2)}, {vr(XF+i,2)}, {vr(R,2)} op_sel_hi:[1,0]")
def ln1_finish(A):
    A.e(f"v_lshlrev_b32 v7, 5, v0\ns_mov_b32 s40, {WS['modp']}")
    for k in range(4):
        for q in range(2): A.e(f"buffer_load_dwordx4 {vr(SC+k*8+q*4,4)}, v7, s[20:23], s40 offen offset:{q*16} sc1")
        if k < 3: A.e("s_add_u32 s40, s40, 8192")
    A.e(f"v_mov_b32 v{Tm+2}, 1.0\nv_cmp_lt_u32 vcc, 127, v0\nv_cndmask_b32 v{Tm+2}, 0, v{Tm+2}, vcc\ns_waitcnt vmcnt(0)")
    for i in range(0, 8, 2): A.e(f"v_pk_add_f32 {vr(SC+i,2)}, {vr(SC+i,2)}, {vr(SC+8+i,2)}\nv_pk_add_f32 {vr(SC+16+i,2)}, {vr(SC+16+i,2)}, {vr(SC+24+i,2)}")
    for i in range(0, 8, 2): A.e(f"v_pk_add_f32 {vr(SC+i,2)}, {vr(SC+i,2)}, {vr(SC+16+i,2)}")
    for i in range(4): A.e(f"v_cvt_pk_bf16_f32 v{SC+8+i}, v{SC+2*i}, v{SC+2*i+1}")
    for i in range(4): A.e(f"v_lshlrev_b32 v{SC+2*i}, 16, v{SC+8+i}\nv_and_b32 v{SC+2*i+1}, s39, v{SC+8+i}")
    for i in range(0, 8, 2): A.e(f"v_pk_add_f32 {vr(SC+i,2)}, {vr(SC+i,2)}, {vr(Tm+2,2)} op_sel_hi:[1,0]")
    A.e(f"ds_write_b128 v7, {vr(SC,4)} offset:4096\nds_write_b128 v7, {vr(SC+4,4)} offset:4112\ns_waitcnt lgkmcnt(0)\ns_barrier")
    for i in range(4):
        for q in range(4):
            A.e(f"ds_read_b128 {vr(SC+i*16+q*4,4)}, v4 offset:{8192+i*1024+q*16}\nds_read_b128 {vr(SH+i*16+q*4,4)}, v4 offset:{4096+i*1024+q*16}")
    for i in range(4):
        A.e(f"s_waitcnt lgkmcnt({min(15, 8*(3-i))})")
        for j in range(i * 16, i * 16 + 16, 2): A.e(f"v_pk_fma_f32 {vr(XF+j,2)}, {vr(XF+j,2)}, {vr(SC+j,2)}, {vr(SH+j,2)}")
        for u in range(2):
            o = 16 + ((i & 1) * 2 + u) * 4
            for j, d in enumerate((0, 4, 1, 5)):
                c = XF + i * 16 + 2 * (d + 2 * u)
                A.e(f"v_cvt_pk_bf16_f32 v{o+j}, v{c}, v{c+1}")
            if u == 0 and i: A.e(f"s_add_u32 s37, s37, 16384")
            A.e(f"buffer_store_dwordx4 {vr(o,4)}, v6, s[20:23], s37 offen offset:{u*256} sc1")
```

```python
import sys
from asmgen import *
NAME = "adaLN_cond__memory_aug_recurrent_mem_tr__mixer_s_mlp__prompt"
def build(cfg=None):
    cfg = cfg or {}
    A = Asm()
    hdr = open(f"/code/{NAME}.s.ref").read().split("\n")
    A.header = [l for l in hdr if l.startswith(";") and "@launch" not in l and "Override" not in l and "grid=ceil" not in l]
    import rec7 as rec, importlib
    pipe = importlib.import_module(cfg.get('pipe', 'pipe3'))
    rec.PROF = cfg.get("prof", False)
    pipe.PROF = cfg.get("pprof", False)
    for k_, v_ in cfg.get("recopt", {}).items(): assert hasattr(rec, k_); setattr(rec, k_, v_)
    for k_, v_ in cfg.get("pipeopt", {}).items(): assert hasattr(pipe, k_); setattr(pipe, k_, v_)
    import start
    for k_, v_ in cfg.get("stopt", {}).items(): assert hasattr(start, k_); setattr(start, k_, v_)
    info = pipe.kernel(A, "mega_kernel", cfg)
    A.launch("mega_kernel", (info["grid"],), (info["block"],), info["lds"])
    A.lines = fix_hazards(A.lines)
    return A.text()
if __name__ == "__main__":
    out = sys.argv[1] if len(sys.argv) > 1 else "full.s"
    cfg = eval(sys.argv[2]) if len(sys.argv) > 2 else {}
    t = build(cfg)
    open(out, "w").write(t)
    check_hazards(t)
    print(len(t), "bytes")
```

```python
from asmgen import *
from layout import *
from gemm import load_ptr, f2u
import start
LOG2E = 1.4426950408889634
SCL = (128 ** -0.5) * LOG2E

XMEAS = WS["xch"]
XCNT = XMEAS + 65536
XHEAD = XCNT + 2048
XTC = XCNT + 4096
CRL = 136
CTGT = 1792
CR0 = 8
CLN = 176; CPZ = 184
XLOC = WS["xch"] + 2 * MB
XO = 65536; XQK = 131072; XKT = 262144; XHI = 524288
XFLG = XMEAS + 131072
RFLG = XMEAS + 196608
NRDY = 144
DPAR = 32; DRDY = 36; DM1F = 160; DM1S = 164
QB = WS["qkv"]
OOB = 0x7fff0000
LB = 131072
LM = 0; LVT = 16384; LVM = 24576; LBP = 25600; LFL = LB + 27648; L_ROLE = LB + 27904
LDS_BYTES = LB + 28672
HALF = 0x00ff00ff
FORCE_SLOW = False
PROF = False
BUDGET = 400000
THM = 25; NOM = 2; THO = 50; NOO = 1; D2 = 200; NF2 = 2; DP = 450; UPB = 8; CGB = 2
N1 = 16; P1 = (15, 55); N2 = 10; P2 = (100, 128); NRD2 = 4; SPFD = 5
NA = 12; DA = 300; NB3 = 0; NC = 0; GA = 16
SIGLAG = 5
PC = 0
DBG = 0
SPOS = dict(k0='E', v0='A', k1='E', v1='A', sig=None)
NPZ = 8
WPF = 0
CPF = 1
WNT = 'nt'; QNT = 'nt'; ONT = 'nt'
PNT = ''
PFD = 0
DWT = 0
PFW = ''
NQE = 0
SLP = 2
CPERM = 0; CPERM2 = 0; PSEL = None; XW = 1

def rec_kernel(A, name, worker=None, nsteps=64, after=None):
    L = A.newlabel
    def delay(n):
        while n >= 64:
            A.e("s_nop 15"); n -= 64
        n //= 4
        if n > 0: A.e(f"s_nop {n-1}")
    A.begin_kernel(name)
    done = L("done")
    wexit = worker if worker else done
    def rts(lane):
        if PROF: A.e(f"s_memrealtime s[100:101]\ns_waitcnt lgkmcnt(0)\nv_writelane_b32 v255, s100, {lane}\ns_memtime s[100:101]\ns_waitcnt lgkmcnt(0)\nv_writelane_b32 v255, s100, {lane-16}")
    A.e(f"s_cmp_ge_u32 s2, 256\ns_cbranch_scc1 {done}")
    A.e(f"s_load_dwordx4 s[16:19], s[0:1], {ARG['dbg']*8}")
    A.e("s_load_dword s3, s[0:1], 0")
    def cpf():
        if not CPF: return
        A.e("buffer_load_dword v181, v180, s[8:11], 0 offen\ns_mov_b32 s12, 0x8000\nbuffer_load_dword v182, v180, s[8:11], s12 offen")
        if worker: A.e("s_lshr_b32 s12, s2, 3\ns_and_b32 s12, s12, 7\ns_add_u32 s12, s12, 2\ns_lshl_b32 s12, s12, 15\nbuffer_load_dword v183, v180, s[8:11], s12 offen")
    if CPF:
        pc0 = L("pc"); c0 = L("nocpf")
        A.e(f"s_getpc_b64 s[4:5]\n{pc0}:\ns_sub_u32 s8, s4, {pc0}-{name}\ns_subb_u32 s9, s5, 0\ns_and_b32 s9, s9, 0xffff\ns_mov_b32 s10, code_end-{name}\ns_mov_b32 s11, 0x20000")
        A.e(f"v_lshlrev_b32 v180, 7, v0\nv_cmp_gt_u32 vcc, 64, v0\ns_cbranch_vccnz {c0}")
        cpf()
        A.label(c0)
    A.e(f"""
    v_and_b32 v1, 63, v0
    v_lshrrev_b32 v2, 6, v0
    s_getreg_b32 s51, hwreg(HW_REG_XCC_ID)
    v_readfirstlane_b32 s50, v2        ; wave
    s_and_b32 s51, s51, 7
    s_waitcnt lgkmcnt(0)""")
    A.srd(20, 18, WS_BYTES)
    A.srd(44, 16, 256)
    A.e(f"s_mov_b32 s90, {BUDGET}\ns_mov_b32 s91, s50")
    rts(58)
    norole = L("norole"); setup = L("setup"); verify = L("verify"); loops = L("loops"); pre = L("pre"); post = L("post")
    A.e(f"""
    v_mov_b32 v187, {L_ROLE}
    s_cmp_lg_u32 s50, 0
    s_cbranch_scc1 {norole}
    s_mov_b64 exec, 1
    v_mov_b32 v184, 1
    v_mov_b32 v185, 0
    s_and_b32 s52, s51, 3
    s_lshl_b32 s52, s52, 2
    s_lshr_b32 s53, s51, 2
    s_lshl_b32 s53, s53, 7
    s_add_u32 s52, s52, s53
    buffer_atomic_add v184, v185, s[44:47], s52 offen sc0 sc1
    s_mov_b64 exec, -1""")
    cpf()
    A.e(f"""
    s_mov_b64 exec, 1
    s_waitcnt vmcnt({(2 + (1 if worker else 0)) if CPF else 0})
    ds_write_b32 v187, v184
    s_waitcnt lgkmcnt(0)
    s_mov_b64 exec, -1""")
    A.label(norole)
    A.e(f"""
    s_barrier
    ds_read_b32 v186, v187
    s_waitcnt lgkmcnt(0)
    v_readfirstlane_b32 s54, v186
    s_mov_b32 s56, 2
    s_lshl_b32 s57, s51, 5
    s_add_u32 s57, s57, s54
    s_cmp_lt_u32 s54, 32
    s_cselect_b32 s57, s57, 999
    s_cmp_ge_u32 s57, 256
    s_cbranch_scc1 {verify}
    s_cmp_ge_u32 s57, 128
    s_cbranch_scc1 {pre}""")
    slow = L("slowrole")
    def tickets(par):
        vp = L("vpoll"); vg = L("vgot"); vs = L("vslp")
        A.e(f"v_and_b32 v184, 3, v1\nv_bfe_u32 v185, v1, 2, 1\nv_lshlrev_b32 v184, 2, v184\nv_lshl_add_u32 v184, v185, 7, v184\nv_writelane_b32 v184, {DPAR}, 8\ns_mov_b64 exec, 0x1ff")
        A.label(vp)
        A.e("buffer_load_dword v185, v184, s[44:47], 0 offen sc1\ns_waitcnt vmcnt(0)")
        for x in range(8): A.e(f"v_readlane_b32 s{92+x}, v185, {x}")
        A.e("v_readlane_b32 s61, v185, 8\ns_add_u32 s64, s92, s93")
        for x in range(2, 8): A.e(f"s_add_u32 s64, s64, s{92+x}")
        A.e(f"""
        s_min_u32 s65, s92, s93
        s_min_u32 s66, s94, s95
        s_min_u32 s65, s65, s66
        s_min_u32 s66, s96, s97
        s_min_u32 s65, s65, s66
        s_min_u32 s66, s98, s99
        s_min_u32 s65, s65, s66
        s_cmp_lt_u32 s65, {33 if FORCE_SLOW else 32}
        s_cselect_b32 s65, 1, 0
        s_cmp_lt_u32 s64, 256
        s_cbranch_scc1 {vs}""")
        if par: A.e(f"s_or_b32 s66, s65, s61\ns_cmp_lg_u32 s66, 0\ns_cbranch_scc1 {vg}")
        else: A.e(f"s_branch {vg}")
        A.label(vs)
        A.e(f"s_sleep 8\ns_sub_u32 s90, s90, 1\ns_cmp_gt_i32 s90, 0\ns_cbranch_scc1 {vp}")
        A.label(vg)
        A.e("s_mov_b64 exec, -1\ns_and_b32 s61, s61, 1\ns_lshl_b32 s61, s61, 13")
    def slowid():
        A.e("s_mov_b32 s66, s54")
        for x in range(7):
            A.e(f"s_cmp_gt_u32 s51, {x}\ns_cselect_b32 s64, s{92+x}, 0\ns_add_u32 s66, s66, s64")
        if FORCE_SLOW: A.e("s_mul_i32 s66, s66, 37\ns_add_u32 s66, s66, 11\ns_and_b32 s66, s66, 255")
    def share(body, wv=0):
        n0 = L("sh0")
        A.e(f"v_mov_b32 v187, {L_ROLE}\ns_cmp_lg_u32 s50, {wv}\ns_cbranch_scc1 {n0}")
        body()
        A.e("v_mov_b32 v184, s65\nv_mov_b32 v185, s66\nv_mov_b32 v186, s61\nds_write_b96 v187, v[184:186] offset:16\ns_waitcnt lgkmcnt(0)")
        A.label(n0)
        A.e(f"""
        s_barrier
        ds_read_b96 v[184:186], v187 offset:16
        s_waitcnt lgkmcnt(0)
        v_readfirstlane_b32 s65, v184
        v_readfirstlane_b32 s66, v185
        v_readfirstlane_b32 s61, v186""")
    def doverify(par):
        def body(): tickets(par); slowid()
        share(body)
        A.e(f"s_cmp_lg_u32 s65, 0\ns_cbranch_scc1 {slow}\ns_mov_b32 s56, 0")
    def dpoll(srd, off, cond, sl=4, voff=None, lanes=None):
        lp_ = L("dp"); ok_ = L("dpok")
        if voff is None: A.e("v_mov_b32 v184, 0")
        if lanes: A.e(f"s_mov_b64 exec, {lanes:#x}")
        A.label(lp_)
        A.e(f"buffer_load_dword v185, v184, {srd}, {off} offen sc1\ns_waitcnt vmcnt(0)\n{cond}\ns_cbranch_vccz {ok_}\ns_sleep {sl}\ns_sub_u32 s90, s90, 1\ns_cmp_gt_i32 s90, 0\ns_cbranch_scc1 {lp_}")
        A.label(ok_)
        if lanes: A.e("s_mov_b64 exec, -1")
    def getpar():
        dpoll("s[44:47]", DPAR, "v_cmp_eq_u32 vcc, 0, v185")
        A.e("v_readfirstlane_b32 s65, v185\ns_and_b32 s65, s65, 1\ns_lshl_b32 s61, s65, 13")
    def arrive(v):
        A.e(f"s_and_b32 s64, s56, 1\ns_lshl_b32 s64, s64, 2\ns_add_u32 s64, s64, {DRDY}\ns_mov_b64 exec, 1\nv_mov_b32 v{v}, 1\nv_mov_b32 v185, 0\nbuffer_atomic_add v{v}, v185, s[44:47], s64 offen sc0 sc1\ns_mov_b64 exec, -1")
    def raiseall(v):
        na = L("narr"); np_ = L("nopar")
        A.e(f"v_readfirstlane_b32 s64, v{v}\ns_cmp_lg_u32 s64, {NRDY-1}\ns_cbranch_scc1 {na}\ns_mov_b32 s65, 0\ns_cmp_eq_u32 s56, 1\ns_cbranch_scc1 {np_}")
        getpar()
        A.label(np_)
        A.e(f"""
        s_add_u32 s65, s65, 2
        v_lshlrev_b32 v184, 7, v1
        v_mov_b32 v185, s65
        s_mov_b32 s64, {RFLG}
        s_mov_b32 s65, {RFLG + 8192}
        buffer_store_dword v185, v184, s[20:23], s64 offen sc1
        buffer_store_dword v185, v184, s[20:23], s65 offen sc1""")
        A.label(na)
    A.label(setup)
    rts(59)
    A.e(f"s_load_dwordx8 s[4:11], s[0:1], {ARG['mem0']*8}")
    A.e(f"s_load_dwordx2 s[12:13], s[0:1], {ARG['Wo']*8}")
    A.e(f"""
    v_and_b32 v3, 15, v1               ; lam
    v_lshrrev_b32 v4, 4, v1            ; g
    v_lshlrev_b32 v16, 4, v1           ; lane*16
    v_lshrrev_b32 v30, 2, v1
    v_and_b32 v31, 3, v1
    v_lshlrev_b32 v7, 13, v30
    v_lshl_add_u32 v7, v31, 4, v7
    v_lshlrev_b32 v8, 11, v30
    v_lshl_add_u32 v8, v31, 4, v8
    s_lshr_b32 s58, s57, 5             ; group x
    s_and_b32 s59, s57, 31             ; rank r
    s_xor_b32 s60, s57, {CPERM}
    s_lshl_b32 s60, s60, 6             ; E0 bytes
    s_lshl_b32 s61, s50, 14
    s_lshl_b32 s62, s50, 21
    s_add_u32 s62, s62, s60
    s_lshl_b32 s63, s58, 21
    s_lshl_b32 s64, s50, 19
    s_add_u32 s63, s63, s64
    s_xor_b32 s64, s59, {CPERM2}
    s_lshl_b32 s64, s64, 6
    s_add_u32 s63, s63, s64
    s_waitcnt lgkmcnt(0)""")
    A.srd(28, 8, 8 * MB); A.srd(32, 10, 8 * MB); A.srd(36, 6, 8 * MB); A.srd(40, 12, 8 * MB)
    A.srd(8, 4, 16384)
    A.e(f"""
    v_lshlrev_b32 v9, 7, v3
    v_lshl_add_u32 v10, v4, 11, v9
    v_lshl_add_u32 v9, v4, 13, v9
    s_lshl_b32 s64, s59, 2
    s_add_u32 s64, s64, s50
    s_lshl_b32 s65, s64, 16
    s_lshl_b32 s66, s58, 11
    s_add_u32 s65, s65, s66
    s_lshl_b32 s66, s64, 14
    s_lshl_b32 s67, s58, 21
    s_add_u32 s66, s66, s67""")
    def wpf(mat):
        if not WPF: return 0
        for h in range(2):
            if mat < 3: A.e(f"s_add_u32 s64, s65, {h*4*8192}\nbuffer_load_dword v{200+mat*2+h}, v9, s[{28+mat*4}:{31+mat*4}], s64 offen {PNT}")
            else: A.e(f"s_add_u32 s64, s66, {h*4*2048}\nbuffer_load_dword v{200+mat*2+h}, v10, s[40:43], s64 offen {PNT}")
        return 2
    def wissue(mat):
        buf = mat & 1
        for J in range(16):
            if mat < 3:
                A.e(f"s_add_u32 s64, s62, {J*16*8192}\ns_add_u32 m0, s61, {buf*65536+J*1024}\nbuffer_load_dwordx4 v7, s[{28+mat*4}:{31+mat*4}], s64 offen {WNT} lds")
            else:
                A.e(f"s_add_u32 s64, s63, {J*16*2048}\ns_add_u32 m0, s61, {buf*65536+J*1024}\nbuffer_load_dwordx4 v8, s[40:43], s64 offen {WNT} lds")
    def wread(base, addr, nch, tiles):
        for j in range(nch):
            for t in range(tiles):
                a = base + (j * tiles + t) * 8
                for R in range(2):
                    for h in range(2):
                        A.e(f"ds_read_b64_tr_b16 {ar(a+4*R+2*h,2)}, v{addr} offset:{(64*j + 32*R + 2*h)*64 + t*32}")
            if j % 2 == 1 or tiles == 2: A.e("s_waitcnt lgkmcnt(0)")
    if SLP:
        A.e(f"""
        v_and_b32 v9, 7, v1
        v_lshrrev_b32 v10, 3, v1
        s_cmp_eq_u32 s58, 3
        s_cselect_b32 s64, 15, 3
        v_mov_b32 v11, 3
        v_cmp_eq_u32 vcc, 1, v10
        v_cndmask_b32 v11, v11, 11, vcc
        v_lshlrev_b32 v12, 7, v11
        v_lshl_add_u32 v12, v9, 11, v12
        v_mov_b32 v13, s64
        v_cmp_eq_u32 vcc, 2, v10
        v_cndmask_b32 v11, v11, v13, vcc
        v_lshlrev_b32 v11, 7, v11
        v_lshl_add_u32 v11, v9, 13, v11""")
    def slp(mats):
        A.e("s_mov_b64 exec, 0xffffff")
        for m_ in mats:
            if m_ < 3: A.e(f"buffer_load_dword v{200+m_}, v11, s[{28+m_*4}:{31+m_*4}], s65 offen {PNT}")
            else: A.e(f"s_mov_b64 exec, 0xffff\nbuffer_load_dword v203, v12, s[40:43], s66 offen {PNT}")
        A.e("s_mov_b64 exec, -1")
        return len(mats)
    if SLP == 1: slp([0, 1, 2, 3])
    WQ = 32; ZERO = 100; RV = 204; VZP = 206
    for i in range(4): A.e(f"v_mov_b32 v{ZERO+i}, 0")
    A.e("s_mov_b32 s53, s65\ns_mov_b32 s55, s66")
    A.e(f"""
    v_and_b32 v22, 7, v3
    v_lshlrev_b32 v31, 11, v22
    v_lshl_add_u32 v31, v4, 4, v31
    s_lshr_b32 s64, s59, 3
    s_lshl_b32 s64, s64, 14
    s_and_b32 s65, s59, 7
    s_lshl_b32 s65, s65, 10
    s_add_u32 s64, s64, s65
    s_lshl_b32 s65, s58, 16
    s_add_u32 s64, s64, s65
    s_add_u32 s64, s64, {QB + 112*16384}
    s_lshr_b32 s65, s57, 3
    s_add_u32 s65, s65, 96
    s_lshl_b32 s65, s65, 14
    s_and_b32 s66, s57, 7
    s_lshl_b32 s66, s66, 10
    s_add_u32 s65, s65, s66
    s_add_u32 s65, s65, {QB}
    v_add_u32 v{VZP}, s64, v16
    v_add_u32 v{VZP+1}, s65, v16
    s_and_b32 s64, s50, 1
    s_lshl_b32 s64, s64, 21
    s_lshr_b32 s65, s50, 1
    s_lshl_b32 s65, s65, 13
    s_add_u32 s64, s64, s65
    buffer_store_dwordx4 {vr(ZERO,4)}, v{VZP}, s[20:23], s64 offen sc1
    buffer_store_dwordx4 {vr(ZERO,4)}, v{VZP+1}, s[20:23], s64 offen sc1
    s_lshl_b32 s64, s50, 20
    s_add_u32 s64, s64, {XLOC}
    s_cmp_lt_u32 s50, 2
    s_cselect_b32 s67, s64, {OOB:#x}
    s_lshl_b32 s65, s57, 10
    s_add_u32 s65, s65, {XQK}
    s_add_u32 s65, s65, s67
    buffer_store_dwordx4 {vr(ZERO,4)}, v16, s[20:23], s65 offen sc1
    s_lshl_b32 s65, s57, 9
    s_add_u32 s65, s65, s67
    s_add_u32 s66, s65, {XO}
    s_mov_b32 exec_hi, 0
    buffer_store_dwordx4 {vr(ZERO,4)}, v16, s[20:23], s65 offen sc1
    buffer_store_dwordx4 {vr(ZERO,4)}, v16, s[20:23], s66 offen sc1
    s_lshl_b32 s65, s57, 2
    s_add_u32 s65, s65, s64
    s_add_u32 s65, s65, {XHI}
    s_lshl_b32 s52, s57, 7
    s_add_u32 s52, s52, {RFLG}
    s_mov_b64 exec, 1
    buffer_store_dword v{ZERO}, v{ZERO}, s[20:23], s65 offen sc1
    buffer_store_dword v{ZERO}, v{ZERO}, s[20:23], s65 offen offset:512 sc1
    buffer_store_dword v{ZERO}, v{ZERO}, s[20:23], s52 offen sc1
    s_mov_b64 exec, -1""")
    A.e("s_mov_b32 s65, s53\ns_mov_b32 s66, s55")
    wissue(0)
    n_ = slp([1, 2, 3]) if SLP == 2 else 0
    wissue(1)
    A.e("s_lshl_b32 s64, s59, 6\nbuffer_load_dwordx4 v[216:219], v31, s[8:11], s64 offen")
    nz_ = 1
    def qissue(J0, J1):
        for J in range(J0, J1): A.e(f"s_add_u32 s64, s62, {J*16*8192}\nbuffer_load_dwordx4 {vr(WQ+4*J,4)}, v7, s[36:39], s64 offen {QNT}")
    qissue(0, NQE)
    rts(29)
    A.e(f"""
    v_lshrrev_b32 v184, 3, v3            ; r'>>1
    v_bfe_u32 v185, v3, 2, 1             ; r'&1
    v_lshrrev_b32 v186, 1, v4            ; gB>>1
    v_and_b32 v187, 1, v4                ; gB&1
    v_lshl_add_u32 v188, v184, 3, v185
    v_lshl_add_u32 v188, v186, 4, v188
    v_lshl_add_u32 v188, v187, 2, v188
    v_lshl_add_u32 v189, v184, 2, v185
    v_lshl_add_u32 v189, v186, 3, v189
    v_lshl_add_u32 v189, v187, 4, v189
    v_and_b32 v187, 3, v3                ; c'
    v_lshlrev_b32 v187, 3, v187
    v_lshl_add_u32 v188, v188, 6, v187
    v_lshl_add_u32 v189, v189, 6, v187
    s_lshr_b32 s64, s50, 1
    s_lshl_b32 s64, s64, 5               ; tile (w>>1) * 32B
    v_add_u32 v190, s64, v188
    v_add_u32 v191, 0x10000, v190
    s_lshl_b32 s64, s64, 10
    v_add_u32 v192, s64, v189
    s_add_u32 s64, s61, 0x10000
    v_add_u32 v193, s64, v16
    s_add_u32 s68, s50, 1""")
    s1 = L("ws"); s3 = L("ws"); s4 = L("ws"); s5 = L("ws"); rq = L("rq"); rqb = L("rqb")
    A.e(f"s_mov_b32 s69, 0\ns_waitcnt vmcnt({n_ + 16 + nz_ + NQE})")
    A.e("s_barrier")
    rts(30)
    if XW:
        A.e(f"""
        s_lshl_b32 s64, s57, 9
        v_mov_b32 v194, s64
        s_add_u32 s65, s64, {XO - 512}
        v_mov_b32 v195, s65
        v_cmp_lt_u32 vcc, 3, v1
        v_cndmask_b32 v194, v194, v195, vcc
        s_lshl_b32 s65, s57, 10
        s_add_u32 s65, s65, {XQK - 1024}
        v_mov_b32 v195, s65
        v_cmp_lt_u32 vcc, 7, v1
        v_cndmask_b32 v194, v194, v195, vcc
        s_lshl_b32 s65, s57, 11
        s_add_u32 s65, s65, {XKT - 2048}
        v_mov_b32 v195, s65
        v_cmp_lt_u32 vcc, 15, v1
        v_cndmask_b32 v194, v194, v195, vcc
        v_lshl_add_u32 v194, v1, 7, v194
        s_lshl_b32 s65, s58, 7
        s_add_u32 s65, s65, {XHI}
        v_writelane_b32 v194, s65, 32
        s_add_u32 s65, s65, 512
        v_writelane_b32 v194, s65, 33
        s_lshl_b32 s64, s50, 20
        s_add_u32 s64, s64, {XLOC}
        s_mov_b32 exec_hi, 3
        buffer_load_dword v183, v194, s[20:23], s64 offen sc1
        s_mov_b64 exec, -1""")
    A.e(f"s_cmp_lg_u32 s50, 1\ns_cbranch_scc1 {s5}")
    arrive(RV)
    A.label(s5)
    A.e(f"s_bitcmp1_b32 s68, 1\ns_cbranch_scc0 {s1}")
    A.label(rq)
    wread(0, 190, 16, 1)
    A.e(f"s_cmp_lg_u32 s69, 0\ns_cbranch_scc1 {rqb}")
    A.label(s1)
    qissue(NQE, 16)
    A.e("s_barrier")
    for J in range(16): A.e(f"s_add_u32 s64, s63, {J*16*2048}\ns_add_u32 m0, s61, {J*1024}\nbuffer_load_dwordx4 v8, s[40:43], s64 offen {ONT} lds")
    A.e(f"s_waitcnt vmcnt(32)\ns_barrier"); rts(31)
    A.e(f"s_bitcmp1_b32 s68, 1\ns_cbranch_scc0 {s3}")
    wread(128, 191, 16, 1)
    A.label(s3)
    A.e("s_waitcnt vmcnt(16)\ns_barrier")
    for J in range(16): A.e(f"ds_write_b128 v193, {vr(WQ+4*J,4)} offset:{J*1024}")
    A.e(f"s_mov_b32 s69, 1\nv_mov_b32 v190, v191\ns_waitcnt lgkmcnt(0)\ns_barrier"); rts(32)
    A.e(f"s_bitcmp1_b32 s68, 1\ns_cbranch_scc0 {rq}")
    A.label(rqb)
    A.e(f"s_waitcnt vmcnt(0)\ns_barrier\ns_bitcmp1_b32 s68, 1\ns_cbranch_scc1 {s4}")
    wread(128, 192, 8, 2)
    A.label(s4)
    rts(60)
    def started():
        lp_ = L("stl"); ok_ = L("stok")
        if DWT: A.e(f"s_mov_b64 exec, 1\nv_mov_b32 v184, 1\nv_mov_b32 v185, 0\ns_mov_b32 s64, {DWT}\nbuffer_atomic_add v184, v185, s[44:47], s64 offen sc1\ns_mov_b64 exec, -1")
        raiseall(RV)
        A.e("s_mov_b32 s53, 0")
        A.label(lp_)
        A.e(f"""
        v_mov_b32 v184, 0
        buffer_load_dword v185, v184, s[20:23], s52 offen sc1
        s_waitcnt vmcnt(0)
        v_readfirstlane_b32 s64, v185
        s_mov_b32 s65, 0
        s_and_b32 s61, s64, 1
        s_lshl_b32 s61, s61, 13
        s_cmp_lg_u32 s64, 0
        s_cbranch_scc1 {ok_}
        s_sub_u32 s90, s90, 1
        s_cmp_lt_i32 s90, 0
        s_cbranch_scc1 {ok_}
        s_add_u32 s53, s53, 1
        s_and_b32 s64, s53, 31
        s_cbranch_scc1 {lp_}
        s_cmp_eq_u32 s56, 1
        s_cbranch_scc1 {lp_}""")
        tickets(False); slowid()
        A.e(f"s_cmp_eq_u32 s65, 0\ns_cbranch_scc1 {lp_}")
        A.label(ok_)
    share(started, 1)
    A.e(f"s_cmp_lg_u32 s65, 0\ns_cbranch_scc1 {slow}\ns_and_b32 s56, s56, 1\ns_branch {loops}")
    A.label(pre)
    rts(50)
    A.e("s_sub_u32 s55, s57, 128")
    start.m1_ln1_loads(A, 55, XCNT, XFLG)
    rts(51)
    start.m1_compute(A, 55, lambda: rts(52))
    rts(53)
    def dbgadd(off_expr):
        nk = L("nadd")
        A.e(f"s_cmp_lg_u32 s50, 0\ns_cbranch_scc1 {nk}\ns_mov_b64 exec, 1\nv_mov_b32 v184, 1\nv_mov_b32 v185, 0\n{off_expr}\nbuffer_atomic_add v184, v185, s[44:47], s52 offen sc1\ns_mov_b64 exec, -1")
        A.label(nk)
    nl = L("notlast")
    A.e(f"""
    s_cmp_lg_u32 s50, 0
    s_cbranch_scc1 {post}
    s_mov_b64 exec, 1
    v_mov_b32 v184, 1
    v_mov_b32 v185, 0
    s_and_b32 s52, s56, 1
    s_lshl_b32 s52, s52, 2
    s_add_u32 s52, s52, {DM1F}
    buffer_atomic_add v184, v185, s[44:47], s52 offen sc0 sc1
    s_waitcnt vmcnt(0)
    v_readfirstlane_b32 s64, v184
    s_mov_b64 exec, -1
    s_cmp_eq_u32 s56, 1
    s_cbranch_scc1 {post}
    s_cmp_lg_u32 s64, 127
    s_cbranch_scc1 {post}""")
    tickets(False)
    A.e(f"""
    s_cmp_lg_u32 s65, 0
    s_cbranch_scc1 {post}
    v_lshlrev_b32 v184, 7, v1
    v_mov_b32 v185, 1
    s_mov_b32 s64, {XFLG}
    s_mov_b32 s65, {XFLG + 8192}
    buffer_store_dword v185, v184, s[20:23], s64 offen sc1
    buffer_store_dword v185, v184, s[20:23], s65 offen sc1
    s_branch {post}""")
    A.label(verify)
    doverify(False)
    A.e(f"s_branch {done}")
    A.label(slow)
    A.e(f"s_mov_b32 s57, s66\ns_mov_b32 s56, 1\ns_waitcnt vmcnt(0)\ns_barrier\ns_cmp_ge_u32 s57, 128\ns_cbranch_scc1 {pre}")
    dbgadd(f"s_mov_b32 s52, {DM1S}")
    A.e(f"s_branch {setup}")
    A.label(post)
    wk = L("nomeas")
    if PFW:
        npf = L("npf")
        A.e(f"""
        s_cmp_lt_u32 s55, 16
        s_cbranch_scc1 {npf}
        s_cmp_eq_u32 s55, 127
        s_cbranch_scc1 {npf}
        s_load_dwordx2 s[64:65], s[0:1], {ARG['Wo']*8}
        s_load_dwordx2 s[66:67], s[0:1], {ARG['Wq']*8}
        s_sub_u32 s52, s55, 16
        s_lshl_b32 s52, s52, 2
        s_add_u32 s52, s52, s50
        s_lshl_b32 s52, s52, 13
        v_lshlrev_b32 v184, 7, v1
        s_waitcnt lgkmcnt(0)""")
        A.srd(68, 64, 8 * MB); A.srd(72, 66, 8 * MB)
        for m_ in PFW:
            for k_ in range(3): A.e(f"s_add_u32 s53, s52, {k_*444*8192}\nbuffer_load_dword v{240+k_}, v184, s[{68 if m_ == 'o' else 72}:{71 if m_ == 'o' else 75}], s53 offen")
        A.label(npf)
    A.e(f"""
    s_sub_u32 s65, s57, 255
    s_and_b32 s66, s56, 1
    s_or_b32 s65, s65, s66
    s_or_b32 s65, s65, s50
    s_cmp_lg_u32 s65, 0
    s_cbranch_scc1 {wk}
    s_mov_b64 exec, 1
    v_mov_b32 v184, 0
    s_mov_b32 s52, {XMEAS}
    s_mov_b32 s53, {XMEAS+8192}
    s_mov_b32 s70, 0x7fffffff
    s_mov_b32 s71, 0x7fffffff""")
    for rep in range(4):
        for (so, acc) in ((52, 70), (53, 71)):
            A.e(f"""
            s_memtime s[72:73]
            s_waitcnt lgkmcnt(0)
            buffer_store_dword v184, v184, s[20:23], s{so} offen sc1
            s_waitcnt vmcnt(0)
            s_memtime s[74:75]
            s_waitcnt lgkmcnt(0)
            s_sub_u32 s74, s74, s72
            s_min_u32 s{acc}, s{acc}, s74""")
    A.e(f"""
    s_cmp_gt_u32 s71, s70
    s_cselect_b32 s65, 3, 2
    v_mov_b32 v185, s65
    buffer_store_dword v185, v184, s[44:47], {DPAR} offen sc1
    s_mov_b64 exec, -1""")
    A.label(wk)
    rts(54)
    start.ln1_stats(A)
    rts(55)
    def m1wait():
        sl_ = L("m1s"); lp_ = L("m1l"); ok_ = L("m1ok")
        A.e(f"s_mov_b32 s65, 0\ns_cmp_eq_u32 s56, 1\ns_cbranch_scc1 {sl_}\ns_lshl_b32 s52, s55, 7\ns_add_u32 s52, s52, {XFLG}\ns_mov_b32 s53, 0")
        A.label(lp_)
        A.e(f"""
        v_mov_b32 v184, 0
        buffer_load_dword v185, v184, s[20:23], s52 offen sc1
        s_waitcnt vmcnt(0)
        v_readfirstlane_b32 s64, v185
        s_mov_b32 s65, 0
        s_cmp_eq_u32 s64, 1
        s_cbranch_scc1 {ok_}
        s_sub_u32 s90, s90, 1
        s_cmp_lt_i32 s90, 0
        s_cbranch_scc1 {ok_}
        s_add_u32 s53, s53, 1
        s_and_b32 s64, s53, 31
        s_cbranch_scc1 {lp_}""")
        tickets(False); slowid()
        A.e(f"s_cmp_eq_u32 s65, 0\ns_cbranch_scc1 {lp_}\ns_branch {ok_}")
        A.label(sl_)
        A.e(f"s_mov_b32 s53, 256\ns_mov_b32 s52, {DM1S}")
        dpoll("s[44:47]", "s52", "v_cmp_ne_u32 vcc, s53, v185", 8)
        A.label(ok_)
    share(m1wait)
    A.e(f"s_cmp_lg_u32 s65, 0\ns_cbranch_scc1 {slow}\ns_and_b32 s56, s56, 1")
    rts(56)
    start.ln1_finish(A)
    rts(57)
    if PROF: A.e(f"s_lshl_b32 s64, s57, 2\ns_add_u32 s64, s64, s50\ns_lshl_b32 s64, s64, 8\ns_add_u32 s64, s64, {241*MB}\nv_lshlrev_b32 v184, 2, v1\nbuffer_store_dword v255, v184, s[20:23], s64 offen")
    A.e("s_waitcnt vmcnt(0)\ns_barrier")
    def fin0():
        n1_ = L("nodln"); np_ = L("nopar")
        A.e(f"s_cmp_ge_u32 s55, 16\ns_cbranch_scc1 {n1_}")
        arrive(184)
        A.e("s_waitcnt vmcnt(0)")
        raiseall(184)
        A.label(n1_)
        A.e(f"s_mov_b32 s61, 0\ns_cmp_eq_u32 s56, 1\ns_cbranch_scc1 {np_}")
        getpar()
        A.label(np_)
    share(fin0)
    nsig = L("nsig")
    A.e(f"s_sub_u32 s55, s57, 128\ns_cmp_lg_u32 s50, 0\ns_cbranch_scc1 {nsig}\ns_lshr_b32 s95, s55, 4\ns_lshl_b32 s95, s95, 6\ns_add_u32 s95, s95, {XTC + CLN*64}")
    A.e(f"s_mov_b64 exec, 1\nv_mov_b32 v184, {CTGT // 16}\nv_mov_b32 v185, 0\nbuffer_atomic_add v184, v185, s[20:23], s95 offen sc1\ns_mov_b64 exec, -1")
    A.label(nsig)
    A.e(f"s_branch {wexit}")

    A.label(loops)
    V16, VHL, VHS, VIDX, VQP, VSEL, VLM, VFL, VST, VH, VOUT = 16, 18, 13, 14, 19, 15, 24, 21, 25, 20, 17
    VG = 26
    GB = 32; KTF = 96; VT = 128; VM = 136; PM = 144; PF = 148; ONE = 152; NEGC = 156; SD = 160; KVM = 172
    ACC = 176; ACB = 184; BACC = 192; OUT = 208; T = 216; HP = 248; HF = 64; ZERO = 100
    SP, SS = "s[24:27]", "s[28:31]"
    sQ2 = 12; IMM = ('E',); STN = ((), ('k0', 'v0'), ('k1', 'v1'), ())
    sSL, sSO, sSN, sSR, sPS, sPR, sQO, sKV, sH, sSPF = 70, 71, 72, 73, 74, 75, 76, 77, 78, 80
    rts(62)
    A.e(f"s_lshl_b32 s64, s50, 14")
    for q in range(4):
        A.e(f"s_add_u32 m0, s64, {q*4096}\ns_add_u32 s65, s64, {WS['h'] + q*4096}")
        for i in range(4): A.e(f"buffer_load_dwordx4 v{V16}, s[20:23], s65 offen offset:{i*1024} lds")
    rts(38)
    A.e(f"""
    s_mov_b64 s[24:25], s[20:21]
    s_mov_b64 s[28:29], s[20:21]
    s_mov_b32 s27, 0x20000
    s_mov_b32 s31, 0x20000
    s_cmp_eq_u32 s56, 0
    s_cselect_b32 s26, s22, 0
    s_cselect_b32 s30, 0, s22
    s_lshl_b32 s64, s58, 14
    s_add_u32 s64, s64, {XLOC}
    v_add_u32 v{VG}, s64, v{V16}
    v_add_u32 v{VG+1}, 4096, v{VG}
    v_add_u32 v{VG+2}, 8192, v{VG}
    v_add_u32 v{VG+3}, 12288, v{VG}
    s_lshl_b32 s65, s59, 9
    s_add_u32 s66, s64, s65
    s_lshl_b32 s64, s58, 7
    s_add_u32 s64, s64, {XLOC + XHI}
    v_and_b32 v{VHL}, 31, v1
    v_lshl_add_u32 v{VHL}, v{VHL}, 2, s64
    s_lshl_b32 s65, s59, 2
    s_add_u32 s64, s64, s65
    v_mov_b32 v{VHS}, s64
    v_mov_b32 v{VIDX}, 0x4444
    v_mov_b32 v22, 0xeeee
    v_cmp_lt_u32 vcc, 7, v3
    v_cndmask_b32 v{VIDX}, v{VIDX}, v22, vcc
    v_and_b32 v22, 1, v3
    v_cmp_eq_u32 vcc, 0, v22
    v_mov_b32 v{VSEL}, 0x03020706
    v_mov_b32 v23, 0x05040100
    v_cndmask_b32 v{VSEL}, v{VSEL}, v23, vcc
    v_lshlrev_b32 v{VQP}, 5, v22
    v_lshl_add_u32 v{VQP}, v4, 6, v{VQP}
    v_lshrrev_b32 v23, 1, v3
    v_lshl_add_u32 v{VQP}, v23, 2, v{VQP}
    s_lshl_b32 s67, s57, 10
    s_add_u32 s67, s67, {XLOC + XQK}
    s_lshl_b32 s64, s50, 2
    s_lshr_b32 s64, 0x1320, s64
    s_and_b32 s64, s64, 3
    s_lshl_b32 s64, s64, 8
    s_add_u32 s64, s64, s67
    v_add_u32 v{VQP}, s64, v{VQP}
    v_add_u32 v{VLM}, {LB}, v{V16}
    v_mov_b32 v{VFL}, {LFL}
    v_mov_b32 v{VST}, 0
    v_mov_b32 v{VH}, v{V16}
    v_and_b32 v22, 1, v4
    v_lshrrev_b32 v23, 1, v4
    v_lshl_add_u32 v23, v23, 4, v3
    v_lshlrev_b32 v23, 4, v23
    v_lshl_add_u32 v23, v22, 10, v23
    s_lshr_b32 s64, s50, 1
    s_lshl_b32 s64, s64, 9
    v_add_u32 v23, s64, v23
    s_lshr_b32 s64, s57, 2             ; head
    s_add_u32 s65, s64, 32
    s_lshl_b32 s65, s65, 14
    s_and_b32 s68, s57, 3
    s_lshl_b32 s68, s68, 11            ; c*2K
    s_add_u32 s65, s65, s68
    s_add_u32 s65, s65, {QB}
    v_add_u32 v{VOUT}, s65, v23
    s_lshl_b32 s69, s57, 11
    s_add_u32 s69, s69, {XLOC + XKT}
    v_add_u32 v2, s69, v23
    s_mov_b32 s81, {f2u(SCL):#x}
    s_mov_b32 s84, {HALF:#x}
    s_mov_b32 s85, {HALF:#x}
    s_mov_b32 s86, 0x33333333
    s_mov_b32 s87, 0x33333333
    s_mov_b32 s62, 0x10000
    s_mov_b32 s79, -2
    ds_write_b32 v{VFL}, v{VST}
    ds_write_b32 v{VFL}, v{VST} offset:4
    ds_write_b32 v{VFL}, v{VST} offset:8
    ds_write_b32 v{VFL}, v{VST} offset:12
    ds_write_b32 v{VFL}, v{VST} offset:16
    ds_write_b32 v{VFL}, v{VST} offset:24
    ds_write_b32 v{VFL}, v{VST} offset:28""")
    VKT = 2
    for i in range(4): A.e(f"v_mov_b32 v{ZERO+i}, 0")
    def pub(instr):
        A.e(instr.replace("{S}", SP))
    def pub2(instr):
        if not DBG & 32: A.e(instr.replace("{S}", SS) + " sc1")
    VP = 8
    A.e(f"""
    s_lshr_b32 s64, s59, 3
    s_lshl_b32 s64, s64, 14
    s_and_b32 s65, s59, 7
    s_lshl_b32 s65, s65, 10
    s_add_u32 s64, s64, s65
    s_lshl_b32 s65, s58, 16
    s_add_u32 s64, s64, s65
    s_add_u32 s64, s64, {QB + 112*16384}
    v_add_u32 v{VP}, s64, v{V16}""")

    def book(w, d):
        A.e(f"""
        s_add_u32 s63, s79, {d}
        s_and_b32 s64, s63, 3
        s_lshl_b32 s{sSL}, s64, 20
        s_add_u32 s65, s63, 2
        s_and_b32 s65, s65, 3
        s_lshl_b32 s{sSR}, s65, 20
        s_add_u32 s55, s63, 3
        s_lshl_b32 s{sH}, s55, 16
        s_add_u32 s{sH}, s{sH}, {WS['h']}
        s_cmp_lt_u32 s55, {nsteps}
        s_cselect_b32 s{sH}, s{sH}, {OOB:#x}""")
        for (dd, reg) in ((1, sQO), (2, sQ2)):
            if not any((SPOS[n] in IMM) == (dd == 2) for n in STN[w]): continue
            A.e(f"""
            s_add_u32 s60, s63, {dd}
            s_lshl_b32 s{reg}, s60, 21
            s_lshl_b32 s55, s60, 13
            s_and_b32 s55, s55, 0x2000
            s_xor_b32 s55, s55, s61
            s_add_u32 s{reg}, s{reg}, s55
            s_cmp_lt_u32 s60, {nsteps}
            s_cselect_b32 s{reg}, s{reg}, {OOB:#x}""")
            if DBG & 16: A.e(f"s_mov_b32 s{reg}, s61")
        if w in (0, 3):
            A.e(f"s_add_u32 s{sSO}, s{sSL}, {XO}\ns_add_u32 s60, s63, 1\ns_and_b32 s60, s60, 3\ns_lshl_b32 s{sSN}, s60, 20")
            for i in range(8): A.e(f"v_mov_b32 v{ACB+i}, 0")
        if w == 0:
            A.e(f"s_lshl_b32 s{sKV}, s63, 21\ns_lshl_b32 s55, s63, 13\ns_and_b32 s55, s55, 0x2000\ns_xor_b32 s55, s55, s61\ns_add_u32 s{sKV}, s{sKV}, s55")
            if DBG & 16: A.e(f"s_mov_b32 s{sKV}, s61")
        if w == 3:
            A.e(f"s_lshl_b32 s{sPS}, s63, 21\ns_lshl_b32 s55, s63, 13\ns_and_b32 s55, s55, 0x2000\ns_xor_b32 s55, s55, s61\ns_add_u32 s{sPS}, s{sPS}, s55")
        if w == 1 and SPOS['sig'] is None: A.e(f"s_add_u32 s{sSO}, s{sSR}, {XO}")
        elif w == 1:
            A.e(f"""
            s_sub_u32 s55, s63, {SIGLAG}
            s_lshl_b32 s{sKV}, s55, 4
            s_add_u32 s{sKV}, s{sKV}, {XTC + CR0*64}
            s_and_b32 s55, s55, 0x80000003
            s_or_b32 s55, s55, s57
            s_cmp_eq_u32 s55, 0
            s_cselect_b32 s{sKV}, s{sKV}, {OOB:#x}
            s_add_u32 s{sSO}, s{sSR}, {XO}""")
        if w == 2:
            A.e(f"s_add_u32 s55, s63, {SPFD}\ns_min_u32 s55, s55, {nsteps-1}\ns_lshl_b32 s55, s55, 16\ns_lshl_b32 s60, s59, 11\ns_add_u32 s{sSPF}, s55, s60\ns_add_u32 s{sSPF}, s{sSPF}, {WS['h']}")
        for i in range(8 if w in (1, 2) else 4): A.e(f"v_mov_b32 v{ACC+i}, 0")
    tail = []
    nst = [0]
    def stamp():
        if PROF and PROF != 3: A.e(f"{'s_memrealtime' if PROF == 2 else 's_memtime'} s[{32+2*nst[0]}:{33+2*nst[0]}]"); nst[0] += 1
    def accum():
        if not PROF or PROF == 3: return
        A.e("s_waitcnt lgkmcnt(0)")
        n = nst[0]; sk = L("nacc")
        if PSEL: A.e(f"s_sub_u32 s64, s79, {PSEL[0]}\ns_cmp_ge_u32 s64, {PSEL[1] - PSEL[0]}\ns_cbranch_scc1 {sk}")
        A.e(f"s_sub_u32 s64, s32, s82\ns_add_u32 s92, s92, s64")
        for k in range(1, n): A.e(f"s_sub_u32 s64, s{32+2*k}, s{30+2*k}\ns_add_u32 s{92+k}, s{92+k}, s64")
        A.label(sk)
        A.e(f"s_mov_b32 s82, s{32+2*(n-1)}")
        nst[0] = 0
    def hintpoll(so, off, TH, NO):
        hl = L("hl"); hg = L("hg")
        need = (32 * TH + 99) // 100
        ld = lambda k: f"buffer_load_dword v{HP+k}, v{VHL}, s[20:23], s{so} offen offset:{off} sc1"
        for k in range(NO - 1): A.e(ld(k)); delay(200 // NO - 12)
        A.label(hl)
        for k in range(NO):
            A.e(ld((k + NO - 1) % NO))
            A.e(f"s_waitcnt vmcnt({NO-1})\nv_cmp_eq_u32 vcc, v{VST}, v{HP+k}\ns_bcnt1_i32_b32 s64, vcc_lo\ns_cmp_ge_u32 s64, {need}\ns_cbranch_scc1 {hg}")
        A.e(f"s_sub_u32 s90, s90, 1\ns_cmp_gt_i32 s90, 0\ns_cbranch_scc1 {hl}")
        A.label(hg)
    def waitflag(off):
        wf = L("wf")
        A.label(wf)
        A.e(f"ds_read_b32 v23, v{VFL} offset:{off}\ns_sub_u32 s90, s90, 1\ns_waitcnt lgkmcnt(0)\nv_cmp_ne_u32 vcc, v23, v{VST}\ns_cmp_lt_i32 s90, 0\ns_cselect_b64 vcc, 0, vcc\ns_cbranch_vccnz {wf}")
    def gather(n, c0, work):
        base = GB; cg = CGB
        def ld(j): return f"buffer_load_dwordx4 {vr(base+4*j,4)}, v{VG + ((j+c0)>>2)}, s[20:23], s{sSO} offen offset:{((j+c0)&3)*1024} sc1"
        hintpoll(sSL, 512, THO, NOO)
        stamp()
        tb = base + 4 * n
        def ld2(j): return ld(j).replace(vr(base+4*j,4), vr(tb+4*j,4))
        m0_ = min(n, UPB)
        for j in range(m0_): A.e(ld(j))
        A.e("s_mov_b32 s68, 0")
        ng = n // cg
        def mins(b):
            regs = list(range(b, b + 4 * cg)); o = [f"v_min3_u32 v22, v{regs[0]}, v{regs[1]}, v{regs[2]}"]; regs = regs[3:]
            while len(regs) >= 2: o.append(f"v_min3_u32 v22, v22, v{regs[0]}, v{regs[1]}"); regs = regs[2:]
            if regs: o.append(f"v_min_u32 v22, v22, v{regs[0]}")
            return o
        issued = m0_; miss = []
        for g in range(ng):
            b = base + 4 * g * cg
            W = []
            last = g * cg + cg - 1
            A.e(f"s_waitcnt vmcnt({issued-1-last})")
            for j in range(g * cg, last + 1): W += work(j)
            F = mins(b) + [f"v_cmp_eq_u32 s[{52+2*(g&1)}:{53+2*(g&1)}], 0, v22"]
            if g > 0:
                ms = L("ms"); bk = L("bk"); miss.append((ms, bk, g - 1))
                F = F[:1] + [f"s_cmp_lg_u64 s[{52+2*((g-1)&1)}:{53+2*((g-1)&1)}], 0", f"s_cbranch_scc1 {ms}\n{bk}:"] + F[1:]
            for _ in range(cg):
                if issued < n: F = [ld(issued)] + F; issued += 1
            A.interleave(W, F, 0, len(W))
        assert issued == n and m0_ == n
        fin = L("fin"); rl = L("rl")
        ms = L("ms"); bk = L("bk"); miss.append((ms, bk, ng - 1)); rl2 = L("rl2")
        A.e(f"s_cmp_lg_u64 s[{52+2*((ng-1)&1)}:{53+2*((ng-1)&1)}], 0\ns_cbranch_scc1 {ms}\n{bk}:\ns_cmp_lg_u32 s68, 0\ns_cbranch_scc1 {rl2}")
        A.label(fin)
        stamp()
        def deferred():
            for (ms, bk, g) in miss:
                A.label(ms)
                A.e("s_waitcnt vmcnt(0)")
                for j in range(g * cg, g * cg + cg): A.e(ld2(j))
                A.e(f"s_bitset1_b32 s68, {g}\ns_branch {bk}")
            def scan(body):
                for j in range(ng):
                    sk = L("sk")
                    A.e(f"s_bitcmp1_b32 s68, {j}\ns_cbranch_scc0 {sk}")
                    body(j)
                    A.label(sk)
            A.label(rl)
            scan(lambda g: [A.e(ld2(j)) for j in range(g * cg, g * cg + cg)])
            A.label(rl2)
            A.e(f"s_sub_u32 s90, s90, 1\ns_cmp_lt_i32 s90, 0\ns_cbranch_scc1 {fin}\ns_waitcnt vmcnt(0)")
            def proc(g):
                b = base + 4 * g * cg; t = tb + 4 * g * cg
                nb = L("nb")
                for x in mins(t): A.e(x)
                A.e(f"v_cmp_eq_u32 vcc, 0, v22")
                for r in range(4 * cg): A.e(f"v_xor_b32 v{t+r}, v{b+r}, v{t+r}")
                A.e(f"s_cbranch_vccnz {nb}\ns_bitset0_b32 s68, {g}")
                for j in range(g * cg, g * cg + cg):
                    for x in work(j): A.e(x.replace(vr(base+4*j,4), vr(tb+4*j,4)))
                A.label(nb)
            scan(proc)
            A.e(f"s_cmp_lg_u32 s68, 0\ns_cbranch_scc1 {rl}\ns_nop 2\ns_branch {fin}")
        tail.append(deferred)
    QP = "quad_perm:[1,0,3,2] row_mask:0xf bank_mask:0xf"
    QP2 = "quad_perm:[2,3,0,1] row_mask:0xf bank_mask:0xf"
    DPP8 = "row_ror:8 row_mask:0xf bank_mask:0xf"
    cnts = {(1, 1): N1, (1, 2): N1, (2, 1): N2, (2, 2): N2, ('A', 3): NA, ('S', 3): NB3, ('B', 0): NC}
    assert sum(cnts.values()) == 64, sum(cnts.values())
    start_ = {}; p = 0
    for k_, n_ in cnts.items(): start_[k_] = p; p += n_
    def dmas(win, w):
        n = cnts.get((win, w), 0); p = start_.get((win, w), 0); o = []
        for i in range(n):
            if i % 4 == 0: o.append([f"s_add_u32 m0, s62, {(p+i)*1024}", f"s_add_u32 s69, s{sH}, {(p+i)*1024}"])
            if not DBG & 4: o.append([f"buffer_load_dwordx4 v{V16}, s[20:23], s69 offen offset:{(i%4)*1024} lds"])
        return o
    def dmaburst(win, w):
        for x in dmas(win, w):
            for y in x: A.e(y)
            if "lds" in x[0]: delay(GA)
    def slows(w, pos):
        so = []
        for k_, n in enumerate(STN[w]):
            p_ = SPOS[n]; imm = p_ in IMM
            if p_ == pos or (pos == 'def' and not imm) or (pos == 'imm' and p_ == 'P'):
                if not ((DBG & 8) and pos not in ('def', 'imm')): so.append(f"buffer_store_dwordx4 {vr(OUT+4*k_,4)}, v{12 if k_ else VOUT}, s[20:23], s{sQ2 if imm else sQO} offen sc1")
        if w == 1 and worker and SPOS['sig'] == pos: so.append(f"s_mov_b64 exec, 1\nbuffer_store_dword v10, v11, s[20:23], s{sKV} offen sc1\ns_mov_b64 exec, -1")
        return so
    def combine2(a):
        return f"""
        v_permlane32_swap_b32 v{a}, v{a+2}
        v_permlane32_swap_b32 v{a+1}, v{a+3}
        v_add_f32 v{a}, v{a}, v{a+2}
        v_add_f32 v{a+1}, v{a+1}, v{a+3}
        v_cvt_pk_bf16_f32 v{T}, v{a}, v{a+1}"""
    def phaseA(w):
        A.e("s_barrier")
        stamp()
        hintpoll(sSL, 0, THM, NOM)
        stamp()
        own = [4 * w + j for j in range(4)]
        ld = lambda c: f"buffer_load_dwordx4 {vr(GB+4*c,4)}, v{VG + (c>>2)}, s[20:23], s{sSL} offen offset:{(c&3)*1024} sc1"
        sm = lambda c, t=0: f"v_smfmac_f32_16x16x64_bf16 {vr(ACC+t*4,4)}, {vr(GB+c*4,4)}, {ar(t*128+c*8,8)}, v{VIDX}"
        rt = L("art"); bk = L("abk")
        def body():
            for c in own: A.e(ld(c))
            for j, c in enumerate(own):
                b = GB + 4 * c
                A.e(f"s_waitcnt vmcnt({3-j})\nds_write_b128 v{VLM}, {vr(b,4)} offset:{LM+c*1024}")
                A.e(f"v_min3_u32 v22, v{b}, v{b+1}, v{b+2}\nv_min_u32 v22, v22, v{b+3}" if j == 0 else f"v_min3_u32 v22, v22, v{b}, v{b+1}\nv_min3_u32 v22, v22, v{b+2}, v{b+3}")
            A.e(f"v_cmp_eq_u32 vcc, 0, v22\ns_cbranch_vccnz {rt}")
        body()
        A.label(bk)
        def retry():
            A.label(rt)
            A.e(f"s_sub_u32 s90, s90, 1\ns_cmp_lt_i32 s90, 0\ns_cbranch_scc1 {bk}")
            body()
            A.e(f"s_branch {bk}")
        tail.append(retry)
        A.e(sm(own[0]))
        A.e("s_waitcnt lgkmcnt(0)\ns_barrier")
        stamp()
        oth = [c % 16 for c in range(4 * w + 4, 4 * w + 16)]
        R_ = [f"ds_read_b128 {vr(GB+4*c,4)}, v{VLM} offset:{LM+c*1024}" for c in oth]
        for x in R_[:4]: A.e(x)
        for x in slows(w, 'A'): A.e(x)
        A.interleave([sm(c) for c in own[1:]], R_[4:10], 0, 3)
        k = 10
        for i, c in enumerate(oth):
            A.e(f"s_waitcnt lgkmcnt({min(k, 12) - 1 - i})")
            A.e(sm(c))
            if k < 12: A.e(R_[k]); k += 1
        if w in (1, 2): A.e(sm(0, 1)); A.e(sm(1, 1))
        A.e(combine2(ACC))
        A.e(f"v_mov_b32_dpp v{T+1}, v{T} {QP}\nv_perm_b32 v{T}, v{T+1}, v{T}, v{VSEL}\nv_max_u32 v{T}, 1, v{T}")
        st = f"buffer_store_dword v{T}, v{VQP}, {{S}}, s{sSL} offen"
        pub(st); pub2(st)
        stamp()
        if w in (1, 2):
            for c in range(2, 16): A.e(sm(c, 1))
            A.e(combine2(ACC + 4))
            A.e(f"v_max_u32 v{T}, 1, v{T}\nds_write_b32 v31, v{T}\nds_write_b32 v{VFL}, v{VST} offset:{4*(w-1)}")
    def bg(w, pro=False):
        ex = L("bgx")
        if not pro: A.e(f"s_cmp_ge_i32 s79, {nsteps-2}\ns_cbranch_scc1 {ex}")
        skipi = len(A.lines) - 1
        nm = 2; NRD = NRD2
        rd = lambda i: f"ds_read_b128 {vr(HF+(i%NRD)*4,4)}, v{VH} offset:{i*1024}" if not (DBG & 1 and i >= NRD) else "s_nop 0"
        pos = {}
        d1 = dmas(1, w); d2 = dmas(2, w)
        if pro: d1 = d2 = []
        sc = lambda p: p if nm == 2 else p - 16
        for i, x in enumerate(d1): pos.setdefault(max(0, sc(P1[0]) + i * (P1[1] - P1[0]) // len(d1)), []).extend(x)
        for i, x in enumerate(d2): pos.setdefault(P2[0] + i * (P2[1] - P2[0]) // len(d2), []).extend(x)
        ints = []
        for p_ in range(128):
            x = slows(w, p_)
            if x: pos.setdefault(p_, []).extend(x); ints += x
        vfl = f"ds_write_b32 v{VFL}, v{VST} offset:{24 + 4*(w-1)}"
        if ints or not pro:
            sk = L("bgsk")
            def skipped():
                A.label(sk)
                for x in ints: A.e(x)
                A.e(f"s_waitcnt vmcnt(0)\n{vfl}\ns_branch {ex}")
            tail.append(skipped)
            A.lines[skipi] = f"    s_cbranch_scc1 {sk}"
        for i in range(NRD - 1): A.e(rd(i))
        for i in range(64):
            if nm == 2 or i % 2 == 0: A.e(f"s_waitcnt lgkmcnt({max(0, min(NRD-2, 63-i) - (2-nm))})")
            for t in range(nm):
                d = vr(BACC + (t * 2 + (i & 1)) * 4, 4)
                wr = ar(t * 128 + (i >> 1) * 4, 4); hr = vr(HF + (i % NRD) * 4, 4)
                A.e(f"v_mfma_f32_16x16x32_bf16 {d}, {wr if t == 0 else hr}, {hr if t == 0 else wr}, {d if i > 1 else 0}" if not (DBG & 2 and i >= 4) else "s_nop 2")
                if t == 0 and i + NRD - 1 < 64: A.e(rd(i + NRD - 1))
                for x in pos.pop(nm * i + t, []): A.e(x)
                if PC: A.e(f"s_nop {PC-1}")
        for k in sorted(pos):
            for x in pos[k]: A.e(x)
            delay(24)
        if not pro:
            assert not ints and SPOS['v0'] == SPOS['v1'] == 'A'
            A.e(f"s_waitcnt vmcnt({N1 + N2})\n{vfl}")
        A.e(f"v_xor_b32 v{VH}, 0x10000, v{VH}\ns_xor_b32 s62, s62, 0x10000")
        if nm == 2: A.e(f"s_lshr_b32 s64, s{sSR}, 9\nv_add_u32 v22, s64, v{VLM}")
        for i in range(4 * nm): A.e(f"v_cvt_pk_bf16_f32 v{OUT+i}, v{BACC+2*i}, v{BACC+2*i+1}")
        A.e(f"v_permlane16_swap_b32 v{OUT}, v{OUT+2}\nv_permlane16_swap_b32 v{OUT+1}, v{OUT+3}")
        st = f"buffer_store_dwordx4 {vr(OUT,4)}, v{VKT}, {{S}}, s{sSR} offen"
        pub(st); pub2(st)
        if nm == 2: A.e(f"ds_write_b128 v22, {vr(OUT+4,4)} offset:{LVT+(w-1)*1024}")
        for x in slows(w, 'E'): A.e(x)
        A.label(ex)
    smb = lambda j: [f"v_smfmac_f32_16x16x64_bf16 {vr(ACB+t*4,4)}, {vr(GB+j*4,4)}, {ar(128+(j*2+t)*8,8)}, v{VIDX}" for t in range(2)]
    def combineB():
        a_ = ACB
        for r in range(4): A.e(f"v_permlane32_swap_b32 v{a_+r}, v{a_+4+r}")
        A.e(f"v_pk_add_f32 {vr(a_,2)}, {vr(a_,2)}, {vr(a_+4,2)}\nv_pk_add_f32 {vr(a_+2,2)}, {vr(a_+2,2)}, {vr(a_+6,2)}")
    end = L("end")
    lab = [L("w0"), L("w1"), L("w2"), L("w3")]
    A.e(f"s_cmp_eq_u32 s50, 3\ns_cbranch_scc1 {lab[3]}\ns_cmp_eq_u32 s50, 1\ns_cbranch_scc1 {lab[1]}\ns_cmp_eq_u32 s50, 2\ns_cbranch_scc1 {lab[2]}")
    def gom(w, lp, pre_loop=None):
        A.e(f"v_mov_b32 v{VST}, 1\ns_waitcnt vmcnt({len(slows(w, 'E'))}) lgkmcnt(0)\ns_barrier")
        if pre_loop: pre_loop()
        rts(61)
        if PROF:
            A.e(f"{'s_memrealtime' if PROF == 2 else 's_memtime'} s[82:83]\ns_waitcnt lgkmcnt(0)")
            for k in range(10): A.e(f"s_mov_b32 s{92+k}, 0")
        A.e(f"s_branch {lp}")
    def prologue(w, lp):
        book(w, 0)
        rts(33)
        A.e(f"s_waitcnt vmcnt(0) lgkmcnt(0)")
        l1 = L("pn1"); l2 = L("pn2")
        A.label(l1)
        A.e("s_barrier")
        rts(34)
        bg(w, True)
        book(w, 1)
        A.e(f"s_add_u32 s79, s79, 1\ns_cmp_eq_u32 s79, 0\ns_cbranch_scc1 {l2}")
        for x in slows(w, 'def'): A.e(x)
        rts(35)
        A.e(f"s_waitcnt lgkmcnt(0)\ns_branch {l1}")
        A.label(l2)
        rts(37)
        gom(w, lp)
    def prologue03(w, lp, pre_loop=None):
        def hl(sg):
            for q in range(8):
                o_ = (w // 3) * 32768 + q * 4096
                A.e(f"s_mov_b32 m0, {o_ + (sg & 1) * 65536}\ns_mov_b32 s65, {WS['h'] + sg*65536 + o_}")
                for i in range(4): A.e(f"buffer_load_dwordx4 v{V16}, s[20:23], s65 offen offset:{i*1024} lds")
        A.e("s_waitcnt vmcnt(0) lgkmcnt(0)\ns_barrier")
        hl(1)
        for st_ in range(2 + (w // 3) * 3, 5 + (w // 3) * 3):
            A.e(f"s_xor_b32 s64, s61, {(st_ << 21) + ((st_ & 1) << 13)}")
            for k_ in range(2): A.e(f"buffer_store_dwordx4 {vr(ZERO,4)}, v{VZP+k_}, s[20:23], s64 offen sc1")
        A.e("s_waitcnt vmcnt(6)\ns_barrier")
        hl(2)
        A.e("s_mov_b32 s79, 0")
        book(w, 0)
        gom(w, lp, pre_loop)
    def flush():
        for f in tail: f()
        tail.clear()
    A.label(lab[0])
    VX = 8; VK = (2, 5, 6, 7); VOP = 30; VMR = 31; VKR = 12; VKO = 3
    A.e(f"""
    v_and_b32 v22, 7, v3               ; m
    v_lshrrev_b32 v23, 2, v22
    v_and_b32 v5, 2, v22
    v_or_b32 v23, v23, v5
    v_and_b32 v5, 1, v22
    v_lshl_add_u32 v23, v23, 1, v5     ; pos
    v_lshlrev_b32 v23, 5, v23
    v_lshrrev_b32 v5, 3, v3
    v_lshl_add_u32 v23, v5, 9, v23
    v_lshrrev_b32 v5, 1, v4
    v_lshl_add_u32 v23, v5, 8, v23
    v_and_b32 v5, 1, v4
    v_lshl_add_u32 v23, v5, 4, v23
    v_add_u32 v{VX}, s67, v23
    v_xor_b32 v{VX+1}, 1024, v{VX}
    v_xor_b32 v{VX+2}, 2048, v{VX}
    v_xor_b32 v{VX+3}, 3072, v{VX}
    v_lshlrev_b32 v{VMR}, 4, v3
    v_lshl_add_u32 v{VMR}, v5, 3, v{VMR}
    v_add_u32 v{VMR}, {LB + LVM}, v{VMR}
    v_lshl_add_u32 v23, v4, 3, v22
    v_lshlrev_b32 v23, 4, v23
    v_add_u32 v{VKR}, {LB + LVM}, v23
    v_add_u32 v{VOP}, s66, v23
    v_cmp_gt_u32 vcc, 8, v3
    v_cmp_lt_u32 s[52:53], 1, v4
    s_and_b64 vcc, vcc, s[52:53]
    v_mov_b32 v22, {f2u(-1e30):#x}
    v_cndmask_b32 v{NEGC}, v22, 0, vcc
    v_mov_b32 v{NEGC+1}, v{NEGC}
    v_mov_b32 v{NEGC+2}, v{NEGC}
    v_mov_b32 v{NEGC+3}, v{NEGC}
    v_add_u32 v{VK[0]}, s69, v{V16}
    v_xor_b32 v{VK[1]}, 2048, v{VK[0]}
    v_xor_b32 v{VK[2]}, 4096, v{VK[0]}
    v_xor_b32 v{VK[3]}, 6144, v{VK[0]}
    s_lshr_b32 s64, s57, 3
    s_add_u32 s64, s64, 96
    s_lshl_b32 s64, s64, 14
    s_and_b32 s65, s57, 7
    s_lshl_b32 s65, s65, 10
    s_add_u32 s64, s64, s65
    s_add_u32 s64, s64, {QB}
    v_add_u32 v{VKO}, s64, v{V16}""")
    for i in range(12): A.e(f"v_mov_b32 v{VM+i}, 0")
    for i in range(4): A.e(f"v_mov_b32 v{ONE+i}, 0x3f803f80")
    f0 = L("first"); A.e(f"s_branch {f0}")
    lp = L("loop"); pn = L("pn")
    A.label(lp)
    phaseA(0)
    ktl = lambda so: [f"buffer_load_dwordx4 {vr(KTF+(p*2+i)*4,4)}, v{VK[p]}, s[20:23], s{so} offen offset:{i*1024} sc1" for p in range(4) for i in range(2)]
    k0 = L("kt0"); k0b = L("kt0b")
    A.e(f"s_lshr_b32 s64, s{sSL}, 9\nv_add_u32 v22, s64, v{VLM}\ns_cmp_eq_u32 s79, 0\nds_read_b128 {vr(VT,4)}, v22 offset:{LVT}\nds_read_b128 {vr(VT+4,4)}, v22 offset:{LVT+1024}\ns_cbranch_scc1 {k0}")
    A.label(k0b)
    def kt0():
        A.label(k0)
        for x in ktl(sSL): A.e(x)
        A.e(f"s_branch {k0b}")
    tail.append(kt0)
    delay(D2 - 24)
    def ldq(k): return [f"buffer_load_dwordx4 {vr(GB+k*16+p*4,4)}, v{VX+p}, s[20:23], s{sSL} offen sc1" for p in range(4)]
    sp = L("scp"); sok = L("scok")
    for k in range(NF2 - 1):
        for x in ldq(k): A.e(x)
        delay(200 // NF2 - 60)
    A.label(sp)
    for k in range(NF2):
        for x in ldq((k + NF2 - 1) % NF2): A.e(x)
        b = GB + k * 16
        M = []
        for p in range(4):
            M.append(f"v_mfma_f32_16x16x32_bf16 {vr(SD+8,4)}, {vr(b+p*4,4)}, {vr(b+p*4,4)}, {vr(SD+8,4) if p else vr(NEGC,4)}")
            for i in (1, 0): M.append(f"v_mfma_f32_16x16x32_bf16 {vr(SD+i*4,4)}, {vr(KTF+(p*2+i)*4,4)}, {vr(b+p*4,4)}, {vr(SD+i*4,4) if p else 0}")
        C = [f"v_min3_u32 v22, v{b}, v{b+1}, v{b+2}"] + [f"v_min3_u32 v22, v22, v{b+i}, v{b+i+1}" for i in range(3, 15, 2)] + [f"v_min_u32 v22, v22, v{b+15}", f"v_cmp_eq_u32 vcc, 0, v22"]
        A.e(f"s_waitcnt vmcnt({4*(NF2-1)})")
        nx = L("nx")
        A.interleave(M[:5], C, 0, 5)
        A.e(f"s_cbranch_vccnz {nx}")
        A.interleave(M[5:], [f"v_mov_b32 v{KVM+i}, v{b+i}" for i in range(4)], 0, 4)
        A.e(f"s_nop 1\ns_branch {sok}")
        A.label(nx)
    A.e(f"s_sub_u32 s90, s90, 1\ns_cmp_gt_i32 s90, 0\ns_cbranch_scc1 {sp}\ns_nop 7")
    A.label(sok)
    last0 = L("last0")
    vmr = f"ds_read_b64 {vr(T+4,2)}, v{VFL}\nds_read_b64 {vr(VM,2)}, v{VMR}\nds_read_b64 {vr(VM+4,2)}, v{VMR} offset:256"
    A.e(vmr)
    A.e(f"s_cmp_eq_u32 s79, {nsteps-1}\ns_cbranch_scc1 {last0}")
    stamp()
    if NB3: A.e(f"ds_write_b32 v{VFL}, v{VST} offset:16")
    mx = T; OD = T + 8; SM = T + 16
    A.e(f"v_max3_f32 v{mx}, v{SD+8}, v{SD+9}, v{SD+10}")
    for i in range(4): A.e(f"v_mov_b32_dpp v{SD+i}, v{SD+4+i} row_ror:8 row_mask:0xf bank_mask:0xc")
    A.e(f"""
    v_max3_f32 v{mx+1}, v{SD+11}, v{SD}, v{SD+1}
    v_max3_f32 v{mx}, v{mx}, v{SD+2}, v{SD+3}
    v_max_f32 v{mx}, v{mx}, v{mx+1}
    v_max_f32_dpp v{mx}, v{mx}, v{mx} {DPP8}
    v_mov_b32 v{mx+1}, v{mx}
    v_permlane16_swap_b32 v{mx+1}, v{mx}
    v_max_f32 v{mx}, v{mx}, v{mx+1}
    v_mov_b32 v{mx+1}, v{mx}
    v_permlane32_swap_b32 v{mx+1}, v{mx}
    v_max_f32 v{mx}, v{mx}, v{mx+1}
    v_mul_f32 v{mx}, s81, v{mx}""")
    vals = [SD, SD + 1, SD + 2, SD + 3, SD + 8, SD + 9, SD + 10, SD + 11]
    for v in vals: A.e(f"v_fma_f32 v{v}, v{v}, s81, -v{mx}")
    for v in vals: A.e(f"v_exp_f32 v{v}, v{v}")
    A.e(f"""
    v_cvt_pk_bf16_f32 v{PF}, v{SD}, v{SD+1}
    v_cvt_pk_bf16_f32 v{PF+1}, v{SD+2}, v{SD+3}
    v_cvt_pk_bf16_f32 v{PM}, v{SD+8}, v{SD+9}
    v_mov_b32_dpp v{PF+2}, v{PF} {DPP8}
    v_mov_b32_dpp v{PF+3}, v{PF+1} {DPP8}
    v_cvt_pk_bf16_f32 v{PM+1}, v{SD+10}, v{SD+11}
    s_waitcnt lgkmcnt(0)
    v_min_u32 v{T+4}, v{T+4}, v{T+5}
    v_mfma_f32_16x16x32_bf16 {vr(SM,4)}, {vr(ONE,4)}, {vr(PF,4)}, 0
    v_cmp_ne_u32 vcc, v{T+4}, v{VST}
    v_mfma_f32_16x16x32_bf16 {vr(SM,4)}, {vr(ONE,4)}, {vr(PM,4)}, {vr(SM,4)}""")
    for tt in range(2): A.e(f"v_mfma_f32_16x16x32_bf16 {vr(OD+tt*4,4)}, {vr(VT+tt*4,4)}, {vr(PF,4)}, 0")
    vw = L("vw"); vb = L("vb")
    A.e(f"s_cbranch_vccnz {vw}")
    A.label(vb)
    for tt in range(2): A.e(f"v_mfma_f32_16x16x32_bf16 {vr(OD+tt*4,4)}, {vr(VM+tt*4,4)}, {vr(PM,4)}, {vr(OD+tt*4,4)}")
    def vwait():
        A.label(vw)
        waitflag(0); waitflag(4)
        A.e(vmr); A.e(f"s_waitcnt lgkmcnt(0)\ns_branch {vb}")
    tail.append(vwait)
    A.e(f"s_mov_b64 exec, s[84:85]\nv_rcp_f32 v{SM+4}, v{SM}")
    for i in range(4): A.e(f"v_pk_mul_f32 {vr(OD+2*i,2)}, {vr(OD+2*i,2)}, {vr(SM+4,2)} op_sel_hi:[1,0]")
    for i in range(4): A.e(f"v_cvt_pk_bf16_f32 v{T+i}, v{OD+2*i}, v{OD+1+2*i}")
    for i in range(4): A.e(f"v_max_u32 v{T+i}, 1, v{T+i}")
    st = f"buffer_store_dwordx4 {vr(T,4)}, v{VOP}, {{S}}, s{sSO} offen"; sh = f"buffer_store_dword v{VST}, v{VHS}, {{S}}, s{sSL} offen offset:512"
    pub(st); pub2(st); A.e("s_mov_b64 exec, 1"); pub(sh); pub2(sh)
    A.e(f"s_mov_b64 exec, -1\nds_write_b32 v{VFL}, v{VST} offset:8")
    stamp()
    gather(8, 0, smb)
    combineB()
    A.e(f"ds_write_b128 v{VLM}, {vr(ACB,4)} offset:{LBP}\nds_write_b32 v{VFL}, v{VST} offset:12")
    def kvmstore():
        A.e(f"s_mov_b64 exec, s[84:85]\nds_read_b128 {vr(KVM,4)}, v{VKR}\ns_mov_b64 exec, -1")
    kvmstore()
    A.e(f"ds_read_b64 {vr(T+4,2)}, v{VFL} offset:24")
    for x in ktl(sSN): A.e(x)
    v2w = L("v2w"); v2b = L("v2b")
    A.e(f"s_waitcnt lgkmcnt(0)\nv_min_u32 v{T+4}, v{T+4}, v{T+5}\nv_cmp_ne_u32 vcc, v{T+4}, v{VST}\ns_cbranch_vccnz {v2w}")
    A.label(v2b)
    def v2wait():
        A.label(v2w)
        waitflag(24); waitflag(28)
        A.e(f"s_branch {v2b}")
    tail.append(v2wait)
    A.e(f"buffer_store_dwordx4 {vr(KVM,4)}, v{VKO}, s[20:23], s{sKV} offen sc1")
    dmaburst('B', 0)
    A.e("s_xor_b32 s62, s62, 0x10000")
    stamp()
    book(0, 1)
    accum()
    if PROF == 3: A.e("s_memrealtime s[100:101]\ns_waitcnt lgkmcnt(0)\ns_mov_b32 m0, s79\nv_writelane_b32 v254, s100, m0")
    A.e(f"s_add_u32 s79, s79, 1\nv_add_u32 v{VST}, 1, v{VST}\ns_waitcnt vmcnt(0) lgkmcnt(0)\ns_branch {lp}")
    A.label(last0)
    waitflag(0); waitflag(4)
    kvmstore()
    A.e(f"s_waitcnt lgkmcnt(0)\nbuffer_store_dwordx4 {vr(KVM,4)}, v{VKO}, s[20:23], s{sKV} offen sc1\ns_branch {end}")
    flush()
    A.label(f0); prologue03(0, lp)
    for w in (1, 2):
        A.label(lab[w])
        A.e(f"""
        s_lshr_b32 s64, s57, 2
        s_add_u32 s64, s64, 64
        s_lshl_b32 s64, s64, 14
        s_add_u32 s64, s64, s68
        s_add_u32 s64, s64, {QB + (w-1)*1024}
        v_add_u32 v12, s64, v{V16}
        v_and_b32 v22, 1, v4
        v_lshrrev_b32 v23, 1, v4
        v_lshl_add_u32 v22, v22, 1, v23
        v_lshlrev_b32 v22, 2, v22
        v_lshl_add_u32 v22, v3, 4, v22
        v_add_u32 v31, {LB + LVM + (w-1)*256}, v22""")
        if w == 1: A.e(f"v_add_u32 v8, s66, v{V16}\nv_add_u32 v9, s67, v{V16}\nv_mov_b32 v10, {CTGT}\nv_mov_b32 v11, 0")
        f0 = L("first"); A.e(f"s_branch {f0}")
        lp = L("loop"); pn = L("pn")
        A.label(lp)
        phaseA(w)
        A.e(f"s_cmp_eq_u32 s79, {nsteps-1}\ns_cbranch_scc1 {end}")
        stamp()
        bg(w)
        if w == 1:
            for x in slows(1, 'X'): A.e(x)
            for f in (pub, pub2): f(f"buffer_store_dwordx4 {vr(ZERO,4)}, v9, {{S}}, s{sSR} offen")
            A.e("s_mov_b32 exec_hi, 0")
            for f in (pub, pub2):
                f(f"buffer_store_dwordx4 {vr(ZERO,4)}, v8, {{S}}, s{sSR} offen"); f(f"buffer_store_dwordx4 {vr(ZERO,4)}, v8, {{S}}, s{sSO} offen")
            A.e("s_mov_b64 exec, -1")
        A.e("s_waitcnt lgkmcnt(0)")
        stamp()
        accum()
        if w == 2:
            ck = L("late"); ckb = L("lateb")
            A.e(f"s_andn2_b32 s64, s79, 0x14\ns_cmp_eq_u32 s64, 2\ns_cbranch_scc1 {ck}")
            A.label(ckb)
            def late():
                A.label(ck)
                A.e(f"s_cmp_eq_u32 s79, 22\ns_cbranch_scc1 {ckb}")
                A.e(f"v_lshlrev_b32 v184, 2, v{V16}\ns_mov_b32 s52, {XTC + CLN*64}\ns_mov_b32 s53, {CTGT}")
                A.e("s_lshr_b32 s64, s79, 4\ns_lshl_b32 s64, 0x100, s64\ns_cmp_eq_u32 s79, 2\ns_cselect_b32 exec_lo, 0xff, s64\ns_mov_b32 exec_hi, 0")
                dpoll("s[20:23]", "s52", "v_cmp_ne_u32 vcc, s53, v185", 2, voff=1)
                A.e("s_mov_b64 exec, -1")
                A.e(f"s_branch {ckb}")
            tail.append(late)
        if w == 2 and not DBG & 64:
            for r in range(32): A.e(f"s_buffer_load_dword s48, s[20:23], s{sSPF} offset:{r*64}")
        book(w, 1)
        A.e(f"s_add_u32 s79, s79, 1\nv_add_u32 v{VST}, 1, v{VST}\ns_waitcnt vmcnt(0)\ns_branch {lp}")
        flush()
        A.label(f0); prologue(w, lp)
    A.label(lab[3])
    VMP = 30
    A.e(f"""
    v_xor_b32 v{VP+1}, 0x10000, v{VP}
    v_xor_b32 v{VP+2}, 0x20000, v{VP}
    v_xor_b32 v{VP+3}, 0x30000, v{VP}
    v_and_b32 v22, 2, v4
    v_lshrrev_b32 v23, 3, v3
    v_add_u32 v22, v22, v23            ; 2tt + (q>>1)
    v_lshlrev_b32 v22, 3, v22
    v_and_b32 v23, 1, v4
    v_lshl_add_u32 v22, v23, 2, v22
    v_and_b32 v23, 3, v3
    v_add_u32 v22, v22, v23
    v_lshlrev_b32 v22, 4, v22
    v_bfe_u32 v23, v3, 2, 1
    v_lshl_add_u32 v22, v23, 3, v22
    v_add_u32 v{VMP}, s66, v22
    v_and_b32 v22, 7, v3
    v_lshl_add_u32 v12, v4, 3, v22
    v_lshlrev_b32 v12, 4, v12
    v_add_u32 v12, s66, v12""")
    f0 = L("first"); A.e(f"s_branch {f0}")
    lp = L("loop"); pn = L("pn")
    A.label(lp)
    phaseA(3)
    A.e(f"s_cmp_eq_u32 s79, {nsteps-1}\ns_cbranch_scc1 {end}")
    if NA: delay(DA); dmaburst('A', 3)
    if NB3: waitflag(16); dmaburst('S', 3)
    A.e("s_xor_b32 s62, s62, 0x10000")
    stamp()
    waitflag(8)
    gather(8, 8, smb)
    combineB()
    wf = L("wf")
    A.label(wf)
    A.e(f"ds_read_b32 v23, v{VFL} offset:12\nds_read_b128 {vr(T,4)}, v{VLM} offset:{LBP}\ns_sub_u32 s90, s90, 1\ns_waitcnt lgkmcnt(0)\nv_cmp_ne_u32 vcc, v23, v{VST}\ns_cmp_lt_i32 s90, 0\ns_cselect_b64 vcc, 0, vcc")
    A.e(f"v_pk_add_f32 {vr(T,2)}, {vr(T,2)}, {vr(ACB,2)}\nv_pk_add_f32 {vr(T+2,2)}, {vr(T+2,2)}, {vr(ACB+2,2)}\ns_cbranch_vccnz {wf}")
    for i in range(4): A.e(f"v_max_u32 v{T+i}, 1, v{T+i}")
    A.e(f"buffer_store_dwordx4 {vr(T,4)}, v{VP}, s[20:23], s{sPS} offen sc1")
    stamp()
    A.e(f"s_mov_b32 s88, s{sPS}\ns_mov_b32 s89, s{sSN}\nv_add_u32 v{VST}, 1, v{VST}")
    book(3, 1)
    delay(max(0, DP - 170))
    pp_ = L("pp"); pok = L("pok")
    A.label(pp_)
    for p in range(3): A.e(f"buffer_load_dwordx4 {vr(GB+p*4,4)}, v{VP+1+p}, s[20:23], s88 offen sc1")
    b = GB
    A.e(f"s_waitcnt vmcnt(2)\nv_min3_u32 v22, v{b}, v{b+1}, v{b+2}\nv_pk_add_f32 {vr(T+4,2)}, {vr(T,2)}, {vr(b,2)}\nv_pk_add_f32 {vr(T+6,2)}, {vr(T+2,2)}, {vr(b+2,2)}\ns_waitcnt vmcnt(0)")
    for i in range(3, 11, 2): A.e(f"v_min3_u32 v22, v22, v{b+i}, v{b+i+1}")
    A.e(f"""
    v_min_u32 v22, v22, v{b+11}
    v_pk_add_f32 {vr(b+4,2)}, {vr(b+4,2)}, {vr(b+8,2)}
    v_cmp_eq_u32 vcc, 0, v22
    v_pk_add_f32 {vr(b+6,2)}, {vr(b+6,2)}, {vr(b+10,2)}
    s_cbranch_vccz {pok}
    s_sub_u32 s90, s90, 1
    s_cmp_gt_i32 s90, 0
    s_cbranch_scc1 {pp_}""")
    A.label(pok)
    stamp()
    A.e(f"""
    v_pk_add_f32 {vr(T+4,2)}, {vr(T+4,2)}, {vr(b+4,2)}
    v_pk_add_f32 {vr(T+6,2)}, {vr(T+6,2)}, {vr(b+6,2)}
    s_mov_b64 vcc, s[86:87]
    v_cvt_pk_bf16_f32 v{T}, v{T+4}, v{T+5}
    v_cvt_pk_bf16_f32 v{T+1}, v{T+6}, v{T+7}
    v_mov_b32_dpp v{T+2}, v{T} {QP}
    v_mov_b32_dpp v{T+3}, v{T+1} {QP}
    v_perm_b32 v{T}, v{T+2}, v{T}, v{VSEL}
    v_perm_b32 v{T+1}, v{T+3}, v{T+1}, v{VSEL}
    v_cndmask_b32_dpp v{T+4}, v{T+1}, v{T}, vcc {QP2}
    s_not_b64 vcc, vcc
    v_cndmask_b32_dpp v{T+5}, v{T}, v{T+1}, vcc {QP2}
    v_max_u32 v{T+4}, 1, v{T+4}
    v_max_u32 v{T+5}, 1, v{T+5}""")
    st = f"buffer_store_dwordx2 {vr(T+4,2)}, v{VMP}, {{S}}, s89 offen"; sh = f"buffer_store_dword v{VST}, v{VHS}, {{S}}, s89 offen"
    pub(st); pub2(st); A.e("s_mov_b64 exec, 1"); pub(sh); pub2(sh); A.e("s_mov_b64 exec, -1")
    stamp()
    accum()
    A.e(f"s_add_u32 s79, s79, 1\ns_branch {lp}")
    flush()
    A.label(f0)
    def mem0pub():
        assert T == 216
        for i in range(4): A.e(f"v_max_u32 v{T+i}, 1, v{T+i}")
        A.e("s_mov_b64 exec, s[84:85]")
        st = f"buffer_store_dwordx4 {vr(T,4)}, v12, {{S}}, s{sSL} offen"; sh = f"buffer_store_dword v{VST}, v{VHS}, {{S}}, s{sSL} offen"
        pub(st); pub2(st); A.e("s_mov_b64 exec, 1"); pub(sh); pub2(sh); A.e("s_mov_b64 exec, -1")
    prologue03(3, lp, mem0pub)
    A.label(end)
    A.e("s_waitcnt vmcnt(0)\ns_barrier\ns_mov_b32 s50, s91")
    if PROF:
        for k in range(10): A.e(f"v_writelane_b32 v255, s{92+k}, {k}")
        rts(63)
        A.e(f"v_writelane_b32 v255, s90, 57\ns_lshl_b32 s64, s57, 2\ns_add_u32 s64, s64, s50\ns_lshl_b32 s64, s64, 8\ns_add_u32 s64, s64, {241*MB}\nv_lshrrev_b32 v5, 2, v{V16}\nbuffer_store_dword v255, v5, s[20:23], s64 offen")
        A.e(f"s_add_u32 s64, s64, {MB//2}\nbuffer_store_dword v254, v5, s[20:23], s64 offen")
    if after: A.e(f"s_branch {after}")
    A.label(done)
    A.e("s_endpgm")
    if worker: return
    A.label("code_end")
    A.end_kernel(512, 102, 256)
    return dict(grid=256, block=256, lds=160 * 1024)
```

```python
from asmgen import *
from layout import *
from gemm import load_ptr, f2u
from small import red_c
LOG2E = 1.4426950408889634
NT = 'nt'; NTX = ''
X0 = 8; XF = 40; SC = 104; SH = 168
def m1_ln1_loads(A, idx, zbase, flg):
    A.e(f"s_load_dwordx4 s[4:7], s[0:1], {ARG['c']*8}")
    load_ptr(A, 8, ARG["x"])
    A.e(f"""
    v_and_b32 v1, 63, v0
    v_lshrrev_b32 v2, 6, v0            ; wave
    v_and_b32 v3, 7, v0                ; cc
    v_lshrrev_b32 v4, 3, v0            ; r0
    v_mul_u32_u24 v5, {6144*2}, v4
    v_lshl_add_u32 v5, v3, 4, v5
    v_lshlrev_b32 v6, 1, v4
    s_and_b32 s24, s{idx}, 31
    s_lshr_b32 s25, s{idx}, 5
    s_lshl_b32 s26, s24, 7
    s_mul_i32 s27, s25, {256*6144*2}
    s_add_u32 s26, s26, s27
    s_lshl_b32 s27, s25, 9
    s_waitcnt lgkmcnt(0)""")
    A.srd(12, 4, 2048); A.srd(28, 6, 1024 * 6144 * 2); A.srd(32, 8, S * D * 2)
    for j in range(8):
        A.e(f"buffer_load_dwordx4 {vr(64+4*j,4)}, v5, s[28:31], s26 offen {NT}")
        if j < 7: A.e(f"s_add_u32 s26, s26, {32*6144*2}")
    for j in range(8): A.e(f"buffer_load_ushort v{96+j}, v6, s[12:15], s27 offen offset:{j*64}")
    A.e(f"""
    v_and_b32 v3, 3, v1                ; t
    v_lshrrev_b32 v4, 2, v1            ; c
    v_lshl_add_u32 v5, v2, 2, v3
    v_lshlrev_b32 v5, 11, v5
    v_lshl_add_u32 v5, v4, 5, v5       ; x offset
    s_lshl_b32 s36, s{idx}, 15""")
    for i in range(4):
        for q in range(2): A.e(f"buffer_load_dwordx4 {vr(X0+i*8+q*4,4)}, v5, s[32:35], s36 offen offset:{i*512+q*16} {NTX}")
    A.e(f"""
    v_lshrrev_b32 v6, 1, v4
    v_lshlrev_b32 v6, 11, v6
    v_and_b32 v7, 1, v4
    v_lshl_add_u32 v6, v7, 9, v6
    v_and_b32 v7, 1, v2
    v_lshl_add_u32 v6, v7, 10, v6
    v_lshrrev_b32 v7, 1, v2
    v_lshl_add_u32 v7, v7, 2, v3
    v_lshl_add_u32 v6, v7, 4, v6       ; h offset
    v_lshlrev_b32 v4, 6, v4
    s_lshr_b32 s37, s{idx}, 1
    s_lshl_b32 s37, s37, 16
    s_and_b32 s38, s{idx}, 1
    s_lshl_b32 s38, s38, 7
    s_add_u32 s37, s37, s38
    s_add_u32 s37, s37, {WS['h']}
    s_mov_b32 s38, {f2u(-LOG2E):#x}
    s_mov_b32 s39, 0xffff0000""")
    nz = A.newlabel("nz")
    A.e(f"""
    s_cmp_lg_u32 s50, 1
    s_cbranch_scc1 {nz}
    s_lshl_b32 s40, s{idx}, 9
    s_add_u32 s40, s40, {zbase}
    v_lshl_add_u32 v104, v1, 4, s40
    s_lshl_b32 s41, s{idx}, 7
    s_add_u32 s41, s41, {flg}
    v_writelane_b32 v104, s41, 32
    v_mov_b32 v108, 0
    v_mov_b32 v109, 0
    v_mov_b32 v110, 0
    v_mov_b32 v111, 0
    s_mov_b32 exec_hi, 1
    buffer_store_dwordx4 v[108:111], v104, s[20:23], 0 offen sc1
    s_mov_b64 exec, -1""")
    A.label(nz)
def m1_compute(A, idx, hook=None):
    for i in range(8): A.e(f"v_mov_b32 v{112+i}, 0")
    A.e("s_waitcnt vmcnt(8)")
    if hook: hook()
    for j in range(8):
        c = 96 + j
        A.e(f"v_lshlrev_b32 v{c}, 16, v{c}\nv_mul_f32 v104, s38, v{c}\nv_exp_f32 v104, v104\nv_add_f32 v104, 1.0, v104\nv_rcp_f32 v104, v104\nv_mul_f32 v104, v104, v{c}\nv_cvt_pk_bf16_f32 v104, v104, v104\nv_and_b32 v{c}, s39, v104")
        for k in range(4):
            w = 64 + 4 * j + k
            A.e(f"v_lshlrev_b32 v105, 16, v{w}\nv_and_b32 v106, s39, v{w}\nv_fmac_f32 v{112+2*k}, v105, v{c}\nv_fmac_f32 v{113+2*k}, v106, v{c}")
    for i in range(4): A.e(f"v_permlane32_swap_b32 v{112+i}, v{116+i}")
    for i in range(4): A.e(f"v_add_f32 v{112+i}, v{112+i}, v{116+i}")
    for i in range(2): A.e(f"v_permlane16_swap_b32 v{112+i}, v{114+i}")
    for i in range(2): A.e(f"v_add_f32 v{112+i}, v{112+i}, v{114+i}")
    for i in range(2): A.e(f"v_add_f32_dpp v{112+i}, v{112+i}, v{112+i} row_ror:8 row_mask:0xf bank_mask:0xf")
    n0 = A.newlabel("m1n0")
    A.e(f"""
    v_and_b32 v104, 7, v1
    v_lshlrev_b32 v104, 5, v104
    v_lshrrev_b32 v105, 5, v1
    v_lshl_add_u32 v104, v105, 4, v104
    v_bfe_u32 v105, v1, 4, 1
    v_lshl_add_u32 v104, v105, 3, v104
    v_lshl_add_u32 v104, v2, 8, v104
    ds_write_b64 v104, v[112:113]
    v_lshlrev_b32 v105, 2, v1
    s_lshl_b32 s40, s25, 13
    s_lshl_b32 s41, s24, 8
    s_add_u32 s40, s40, s41
    s_add_u32 s40, s40, {WS['modp']}
    s_waitcnt lgkmcnt(0)
    s_barrier
    s_cmp_lg_u32 s50, 0
    s_cbranch_scc1 {n0}""")
    for k in range(4): A.e(f"ds_read_b32 v{112+k}, v105 offset:{k*256}")
    A.e("""
    s_waitcnt lgkmcnt(0)
    v_add_f32 v112, v112, v113
    v_add_f32 v114, v114, v115
    v_add_f32 v112, v112, v114
    buffer_store_dword v112, v105, s[20:23], s40 offen sc1""")
    A.label(n0)
    A.e("s_waitcnt vmcnt(0)\ns_barrier")
M = 8; R = 10; Tm = 12
def ln1_stats(A):
    for i in range(31, -1, -1): A.e(f"v_and_b32 v{XF+2*i+1}, s39, v{X0+i}\nv_lshlrev_b32 v{XF+2*i}, 16, v{X0+i}")
    A.e(f"v_pk_add_f32 {vr(M,2)}, {vr(XF,2)}, {vr(XF+2,2)}\nv_pk_add_f32 {vr(M+2,2)}, {vr(XF+4,2)}, {vr(XF+6,2)}")
    for i in range(8, 64, 4): A.e(f"v_pk_add_f32 {vr(M,2)}, {vr(M,2)}, {vr(XF+i,2)}\nv_pk_add_f32 {vr(M+2,2)}, {vr(M+2,2)}, {vr(XF+i+2,2)}")
    A.e(f"v_pk_add_f32 {vr(M,2)}, {vr(M,2)}, {vr(M+2,2)}\nv_add_f32 v{M}, v{M}, v{M+1}")
    red_c(A, M, Tm)
    A.e(f"v_mul_f32 v{M}, {f2u(-1/1024):#x}, v{M}")
    for i in range(0, 64, 2): A.e(f"v_pk_add_f32 {vr(XF+i,2)}, {vr(XF+i,2)}, {vr(M,2)} op_sel_hi:[1,0]")
    A.e(f"v_pk_mul_f32 {vr(R,2)}, {vr(XF,2)}, {vr(XF,2)}\nv_pk_mul_f32 {vr(R+4,2)}, {vr(XF+2,2)}, {vr(XF+2,2)}")
    for i in range(4, 64, 4): A.e(f"v_pk_fma_f32 {vr(R,2)}, {vr(XF+i,2)}, {vr(XF+i,2)}, {vr(R,2)}\nv_pk_fma_f32 {vr(R+4,2)}, {vr(XF+i+2,2)}, {vr(XF+i+2,2)}, {vr(R+4,2)}")
    A.e(f"v_pk_add_f32 {vr(R,2)}, {vr(R,2)}, {vr(R+4,2)}\nv_add_f32 v{R}, v{R}, v{R+1}")
    red_c(A, R, Tm)
    A.e(f"v_mov_b32 v{Tm}, {f2u(1e-5):#x}\nv_fmac_f32 v{Tm}, {f2u(1/1024):#x}, v{R}\nv_rsq_f32 v{R}, v{Tm}")
    for i in range(0, 64, 2): A.e(f"v_pk_mul_f32 {vr(XF+i,2)}, {vr(XF+i,2)}, {vr(R,2)} op_sel_hi:[1,0]")
def ln1_finish(A):
    A.e(f"v_lshlrev_b32 v7, 5, v0\ns_mov_b32 s40, {WS['modp']}")
    for k in range(4):
        for q in range(2): A.e(f"buffer_load_dwordx4 {vr(SC+k*8+q*4,4)}, v7, s[20:23], s40 offen offset:{q*16} sc1")
        if k < 3: A.e("s_add_u32 s40, s40, 8192")
    A.e(f"v_mov_b32 v{Tm+2}, 1.0\nv_cmp_lt_u32 vcc, 127, v0\nv_cndmask_b32 v{Tm+2}, 0, v{Tm+2}, vcc\ns_waitcnt vmcnt(0)")
    for i in range(0, 8, 2): A.e(f"v_pk_add_f32 {vr(SC+i,2)}, {vr(SC+i,2)}, {vr(SC+8+i,2)}\nv_pk_add_f32 {vr(SC+16+i,2)}, {vr(SC+16+i,2)}, {vr(SC+24+i,2)}")
    for i in range(0, 8, 2): A.e(f"v_pk_add_f32 {vr(SC+i,2)}, {vr(SC+i,2)}, {vr(SC+16+i,2)}")
    for i in range(4): A.e(f"v_cvt_pk_bf16_f32 v{SC+8+i}, v{SC+2*i}, v{SC+2*i+1}")
    for i in range(4): A.e(f"v_lshlrev_b32 v{SC+2*i}, 16, v{SC+8+i}\nv_and_b32 v{SC+2*i+1}, s39, v{SC+8+i}")
    for i in range(0, 8, 2): A.e(f"v_pk_add_f32 {vr(SC+i,2)}, {vr(SC+i,2)}, {vr(Tm+2,2)} op_sel_hi:[1,0]")
    A.e(f"ds_write_b128 v7, {vr(SC,4)} offset:4096\nds_write_b128 v7, {vr(SC+4,4)} offset:4112\ns_waitcnt lgkmcnt(0)\ns_barrier")
    for i in range(4):
        for q in range(4):
            A.e(f"ds_read_b128 {vr(SC+i*16+q*4,4)}, v4 offset:{8192+i*1024+q*16}\nds_read_b128 {vr(SH+i*16+q*4,4)}, v4 offset:{4096+i*1024+q*16}")
    for i in range(4):
        A.e(f"s_waitcnt lgkmcnt({min(15, 8*(3-i))})")
        for j in range(i * 16, i * 16 + 16, 2): A.e(f"v_pk_fma_f32 {vr(XF+j,2)}, {vr(XF+j,2)}, {vr(SC+j,2)}, {vr(SH+j,2)}")
        for u in range(2):
            o = 16 + ((i & 1) * 2 + u) * 4
            for j, d in enumerate((0, 4, 1, 5)):
                c = XF + i * 16 + 2 * (d + 2 * u)
                A.e(f"v_cvt_pk_bf16_f32 v{o+j}, v{c}, v{c+1}")
            if u == 0 and i: A.e(f"s_add_u32 s37, s37, 16384")
            A.e(f"buffer_store_dwordx4 {vr(o,4)}, v6, s[20:23], s37 offen offset:{u*256} sc1")
```

```python
from asmgen import *
from layout import *
from gemm import load_ptr, f2u
import start
LOG2E = 1.4426950408889634
SCL = (128 ** -0.5) * LOG2E

XMEAS = WS["xch"]
XCNT = XMEAS + 65536
XHEAD = XCNT + 2048
XTC = XCNT + 4096
CRL = 136
CTGT = 1792
CR0 = 8
CLN = 176; CPZ = 184
XLOC = WS["xch"] + 2 * MB
XO = 65536; XQK = 131072; XKT = 262144; XHI = 524288
XFLG = XMEAS + 131072
RFLG = XMEAS + 196608
NRDY = 128
DPAR = 32; DRDY = 36; DM1F = 160; DM1S = 164
QB = WS["qkv"]
OOB = 0x7fff0000
LB = 131072
LM = 0; LVT = 16384; LVM = 24576; LBP = 25600; LFL = LB + 27648; L_ROLE = LB + 27904
LDS_BYTES = LB + 28672
HALF = 0x00ff00ff
FORCE_SLOW = False
PROF = False
BUDGET = 400000
THM = 25; NOM = 2; THO = 50; NOO = 1; D2 = 200; NF2 = 2; DP = 450; UPB = 8; CGB = 2
N1 = 16; P1 = (15, 55); N2 = 10; P2 = (100, 128); NRD2 = 4; SPFD = 5
NA = 12; DA = 300; NB3 = 0; NC = 0; GA = 16
SIGLAG = 5
PC = 0
DBG = 0
SPOS = dict(k0='E', v0='A', k1='E', v1='A', sig=None)
NPZ = 8
WPF = 0
CPF = 1
WNT = 'nt'; QNT = 'nt'; ONT = 'nt'
PNT = ''
PFD = 0
DWT = 0
PFW = ''
NQE = 0
SLP = 2
CPERM = 0; CPERM2 = 0; PSEL = None; XW = 1; KJ = 8; TPRE = 0; QE = 32; WE = 12

def rec_kernel(A, name, worker=None, nsteps=64, after=None):
    L = A.newlabel
    def delay(n):
        while n >= 64:
            A.e("s_nop 15"); n -= 64
        n //= 4
        if n > 0: A.e(f"s_nop {n-1}")
    A.begin_kernel(name)
    done = L("done")
    wexit = worker if worker else done
    def rts(lane):
        if PROF: A.e(f"s_memrealtime s[100:101]\ns_waitcnt lgkmcnt(0)\nv_writelane_b32 v255, s100, {lane}\ns_memtime s[100:101]\ns_waitcnt lgkmcnt(0)\nv_writelane_b32 v255, s100, {lane-16}")
    A.e(f"s_cmp_ge_u32 s2, 256\ns_cbranch_scc1 {done}")
    A.e(f"s_load_dwordx4 s[16:19], s[0:1], {ARG['dbg']*8}")
    A.e("s_load_dword s3, s[0:1], 0")
    def cpf():
        if not CPF: return
        A.e("buffer_load_dword v181, v180, s[8:11], 0 offen\ns_mov_b32 s12, 0x8000\nbuffer_load_dword v182, v180, s[8:11], s12 offen")
        if worker: A.e("s_lshr_b32 s12, s2, 3\ns_and_b32 s12, s12, 7\ns_add_u32 s12, s12, 2\ns_lshl_b32 s12, s12, 15\nbuffer_load_dword v183, v180, s[8:11], s12 offen")
    if CPF:
        pc0 = L("pc"); c0 = L("nocpf")
        A.e(f"s_getpc_b64 s[4:5]\n{pc0}:\ns_sub_u32 s8, s4, {pc0}-{name}\ns_subb_u32 s9, s5, 0\ns_and_b32 s9, s9, 0xffff\ns_mov_b32 s10, code_end-{name}\ns_mov_b32 s11, 0x20000")
        A.e(f"v_lshlrev_b32 v180, 7, v0\nv_cmp_gt_u32 vcc, 64, v0\ns_cbranch_vccnz {c0}")
        cpf()
        A.label(c0)
    A.e(f"""
    v_and_b32 v1, 63, v0
    v_lshrrev_b32 v2, 6, v0
    s_getreg_b32 s51, hwreg(HW_REG_XCC_ID)
    v_readfirstlane_b32 s50, v2        ; wave
    s_and_b32 s51, s51, 7
    s_waitcnt lgkmcnt(0)""")
    A.srd(20, 18, WS_BYTES)
    A.srd(44, 16, 256)
    A.e(f"s_mov_b32 s90, {BUDGET}\ns_mov_b32 s91, s50")
    rts(58)
    norole = L("norole"); setup = L("setup"); verify = L("verify"); loops = L("loops"); pre = L("pre"); post = L("post")
    A.e(f"""
    v_mov_b32 v187, {L_ROLE}
    s_cmp_lg_u32 s50, 0
    s_cbranch_scc1 {norole}
    s_mov_b64 exec, 1
    v_mov_b32 v184, 1
    v_mov_b32 v185, 0
    s_and_b32 s52, s51, 3
    s_lshl_b32 s52, s52, 2
    s_lshr_b32 s53, s51, 2
    s_lshl_b32 s53, s53, 7
    s_add_u32 s52, s52, s53
    buffer_atomic_add v184, v185, s[44:47], s52 offen sc0 sc1
    s_mov_b64 exec, -1""")
    cpf()
    A.e(f"""
    s_mov_b64 exec, 1
    s_waitcnt vmcnt({(2 + (1 if worker else 0)) if CPF else 0})
    ds_write_b32 v187, v184
    s_waitcnt lgkmcnt(0)
    s_mov_b64 exec, -1""")
    A.label(norole)
    A.e(f"""
    s_barrier
    ds_read_b32 v186, v187
    s_waitcnt lgkmcnt(0)
    v_readfirstlane_b32 s54, v186
    s_mov_b32 s56, 2
    s_lshl_b32 s57, s51, 5
    s_add_u32 s57, s57, s54
    s_cmp_lt_u32 s54, 32
    s_cselect_b32 s57, s57, 999
    s_cmp_ge_u32 s57, 256
    s_cbranch_scc1 {verify}
    s_cmp_ge_u32 s57, 128
    s_cbranch_scc1 {pre}""")
    slow = L("slowrole")
    def tickets(par, pre=0):
        vp = L("vpoll"); vg = L("vgot"); vs = L("vslp")
        A.e(f"v_and_b32 v184, 3, v1\nv_bfe_u32 v185, v1, 2, 1\nv_lshlrev_b32 v184, 2, v184\nv_lshl_add_u32 v184, v185, 7, v184\nv_writelane_b32 v184, {DPAR}, 8\ns_mov_b64 exec, 0x1ff")
        if pre == 1: A.e("buffer_load_dword v183, v184, s[44:47], 0 offen sc1"); return
        vf = L("vfirst")
        if pre: A.e(f"v_mov_b32 v185, v183\ns_branch {vf}")
        A.label(vp)
        A.e("buffer_load_dword v185, v184, s[44:47], 0 offen sc1\ns_waitcnt vmcnt(0)")
        A.label(vf)
        for x in range(8): A.e(f"v_readlane_b32 s{92+x}, v185, {x}")
        A.e("v_readlane_b32 s61, v185, 8\ns_add_u32 s64, s92, s93")
        for x in range(2, 8): A.e(f"s_add_u32 s64, s64, s{92+x}")
        A.e(f"""
        s_min_u32 s65, s92, s93
        s_min_u32 s66, s94, s95
        s_min_u32 s65, s65, s66
        s_min_u32 s66, s96, s97
        s_min_u32 s65, s65, s66
        s_min_u32 s66, s98, s99
        s_min_u32 s65, s65, s66
        s_cmp_lt_u32 s65, {33 if FORCE_SLOW else 32}
        s_cselect_b32 s65, 1, 0
        s_cmp_lt_u32 s64, 256
        s_cbranch_scc1 {vs}""")
        if par: A.e(f"s_or_b32 s66, s65, s61\ns_cmp_lg_u32 s66, 0\ns_cbranch_scc1 {vg}")
        else: A.e(f"s_branch {vg}")
        A.label(vs)
        A.e(f"s_sleep 8\ns_sub_u32 s90, s90, 1\ns_cmp_gt_i32 s90, 0\ns_cbranch_scc1 {vp}")
        A.label(vg)
        A.e("s_mov_b64 exec, -1\ns_and_b32 s61, s61, 1\ns_lshl_b32 s61, s61, 13")
    def slowid():
        A.e("s_mov_b32 s66, s54")
        for x in range(7):
            A.e(f"s_cmp_gt_u32 s51, {x}\ns_cselect_b32 s64, s{92+x}, 0\ns_add_u32 s66, s66, s64")
        if FORCE_SLOW: A.e("s_mul_i32 s66, s66, 37\ns_add_u32 s66, s66, 11\ns_and_b32 s66, s66, 255")
    def share(body, wv=0):
        n0 = L("sh0")
        A.e(f"v_mov_b32 v187, {L_ROLE}\ns_cmp_lg_u32 s50, {wv}\ns_cbranch_scc1 {n0}")
        body()
        A.e("v_mov_b32 v184, s65\nv_mov_b32 v185, s66\nv_mov_b32 v186, s61\nds_write_b96 v187, v[184:186] offset:16\ns_waitcnt lgkmcnt(0)")
        A.label(n0)
        A.e(f"""
        s_barrier
        ds_read_b96 v[184:186], v187 offset:16
        s_waitcnt lgkmcnt(0)
        v_readfirstlane_b32 s65, v184
        v_readfirstlane_b32 s66, v185
        v_readfirstlane_b32 s61, v186""")
    def doverify(par):
        def body(): tickets(par); slowid()
        share(body)
        A.e(f"s_cmp_lg_u32 s65, 0\ns_cbranch_scc1 {slow}\ns_mov_b32 s56, 0")
    def dpoll(srd, off, cond, sl=4, voff=None, lanes=None):
        lp_ = L("dp"); ok_ = L("dpok")
        if voff is None: A.e("v_mov_b32 v184, 0")
        if lanes: A.e(f"s_mov_b64 exec, {lanes:#x}")
        A.label(lp_)
        A.e(f"buffer_load_dword v185, v184, {srd}, {off} offen sc1\ns_waitcnt vmcnt(0)\n{cond}\ns_cbranch_vccz {ok_}\ns_sleep {sl}\ns_sub_u32 s90, s90, 1\ns_cmp_gt_i32 s90, 0\ns_cbranch_scc1 {lp_}")
        A.label(ok_)
        if lanes: A.e("s_mov_b64 exec, -1")
    def getpar():
        dpoll("s[44:47]", DPAR, "v_cmp_eq_u32 vcc, 0, v185")
        A.e("v_readfirstlane_b32 s65, v185\ns_and_b32 s65, s65, 1\ns_lshl_b32 s61, s65, 13")
    def arrive():
        A.e(f"s_and_b32 s64, s56, 1\ns_lshl_b32 s64, s64, 2\ns_add_u32 s64, s64, {DRDY}\ns_mov_b64 exec, 1\nv_mov_b32 v184, 1\nv_mov_b32 v185, 0\nbuffer_atomic_add v184, v185, s[44:47], s64 offen sc1\ns_mov_b64 exec, -1")
    A.label(setup)
    rts(59)
    A.e(f"s_load_dwordx8 s[4:11], s[0:1], {ARG['mem0']*8}")
    A.e(f"s_load_dwordx2 s[12:13], s[0:1], {ARG['Wo']*8}")
    A.e(f"""
    v_and_b32 v3, 15, v1               ; lam
    v_lshrrev_b32 v4, 4, v1            ; g
    v_lshlrev_b32 v16, 4, v1           ; lane*16
    v_lshrrev_b32 v30, 2, v1
    v_and_b32 v31, 3, v1
    v_lshlrev_b32 v7, 13, v30
    v_lshl_add_u32 v7, v31, 4, v7
    v_lshlrev_b32 v8, 11, v30
    v_lshl_add_u32 v8, v31, 4, v8
    s_lshr_b32 s58, s57, 5             ; group x
    s_and_b32 s59, s57, 31             ; rank r
    s_xor_b32 s60, s57, {CPERM}
    s_lshl_b32 s60, s60, 6             ; E0 bytes
    s_lshl_b32 s61, s50, 14
    s_lshl_b32 s62, s50, 21
    s_add_u32 s62, s62, s60
    s_lshl_b32 s63, s58, 21
    s_lshl_b32 s64, s50, 19
    s_add_u32 s63, s63, s64
    s_xor_b32 s64, s59, {CPERM2}
    s_lshl_b32 s64, s64, 6
    s_add_u32 s63, s63, s64
    s_waitcnt lgkmcnt(0)""")
    A.srd(28, 8, 8 * MB); A.srd(32, 10, 8 * MB); A.srd(36, 6, 8 * MB); A.srd(40, 12, 8 * MB)
    A.srd(8, 4, 16384)
    A.e(f"""
    v_lshlrev_b32 v9, 7, v3
    v_lshl_add_u32 v10, v4, 11, v9
    v_lshl_add_u32 v9, v4, 13, v9
    s_lshl_b32 s64, s59, 2
    s_add_u32 s64, s64, s50
    s_lshl_b32 s65, s64, 16
    s_lshl_b32 s66, s58, 11
    s_add_u32 s65, s65, s66
    s_lshl_b32 s66, s64, 14
    s_lshl_b32 s67, s58, 21
    s_add_u32 s66, s66, s67""")
    def wpf(mat):
        if not WPF: return 0
        for h in range(2):
            if mat < 3: A.e(f"s_add_u32 s64, s65, {h*4*8192}\nbuffer_load_dword v{200+mat*2+h}, v9, s[{28+mat*4}:{31+mat*4}], s64 offen {PNT}")
            else: A.e(f"s_add_u32 s64, s66, {h*4*2048}\nbuffer_load_dword v{200+mat*2+h}, v10, s[40:43], s64 offen {PNT}")
        return 2
    def wissue(mat):
        buf = mat & 1
        for J in range(16):
            if mat < 3:
                A.e(f"s_add_u32 s64, s62, {J*16*8192}\ns_add_u32 m0, s61, {buf*65536+J*1024}\nbuffer_load_dwordx4 v7, s[{28+mat*4}:{31+mat*4}], s64 offen {WNT} lds")
            else:
                A.e(f"s_add_u32 s64, s63, {J*16*2048}\ns_add_u32 m0, s61, {buf*65536+J*1024}\nbuffer_load_dwordx4 v8, s[40:43], s64 offen {WNT} lds")
    def wread(base, addr, nch, tiles):
        for j in range(nch):
            for t in range(tiles):
                a = base + (j * tiles + t) * 8
                for R in range(2):
                    for h in range(2):
                        A.e(f"ds_read_b64_tr_b16 {ar(a+4*R+2*h,2)}, v{addr} offset:{(64*j + 32*R + 2*h)*64 + t*32}")
            if j % 2 == 1 or tiles == 2: A.e("s_waitcnt lgkmcnt(0)")
    if SLP:
        A.e(f"""
        v_and_b32 v9, 7, v1
        v_lshrrev_b32 v10, 3, v1
        s_cmp_eq_u32 s58, 3
        s_cselect_b32 s64, 15, 3
        v_mov_b32 v11, 3
        v_cmp_eq_u32 vcc, 1, v10
        v_cndmask_b32 v11, v11, 11, vcc
        v_lshlrev_b32 v12, 7, v11
        v_lshl_add_u32 v12, v9, 11, v12
        v_mov_b32 v13, s64
        v_cmp_eq_u32 vcc, 2, v10
        v_cndmask_b32 v11, v11, v13, vcc
        v_lshlrev_b32 v11, 7, v11
        v_lshl_add_u32 v11, v9, 13, v11""")
    def slp(mats):
        A.e("s_mov_b64 exec, 0xffffff")
        for m_ in mats:
            if m_ < 3: A.e(f"buffer_load_dword v{200+m_}, v11, s[{28+m_*4}:{31+m_*4}], s65 offen {PNT}")
            else: A.e(f"s_mov_b64 exec, 0xffff\nbuffer_load_dword v203, v12, s[40:43], s66 offen {PNT}")
        A.e("s_mov_b64 exec, -1")
        return len(mats)
    if SLP == 1: slp([0, 1, 2, 3])
    WQ = 32; ZERO = 100; RV = 204; VZP = 206
    for i in range(4): A.e(f"v_mov_b32 v{ZERO+i}, 0")
    A.e("s_mov_b32 s53, s65\ns_mov_b32 s55, s66")
    A.e(f"""
    v_and_b32 v22, 7, v3
    v_lshlrev_b32 v31, 11, v22
    v_lshl_add_u32 v31, v4, 4, v31
    s_lshr_b32 s64, s59, 3
    s_lshl_b32 s64, s64, 14
    s_and_b32 s65, s59, 7
    s_lshl_b32 s65, s65, 10
    s_add_u32 s64, s64, s65
    s_lshl_b32 s65, s58, 16
    s_add_u32 s64, s64, s65
    s_add_u32 s64, s64, {QB + 112*16384}
    s_lshr_b32 s65, s57, 3
    s_add_u32 s65, s65, 96
    s_lshl_b32 s65, s65, 14
    s_and_b32 s66, s57, 7
    s_lshl_b32 s66, s66, 10
    s_add_u32 s65, s65, s66
    s_add_u32 s65, s65, {QB}
    v_add_u32 v{VZP}, s64, v16
    v_add_u32 v{VZP+1}, s65, v16
    s_and_b32 s64, s50, 1
    s_lshl_b32 s64, s64, 21
    s_lshr_b32 s65, s50, 1
    s_lshl_b32 s65, s65, 13
    s_add_u32 s64, s64, s65
    buffer_store_dwordx4 {vr(ZERO,4)}, v{VZP}, s[20:23], s64 offen sc1
    buffer_store_dwordx4 {vr(ZERO,4)}, v{VZP+1}, s[20:23], s64 offen sc1
    s_lshl_b32 s64, s50, 20
    s_add_u32 s64, s64, {XLOC}
    s_cmp_lt_u32 s50, 2
    s_cselect_b32 s67, s64, {OOB:#x}
    s_lshl_b32 s65, s57, 10
    s_add_u32 s65, s65, {XQK}
    s_add_u32 s65, s65, s67
    buffer_store_dwordx4 {vr(ZERO,4)}, v16, s[20:23], s65 offen sc1
    s_lshl_b32 s65, s57, 9
    s_add_u32 s65, s65, s67
    s_add_u32 s66, s65, {XO}
    s_mov_b32 exec_hi, 0
    buffer_store_dwordx4 {vr(ZERO,4)}, v16, s[20:23], s65 offen sc1
    buffer_store_dwordx4 {vr(ZERO,4)}, v16, s[20:23], s66 offen sc1
    s_lshl_b32 s65, s57, 2
    s_add_u32 s65, s65, s64
    s_add_u32 s65, s65, {XHI}
    s_lshl_b32 s52, s57, 7
    s_add_u32 s52, s52, {RFLG}
    s_mov_b64 exec, 1
    buffer_store_dword v{ZERO}, v{ZERO}, s[20:23], s65 offen sc1
    buffer_store_dword v{ZERO}, v{ZERO}, s[20:23], s65 offen offset:512 sc1
    s_mov_b64 exec, 15
    buffer_store_dwordx4 {vr(ZERO,4)}, v16, s[20:23], s52 offen sc1
    s_mov_b64 exec, -1""")
    A.e("s_mov_b32 s65, s53\ns_mov_b32 s66, s55")
    s5 = L("ws")
    A.e(f"v_mov_b32 v37, {L_ROLE + 32}\nds_write_b128 v37, {vr(ZERO,4)}")
    def zarr(n):
        A.e(f"s_waitcnt vmcnt({n}) lgkmcnt(0)\ns_barrier\ns_cmp_lg_u32 s50, 1\ns_cbranch_scc1 {s5}")
        arrive(); A.label(s5)
    n_ = 0
    if WPF:
        wpf(0); wpf(1); zarr(4)
        A.e("s_waitcnt vmcnt(2)")
        wissue(0); n_ = wpf(2)
        A.e("s_waitcnt vmcnt(18)")
    else:
        for J in range(16):
            if J == KJ: zarr(KJ)
            A.e(f"s_add_u32 s64, s62, {J*16*8192}\ns_add_u32 m0, s61, {J*1024}\nbuffer_load_dwordx4 v7, s[28:31], s64 offen {WNT} lds")
        n_ = slp([1, 2, 3]) if SLP == 2 else 0
    wissue(1)
    A.e("s_lshl_b32 s64, s59, 6\nbuffer_load_dwordx4 v[216:219], v31, s[8:11], s64 offen")
    nz_ = 1
    rts(29)
    A.e(f"""
    v_lshrrev_b32 v184, 3, v3            ; r'>>1
    v_bfe_u32 v185, v3, 2, 1             ; r'&1
    v_lshrrev_b32 v186, 1, v4            ; gB>>1
    v_and_b32 v187, 1, v4                ; gB&1
    v_lshl_add_u32 v188, v184, 3, v185
    v_lshl_add_u32 v188, v186, 4, v188
    v_lshl_add_u32 v188, v187, 2, v188
    v_lshl_add_u32 v189, v184, 2, v185
    v_lshl_add_u32 v189, v186, 3, v189
    v_lshl_add_u32 v189, v187, 4, v189
    v_and_b32 v187, 3, v3                ; c'
    v_lshlrev_b32 v187, 3, v187
    v_lshl_add_u32 v188, v188, 6, v187
    v_lshl_add_u32 v189, v189, 6, v187
    s_lshr_b32 s64, s50, 1
    s_lshl_b32 s64, s64, 5               ; tile (w>>1) * 32B
    v_add_u32 v190, s64, v188
    v_add_u32 v191, 0x10000, v190
    s_lshl_b32 s64, s64, 10
    v_add_u32 v192, s64, v189
    s_add_u32 s64, s61, 0x10000
    v_add_u32 v193, s64, v16
    s_add_u32 s68, s50, 1""")
    s1 = L("ws"); s3 = L("ws"); s4 = L("ws"); rq = L("rq"); rqb = L("rqb")
    A.e(f"s_mov_b32 s69, 0\ns_waitcnt vmcnt({n_ + 16 + nz_ + NQE})")
    A.e("s_barrier")
    rts(30)
    if XW:
        A.e(f"""
        s_lshl_b32 s64, s57, 9
        v_mov_b32 v194, s64
        s_add_u32 s65, s64, {XO - 512}
        v_mov_b32 v195, s65
        v_cmp_lt_u32 vcc, 3, v1
        v_cndmask_b32 v194, v194, v195, vcc
        s_lshl_b32 s65, s57, 10
        s_add_u32 s65, s65, {XQK - 1024}
        v_mov_b32 v195, s65
        v_cmp_lt_u32 vcc, 7, v1
        v_cndmask_b32 v194, v194, v195, vcc
        s_lshl_b32 s65, s57, 11
        s_add_u32 s65, s65, {XKT - 2048}
        v_mov_b32 v195, s65
        v_cmp_lt_u32 vcc, 15, v1
        v_cndmask_b32 v194, v194, v195, vcc
        v_lshl_add_u32 v194, v1, 7, v194
        s_lshl_b32 s65, s58, 7
        s_add_u32 s65, s65, {XHI}
        v_writelane_b32 v194, s65, 32
        s_add_u32 s65, s65, 512
        v_writelane_b32 v194, s65, 33
        s_lshl_b32 s64, s50, 20
        s_add_u32 s64, s64, {XLOC}
        s_mov_b32 exec_hi, 3
        buffer_load_dword v183, v194, s[20:23], s64 offen sc1
        s_mov_b64 exec, -1""")
    def qraw(J0, J1):
        for J in range(J0, J1): A.e(f"s_add_u32 s64, s14, {((J >> 2)*128 + (J & 3)*16)*8192}\nbuffer_load_dwordx4 {ar(4*J,4)}, v35, s[36:39], s64 offen {QNT}")
    def oraw(J0, J1):
        for J in range(J0, J1): A.e(f"s_add_u32 s64, s15, {J*16*2048}\nbuffer_load_dwordx4 {ar(128+4*J,4)}, v32, s[40:43], s64 offen {ONT}")
    A.e(f"""
    s_and_b32 s65, s50, 1
    s_lshl_b32 s14, s65, 19
    s_add_u32 s14, s14, s60
    s_lshl_b32 s15, s65, 19
    s_sub_u32 s15, s63, s15
    s_lshl_b32 s65, s65, 13
    s_add_u32 s65, s65, {LB + LM}
    v_mov_b32 v32, v8
    v_add_u32 v33, s65, v16
    v_add_u32 v34, s65, v189
    v_mov_b32 v35, v7
    v_add_u32 v36, {LB + LM}, v190
    v_mov_b32 v37, {L_ROLE + 32}""")
    npf = wpf(3)
    A.e(f"s_bitcmp1_b32 s68, 1\ns_cbranch_scc0 {s1}")
    wread(0, 190, 16, 1)
    A.e(f"s_waitcnt vmcnt({npf})\ns_barrier"); rts(31)
    wread(128, 191, 16, 1)
    A.e(f"s_branch {s4}")
    A.label(s1)
    if WPF: A.e(f"s_waitcnt vmcnt({17 + XW + npf})")
    qraw(0, QE); oraw(0, WE)
    A.e(f"s_waitcnt vmcnt({QE + WE + npf})\ns_barrier"); rts(31)
    A.label(s4)
    rts(60)
    def started():
        lp_ = L("stl"); ok_ = L("stok")
        if DWT: A.e(f"s_mov_b64 exec, 1\nv_mov_b32 v184, 1\nv_mov_b32 v185, 0\ns_mov_b32 s64, {DWT}\nbuffer_atomic_add v184, v185, s[44:47], s64 offen sc1\ns_mov_b64 exec, -1")
        A.e("s_mov_b32 s53, 0")
        A.label(lp_)
        A.e("s_add_u32 s64, s52, 32\ns_buffer_load_dwordx8 s[72:79], s[20:23], s52 glc\ns_buffer_load_dwordx8 s[80:87], s[20:23], s64 glc\ns_waitcnt lgkmcnt(0)")
        for n in (8, 4, 2): A.e("\n".join(f"s_min_u32 s{72+i}, s{72+i}, s{72+n+i}" for i in range(n)))
        A.e(f"""
        s_min_u32 s64, s72, s73
        s_mov_b32 s65, 0
        s_and_b32 s61, s64, 1
        s_lshl_b32 s61, s61, 13
        s_cmp_lg_u32 s64, 0
        s_cbranch_scc1 {ok_}
        s_sub_u32 s90, s90, 1
        s_cmp_lt_i32 s90, 0
        s_cbranch_scc1 {ok_}
        s_add_u32 s53, s53, 1
        s_and_b32 s64, s53, 31
        s_cbranch_scc1 {lp_}
        s_cmp_eq_u32 s56, 1
        s_cbranch_scc1 {lp_}""")
        tickets(False); slowid()
        A.e(f"s_cmp_eq_u32 s65, 0\ns_cbranch_scc1 {lp_}")
        A.label(ok_)
    share(started, 1)
    A.e(f"s_cmp_lg_u32 s65, 0\ns_cbranch_scc1 {slow}\ns_and_b32 s56, s56, 1\ns_branch {loops}")
    A.label(pre)
    rts(50)
    A.e("s_sub_u32 s55, s57, 128")
    start.m1_ln1_loads(A, 55, XCNT, XFLG)
    rts(51)
    start.m1_compute(A, 55, lambda: rts(52))
    rts(53)
    def dbgadd(off_expr):
        nk = L("nadd")
        A.e(f"s_cmp_lg_u32 s50, 0\ns_cbranch_scc1 {nk}\ns_mov_b64 exec, 1\nv_mov_b32 v184, 1\nv_mov_b32 v185, 0\n{off_expr}\nbuffer_atomic_add v184, v185, s[44:47], s52 offen sc1\ns_mov_b64 exec, -1")
        A.label(nk)
    nl = L("notlast")
    A.e(f"""
    s_cmp_lg_u32 s50, 0
    s_cbranch_scc1 {post}""")
    if TPRE: tickets(False, 1)
    A.e(f"""
    s_mov_b64 exec, 1
    v_mov_b32 v184, 1
    v_mov_b32 v185, 0
    s_and_b32 s52, s56, 1
    s_lshl_b32 s52, s52, 2
    s_add_u32 s52, s52, {DM1F}
    buffer_atomic_add v184, v185, s[44:47], s52 offen sc0 sc1
    s_waitcnt vmcnt(0)
    v_readfirstlane_b32 s64, v184
    s_mov_b64 exec, -1
    s_cmp_eq_u32 s56, 1
    s_cbranch_scc1 {post}
    s_cmp_lg_u32 s64, 127
    s_cbranch_scc1 {post}""")
    tickets(False, 2 * TPRE)
    A.e(f"""
    s_cmp_lg_u32 s65, 0
    s_cbranch_scc1 {post}
    v_lshlrev_b32 v184, 7, v1
    v_mov_b32 v185, 1
    s_mov_b32 s64, {XFLG}
    s_mov_b32 s65, {XFLG + 8192}
    buffer_store_dword v185, v184, s[20:23], s64 offen sc1
    buffer_store_dword v185, v184, s[20:23], s65 offen sc1
    s_branch {post}""")
    A.label(verify)
    doverify(False)
    A.e(f"s_branch {done}")
    A.label(slow)
    A.e(f"s_mov_b32 s57, s66\ns_mov_b32 s56, 1\ns_waitcnt vmcnt(0)\ns_barrier\ns_cmp_ge_u32 s57, 128\ns_cbranch_scc1 {pre}")
    dbgadd(f"s_mov_b32 s52, {DM1S}")
    A.e(f"s_branch {setup}")
    A.label(post)
    wk = L("nomeas")
    start.xlate(A, 55)
    if PFW:
        npf = L("npf")
        A.e(f"""
        s_cmp_lt_u32 s55, 16
        s_cbranch_scc1 {npf}
        s_cmp_eq_u32 s55, 127
        s_cbranch_scc1 {npf}
        s_load_dwordx2 s[64:65], s[0:1], {ARG['Wo']*8}
        s_load_dwordx2 s[66:67], s[0:1], {ARG['Wq']*8}
        s_sub_u32 s52, s55, 16
        s_lshl_b32 s52, s52, 2
        s_add_u32 s52, s52, s50
        s_lshl_b32 s52, s52, 13
        v_lshlrev_b32 v184, 7, v1
        s_waitcnt lgkmcnt(0)""")
        A.srd(68, 64, 8 * MB); A.srd(72, 66, 8 * MB)
        for m_ in PFW:
            for k_ in range(3): A.e(f"s_add_u32 s53, s52, {k_*444*8192}\nbuffer_load_dword v{240+k_}, v184, s[{68 if m_ == 'o' else 72}:{71 if m_ == 'o' else 75}], s53 offen")
        A.label(npf)
    A.e(f"""
    s_sub_u32 s65, s57, 255
    s_and_b32 s66, s56, 1
    s_or_b32 s65, s65, s66
    s_or_b32 s65, s65, s50
    s_cmp_lg_u32 s65, 0
    s_cbranch_scc1 {wk}
    s_mov_b64 exec, 1
    v_mov_b32 v184, 0
    s_mov_b32 s52, {XMEAS}
    s_mov_b32 s53, {XMEAS+8192}
    s_mov_b32 s70, 0x7fffffff
    s_mov_b32 s71, 0x7fffffff""")
    for rep in range(4):
        for (so, acc) in ((52, 70), (53, 71)):
            A.e(f"""
            s_memtime s[72:73]
            s_waitcnt lgkmcnt(0)
            buffer_store_dword v184, v184, s[20:23], s{so} offen sc1
            s_waitcnt vmcnt(0)
            s_memtime s[74:75]
            s_waitcnt lgkmcnt(0)
            s_sub_u32 s74, s74, s72
            s_min_u32 s{acc}, s{acc}, s74""")
    A.e(f"""
    s_cmp_gt_u32 s71, s70
    s_cselect_b32 s65, 3, 2
    v_mov_b32 v185, s65
    buffer_store_dword v185, v184, s[44:47], {DPAR} offen sc1
    s_mov_b64 exec, -1""")
    A.label(wk)
    rts(54)
    start.ln1_stats(A)
    rts(55)
    def m1wait():
        sl_ = L("m1s"); lp_ = L("m1l"); ok_ = L("m1ok")
        A.e(f"s_mov_b32 s65, 0\ns_cmp_eq_u32 s56, 1\ns_cbranch_scc1 {sl_}\ns_lshl_b32 s52, s55, 7\ns_add_u32 s52, s52, {XFLG}\ns_mov_b32 s53, 0")
        A.label(lp_)
        A.e(f"""
        v_mov_b32 v184, 0
        buffer_load_dword v185, v184, s[20:23], s52 offen sc1
        s_waitcnt vmcnt(0)
        v_readfirstlane_b32 s64, v185
        s_mov_b32 s65, 0
        s_cmp_eq_u32 s64, 1
        s_cbranch_scc1 {ok_}
        s_sub_u32 s90, s90, 1
        s_cmp_lt_i32 s90, 0
        s_cbranch_scc1 {ok_}
        s_add_u32 s53, s53, 1
        s_and_b32 s64, s53, 31
        s_cbranch_scc1 {lp_}""")
        tickets(False); slowid()
        A.e(f"s_cmp_eq_u32 s65, 0\ns_cbranch_scc1 {lp_}\ns_branch {ok_}")
        A.label(sl_)
        A.e(f"s_mov_b32 s53, 256\ns_mov_b32 s52, {DM1S}")
        dpoll("s[44:47]", "s52", "v_cmp_ne_u32 vcc, s53, v185", 8)
        A.label(ok_)
    share(m1wait)
    A.e(f"s_cmp_lg_u32 s65, 0\ns_cbranch_scc1 {slow}\ns_and_b32 s56, s56, 1")
    rts(56)
    rdy = f"buffer_load_dword v240, v241, s[44:47], s53 offen sc1"
    A.e(f"s_lshl_b32 s53, s56, 2\ns_add_u32 s53, s53, {DRDY - DPAR}\nv_mul_u32_u24 v241, s53, v1\ns_lshr_b32 s53, s55, 4\ns_or_b32 s53, s53, s50\ns_cselect_b32 s53, {OOB:#x}, {DPAR}\ns_mov_b64 exec, 3\n{rdy}\ns_mov_b64 exec, -1")
    start.ln1_finish(A)
    rts(57)
    if PROF: A.e(f"s_lshl_b32 s64, s57, 2\ns_add_u32 s64, s64, s50\ns_lshl_b32 s64, s64, 8\ns_add_u32 s64, s64, {241*MB}\nv_lshlrev_b32 v184, 2, v1\nbuffer_store_dword v255, v184, s[20:23], s64 offen")
    A.e("s_waitcnt vmcnt(0)\ns_barrier")
    def fin0():
        n1_ = L("nodln"); np_ = L("nopar")
        A.e(f"s_cmp_ge_u32 s55, 16\ns_cbranch_scc1 {n1_}")
        lp_ = L("rdl"); ok_ = L("rdok")
        A.label(lp_)
        A.e(f"""
        v_readlane_b32 s64, v240, 0
        v_readlane_b32 s65, v240, 1
        s_cmp_eq_u32 s56, 1
        s_cselect_b32 s64, 2, s64
        s_cmp_eq_u32 s65, {NRDY}
        s_cselect_b32 s64, s64, 0
        s_cmp_lg_u32 s64, 0
        s_cbranch_scc1 {ok_}
        s_mov_b64 exec, 3
        {rdy}
        s_mov_b64 exec, -1
        s_sub_u32 s90, s90, 1
        s_cmp_gt_i32 s90, 0
        s_waitcnt vmcnt(0)
        s_cbranch_scc1 {lp_}""")
        A.label(ok_)
        A.e(f"""
        s_lshl_b32 s65, s55, 2
        v_lshl_add_u32 v184, v1, 7, s65
        v_mov_b32 v185, s64
        s_mov_b32 s64, {RFLG}
        s_mov_b32 s65, {RFLG + 8192}
        buffer_store_dword v185, v184, s[20:23], s64 offen sc1
        buffer_store_dword v185, v184, s[20:23], s65 offen sc1""")
        A.label(n1_)
        A.e(f"s_mov_b32 s61, 0\ns_cmp_eq_u32 s56, 1\ns_cbranch_scc1 {np_}")
        getpar()
        A.label(np_)
    share(fin0)
    nsig = L("nsig")
    A.e(f"s_sub_u32 s55, s57, 128\ns_cmp_lg_u32 s50, 0\ns_cbranch_scc1 {nsig}\ns_lshr_b32 s95, s55, 4\ns_lshl_b32 s95, s95, 6\ns_add_u32 s95, s95, {XTC + CLN*64}")
    A.e(f"s_mov_b64 exec, 1\nv_mov_b32 v184, {CTGT // 16}\nv_mov_b32 v185, 0\nbuffer_atomic_add v184, v185, s[20:23], s95 offen sc1\ns_mov_b64 exec, -1")
    A.label(nsig)
    A.e(f"s_branch {wexit}")

    A.label(loops)
    V16, VHL, VHS, VIDX, VQP, VSEL, VLM, VFL, VST, VH, VOUT = 16, 18, 13, 14, 19, 15, 24, 21, 25, 20, 17
    VG = 26
    GB = 32; KTF = 96; VT = 128; VM = 136; PM = 144; PF = 148; ONE = 152; NEGC = 156; SD = 160; KVM = 172
    ACC = 176; ACB = 184; BACC = 192; OUT = 208; T = 216; HP = 248; HF = 64; ZERO = 100
    SP, SS = "s[24:27]", "s[28:31]"
    sQ2 = 12; IMM = ('E',); STN = ((), ('k0', 'v0'), ('k1', 'v1'), ())
    sSL, sSO, sSN, sSR, sPS, sPR, sQO, sKV, sH, sSPF = 70, 71, 72, 73, 74, 75, 76, 77, 78, 80
    rts(62)
    A.e(f"s_lshl_b32 s64, s50, 14")
    for q in list(range(4)) + list(range(16, 20)):
        A.e(f"s_add_u32 m0, s64, {q*4096}\ns_add_u32 s65, s64, {WS['h'] + q*4096}")
        for i in range(4): A.e(f"buffer_load_dwordx4 v{V16}, s[20:23], s65 offen offset:{i*1024} lds")
    rts(38)
    A.e(f"""
    s_mov_b64 s[24:25], s[20:21]
    s_mov_b64 s[28:29], s[20:21]
    s_mov_b32 s27, 0x20000
    s_mov_b32 s31, 0x20000
    s_cmp_eq_u32 s56, 0
    s_cselect_b32 s26, s22, 0
    s_cselect_b32 s30, 0, s22
    s_lshl_b32 s64, s58, 14
    s_add_u32 s64, s64, {XLOC}
    v_add_u32 v{VG}, s64, v{V16}
    v_add_u32 v{VG+1}, 4096, v{VG}
    v_add_u32 v{VG+2}, 8192, v{VG}
    v_add_u32 v{VG+3}, 12288, v{VG}
    s_lshl_b32 s65, s59, 9
    s_add_u32 s66, s64, s65
    s_lshl_b32 s64, s58, 7
    s_add_u32 s64, s64, {XLOC + XHI}
    v_and_b32 v{VHL}, 31, v1
    v_lshl_add_u32 v{VHL}, v{VHL}, 2, s64
    s_lshl_b32 s65, s59, 2
    s_add_u32 s64, s64, s65
    v_mov_b32 v{VHS}, s64
    v_mov_b32 v{VIDX}, 0x4444
    v_mov_b32 v22, 0xeeee
    v_cmp_lt_u32 vcc, 7, v3
    v_cndmask_b32 v{VIDX}, v{VIDX}, v22, vcc
    v_and_b32 v22, 1, v3
    v_cmp_eq_u32 vcc, 0, v22
    v_mov_b32 v{VSEL}, 0x03020706
    v_mov_b32 v23, 0x05040100
    v_cndmask_b32 v{VSEL}, v{VSEL}, v23, vcc
    v_lshlrev_b32 v{VQP}, 5, v22
    v_lshl_add_u32 v{VQP}, v4, 6, v{VQP}
    v_lshrrev_b32 v23, 1, v3
    v_lshl_add_u32 v{VQP}, v23, 2, v{VQP}
    s_lshl_b32 s67, s57, 10
    s_add_u32 s67, s67, {XLOC + XQK}
    s_lshl_b32 s64, s50, 2
    s_lshr_b32 s64, 0x1320, s64
    s_and_b32 s64, s64, 3
    s_lshl_b32 s64, s64, 8
    s_add_u32 s64, s64, s67
    v_add_u32 v{VQP}, s64, v{VQP}
    v_add_u32 v{VLM}, {LB}, v{V16}
    v_mov_b32 v{VFL}, {LFL}
    v_mov_b32 v{VST}, 0
    v_mov_b32 v{VH}, v{V16}
    v_and_b32 v22, 1, v4
    v_lshrrev_b32 v23, 1, v4
    v_lshl_add_u32 v23, v23, 4, v3
    v_lshlrev_b32 v23, 4, v23
    v_lshl_add_u32 v23, v22, 10, v23
    s_lshr_b32 s64, s50, 1
    s_lshl_b32 s64, s64, 9
    v_add_u32 v23, s64, v23
    s_lshr_b32 s64, s57, 2             ; head
    s_add_u32 s65, s64, 32
    s_lshl_b32 s65, s65, 14
    s_and_b32 s68, s57, 3
    s_lshl_b32 s68, s68, 11            ; c*2K
    s_add_u32 s65, s65, s68
    s_add_u32 s65, s65, {QB}
    v_add_u32 v{VOUT}, s65, v23
    s_lshl_b32 s69, s57, 11
    s_add_u32 s69, s69, {XLOC + XKT}
    v_add_u32 v2, s69, v23
    s_mov_b32 s81, {f2u(SCL):#x}
    s_mov_b32 s84, {HALF:#x}
    s_mov_b32 s85, {HALF:#x}
    s_mov_b32 s86, 0x33333333
    s_mov_b32 s87, 0x33333333
    s_mov_b32 s62, 0x10000
    s_mov_b32 s79, -2
    ds_write_b32 v{VFL}, v{VST}
    ds_write_b32 v{VFL}, v{VST} offset:4
    ds_write_b32 v{VFL}, v{VST} offset:8
    ds_write_b32 v{VFL}, v{VST} offset:12
    ds_write_b32 v{VFL}, v{VST} offset:16
    ds_write_b32 v{VFL}, v{VST} offset:24
    ds_write_b32 v{VFL}, v{VST} offset:28""")
    VKT = 2
    for i in range(4): A.e(f"v_mov_b32 v{ZERO+i}, 0")
    def pub(instr):
        A.e(instr.replace("{S}", SP))
    def pub2(instr):
        if not DBG & 32: A.e(instr.replace("{S}", SS) + " sc1")
    VP = 8
    A.e(f"""
    s_lshr_b32 s64, s59, 3
    s_lshl_b32 s64, s64, 14
    s_and_b32 s65, s59, 7
    s_lshl_b32 s65, s65, 10
    s_add_u32 s64, s64, s65
    s_lshl_b32 s65, s58, 16
    s_add_u32 s64, s64, s65
    s_add_u32 s64, s64, {QB + 112*16384}
    v_add_u32 v{VP}, s64, v{V16}""")

    def book(w, d):
        A.e(f"""
        s_add_u32 s63, s79, {d}
        s_and_b32 s64, s63, 3
        s_lshl_b32 s{sSL}, s64, 20
        s_add_u32 s65, s63, 2
        s_and_b32 s65, s65, 3
        s_lshl_b32 s{sSR}, s65, 20
        s_add_u32 s55, s63, 3
        s_lshl_b32 s{sH}, s55, 16
        s_add_u32 s{sH}, s{sH}, {WS['h']}
        s_cmp_lt_u32 s55, {nsteps}
        s_cselect_b32 s{sH}, s{sH}, {OOB:#x}""")
        for (dd, reg) in ((1, sQO), (2, sQ2)):
            if not any((SPOS[n] in IMM) == (dd == 2) for n in STN[w]): continue
            A.e(f"""
            s_add_u32 s60, s63, {dd}
            s_lshl_b32 s{reg}, s60, 21
            s_lshl_b32 s55, s60, 13
            s_and_b32 s55, s55, 0x2000
            s_xor_b32 s55, s55, s61
            s_add_u32 s{reg}, s{reg}, s55
            s_cmp_lt_u32 s60, {nsteps}
            s_cselect_b32 s{reg}, s{reg}, {OOB:#x}""")
            if DBG & 16: A.e(f"s_mov_b32 s{reg}, s61")
        if w in (0, 3):
            A.e(f"s_add_u32 s{sSO}, s{sSL}, {XO}\ns_add_u32 s60, s63, 1\ns_and_b32 s60, s60, 3\ns_lshl_b32 s{sSN}, s60, 20")
            for i in range(8): A.e(f"v_mov_b32 v{ACB+i}, 0")
        if w == 0:
            A.e(f"s_lshl_b32 s{sKV}, s63, 21\ns_lshl_b32 s55, s63, 13\ns_and_b32 s55, s55, 0x2000\ns_xor_b32 s55, s55, s61\ns_add_u32 s{sKV}, s{sKV}, s55")
            if DBG & 16: A.e(f"s_mov_b32 s{sKV}, s61")
        if w == 3:
            A.e(f"s_lshl_b32 s{sPS}, s63, 21\ns_lshl_b32 s55, s63, 13\ns_and_b32 s55, s55, 0x2000\ns_xor_b32 s55, s55, s61\ns_add_u32 s{sPS}, s{sPS}, s55")
        if w == 1 and SPOS['sig'] is None: A.e(f"s_add_u32 s{sSO}, s{sSR}, {XO}")
        elif w == 1:
            A.e(f"""
            s_sub_u32 s55, s63, {SIGLAG}
            s_lshl_b32 s{sKV}, s55, 4
            s_add_u32 s{sKV}, s{sKV}, {XTC + CR0*64}
            s_and_b32 s55, s55, 0x80000003
            s_or_b32 s55, s55, s57
            s_cmp_eq_u32 s55, 0
            s_cselect_b32 s{sKV}, s{sKV}, {OOB:#x}
            s_add_u32 s{sSO}, s{sSR}, {XO}""")
        if w == 2:
            A.e(f"s_add_u32 s55, s63, {SPFD}\ns_min_u32 s55, s55, {nsteps-1}\ns_lshl_b32 s55, s55, 16\ns_lshl_b32 s60, s59, 11\ns_add_u32 s{sSPF}, s55, s60\ns_add_u32 s{sSPF}, s{sSPF}, {WS['h']}")
        for i in range(8 if w in (1, 2) else 4): A.e(f"v_mov_b32 v{ACC+i}, 0")
    tail = []
    nst = [0]
    def stamp():
        if PROF and PROF != 3: A.e(f"{'s_memrealtime' if PROF == 2 else 's_memtime'} s[{32+2*nst[0]}:{33+2*nst[0]}]"); nst[0] += 1
    def accum():
        if not PROF or PROF == 3: return
        A.e("s_waitcnt lgkmcnt(0)")
        n = nst[0]; sk = L("nacc")
        if PSEL: A.e(f"s_sub_u32 s64, s79, {PSEL[0]}\ns_cmp_ge_u32 s64, {PSEL[1] - PSEL[0]}\ns_cbranch_scc1 {sk}")
        A.e(f"s_sub_u32 s64, s32, s82\ns_add_u32 s92, s92, s64")
        for k in range(1, n): A.e(f"s_sub_u32 s64, s{32+2*k}, s{30+2*k}\ns_add_u32 s{92+k}, s{92+k}, s64")
        A.label(sk)
        A.e(f"s_mov_b32 s82, s{32+2*(n-1)}")
        nst[0] = 0
    def hintpoll(so, off, TH, NO):
        hl = L("hl"); hg = L("hg")
        need = (32 * TH + 99) // 100
        ld = lambda k: f"buffer_load_dword v{HP+k}, v{VHL}, s[20:23], s{so} offen offset:{off} sc1"
        for k in range(NO - 1): A.e(ld(k)); delay(200 // NO - 12)
        A.label(hl)
        for k in range(NO):
            A.e(ld((k + NO - 1) % NO))
            A.e(f"s_waitcnt vmcnt({NO-1})\nv_cmp_eq_u32 vcc, v{VST}, v{HP+k}\ns_bcnt1_i32_b32 s64, vcc_lo\ns_cmp_ge_u32 s64, {need}\ns_cbranch_scc1 {hg}")
        A.e(f"s_sub_u32 s90, s90, 1\ns_cmp_gt_i32 s90, 0\ns_cbranch_scc1 {hl}")
        A.label(hg)
    def waitflag(off):
        wf = L("wf")
        A.label(wf)
        A.e(f"ds_read_b32 v23, v{VFL} offset:{off}\ns_sub_u32 s90, s90, 1\ns_waitcnt lgkmcnt(0)\nv_cmp_ne_u32 vcc, v23, v{VST}\ns_cmp_lt_i32 s90, 0\ns_cselect_b64 vcc, 0, vcc\ns_cbranch_vccnz {wf}")
    def gather(n, c0, work):
        base = GB; cg = CGB
        def ld(j): return f"buffer_load_dwordx4 {vr(base+4*j,4)}, v{VG + ((j+c0)>>2)}, s[20:23], s{sSO} offen offset:{((j+c0)&3)*1024} sc1"
        hintpoll(sSL, 512, THO, NOO)
        stamp()
        tb = base + 4 * n
        def ld2(j): return ld(j).replace(vr(base+4*j,4), vr(tb+4*j,4))
        m0_ = min(n, UPB)
        for j in range(m0_): A.e(ld(j))
        A.e("s_mov_b32 s68, 0")
        ng = n // cg
        def mins(b):
            regs = list(range(b, b + 4 * cg)); o = [f"v_min3_u32 v22, v{regs[0]}, v{regs[1]}, v{regs[2]}"]; regs = regs[3:]
            while len(regs) >= 2: o.append(f"v_min3_u32 v22, v22, v{regs[0]}, v{regs[1]}"); regs = regs[2:]
            if regs: o.append(f"v_min_u32 v22, v22, v{regs[0]}")
            return o
        issued = m0_; miss = []
        for g in range(ng):
            b = base + 4 * g * cg
            W = []
            last = g * cg + cg - 1
            A.e(f"s_waitcnt vmcnt({issued-1-last})")
            for j in range(g * cg, last + 1): W += work(j)
            F = mins(b) + [f"v_cmp_eq_u32 s[{52+2*(g&1)}:{53+2*(g&1)}], 0, v22"]
            if g > 0:
                ms = L("ms"); bk = L("bk"); miss.append((ms, bk, g - 1))
                F = F[:1] + [f"s_cmp_lg_u64 s[{52+2*((g-1)&1)}:{53+2*((g-1)&1)}], 0", f"s_cbranch_scc1 {ms}\n{bk}:"] + F[1:]
            for _ in range(cg):
                if issued < n: F = [ld(issued)] + F; issued += 1
            A.interleave(W, F, 0, len(W))
        assert issued == n and m0_ == n
        fin = L("fin"); rl = L("rl")
        ms = L("ms"); bk = L("bk"); miss.append((ms, bk, ng - 1)); rl2 = L("rl2")
        A.e(f"s_cmp_lg_u64 s[{52+2*((ng-1)&1)}:{53+2*((ng-1)&1)}], 0\ns_cbranch_scc1 {ms}\n{bk}:\ns_cmp_lg_u32 s68, 0\ns_cbranch_scc1 {rl2}")
        A.label(fin)
        stamp()
        def deferred():
            for (ms, bk, g) in miss:
                A.label(ms)
                A.e("s_waitcnt vmcnt(0)")
                for j in range(g * cg, g * cg + cg): A.e(ld2(j))
                A.e(f"s_bitset1_b32 s68, {g}\ns_branch {bk}")
            def scan(body):
                for j in range(ng):
                    sk = L("sk")
                    A.e(f"s_bitcmp1_b32 s68, {j}\ns_cbranch_scc0 {sk}")
                    body(j)
                    A.label(sk)
            A.label(rl)
            scan(lambda g: [A.e(ld2(j)) for j in range(g * cg, g * cg + cg)])
            A.label(rl2)
            A.e(f"s_sub_u32 s90, s90, 1\ns_cmp_lt_i32 s90, 0\ns_cbranch_scc1 {fin}\ns_waitcnt vmcnt(0)")
            def proc(g):
                b = base + 4 * g * cg; t = tb + 4 * g * cg
                nb = L("nb")
                for x in mins(t): A.e(x)
                A.e(f"v_cmp_eq_u32 vcc, 0, v22")
                for r in range(4 * cg): A.e(f"v_xor_b32 v{t+r}, v{b+r}, v{t+r}")
                A.e(f"s_cbranch_vccnz {nb}\ns_bitset0_b32 s68, {g}")
                for j in range(g * cg, g * cg + cg):
                    for x in work(j): A.e(x.replace(vr(base+4*j,4), vr(tb+4*j,4)))
                A.label(nb)
            scan(proc)
            A.e(f"s_cmp_lg_u32 s68, 0\ns_cbranch_scc1 {rl}\ns_nop 2\ns_branch {fin}")
        tail.append(deferred)
    QP = "quad_perm:[1,0,3,2] row_mask:0xf bank_mask:0xf"
    QP2 = "quad_perm:[2,3,0,1] row_mask:0xf bank_mask:0xf"
    DPP8 = "row_ror:8 row_mask:0xf bank_mask:0xf"
    cnts = {(1, 1): N1, (1, 2): N1, (2, 1): N2, (2, 2): N2, ('A', 3): NA, ('S', 3): NB3, ('B', 0): NC}
    assert sum(cnts.values()) == 64, sum(cnts.values())
    start_ = {}; p = 0
    for k_, n_ in cnts.items(): start_[k_] = p; p += n_
    def dmas(win, w):
        n = cnts.get((win, w), 0); p = start_.get((win, w), 0); o = []
        for i in range(n):
            if i % 4 == 0: o.append([f"s_add_u32 m0, s62, {(p+i)*1024}", f"s_add_u32 s69, s{sH}, {(p+i)*1024}"])
            if not DBG & 4: o.append([f"buffer_load_dwordx4 v{V16}, s[20:23], s69 offen offset:{(i%4)*1024} lds"])
        return o
    def dmaburst(win, w):
        for x in dmas(win, w):
            for y in x: A.e(y)
            if "lds" in x[0]: delay(GA)
    def slows(w, pos):
        so = []
        for k_, n in enumerate(STN[w]):
            p_ = SPOS[n]; imm = p_ in IMM
            if p_ == pos or (pos == 'def' and not imm) or (pos == 'imm' and p_ == 'P'):
                if not ((DBG & 8) and pos not in ('def', 'imm')): so.append(f"buffer_store_dwordx4 {vr(OUT+4*k_,4)}, v{12 if k_ else VOUT}, s[20:23], s{sQ2 if imm else sQO} offen sc1")
        if w == 1 and worker and SPOS['sig'] == pos: so.append(f"s_mov_b64 exec, 1\nbuffer_store_dword v10, v11, s[20:23], s{sKV} offen sc1\ns_mov_b64 exec, -1")
        return so
    def combine2(a):
        return f"""
        v_permlane32_swap_b32 v{a}, v{a+2}
        v_permlane32_swap_b32 v{a+1}, v{a+3}
        v_add_f32 v{a}, v{a}, v{a+2}
        v_add_f32 v{a+1}, v{a+1}, v{a+3}
        v_cvt_pk_bf16_f32 v{T}, v{a}, v{a+1}"""
    def phaseA(w):
        A.e("s_barrier")
        stamp()
        hintpoll(sSL, 0, THM, NOM)
        stamp()
        own = [4 * w + j for j in range(4)]
        ld = lambda c: f"buffer_load_dwordx4 {vr(GB+4*c,4)}, v{VG + (c>>2)}, s[20:23], s{sSL} offen offset:{(c&3)*1024} sc1"
        sm = lambda c, t=0: f"v_smfmac_f32_16x16x64_bf16 {vr(ACC+t*4,4)}, {vr(GB+c*4,4)}, {ar(t*128+c*8,8)}, v{VIDX}"
        rt = L("art"); bk = L("abk")
        def body():
            for c in own: A.e(ld(c))
            for j, c in enumerate(own):
                b = GB + 4 * c
                A.e(f"s_waitcnt vmcnt({3-j})\nds_write_b128 v{VLM}, {vr(b,4)} offset:{LM+c*1024}")
                A.e(f"v_min3_u32 v22, v{b}, v{b+1}, v{b+2}\nv_min_u32 v22, v22, v{b+3}" if j == 0 else f"v_min3_u32 v22, v22, v{b}, v{b+1}\nv_min3_u32 v22, v22, v{b+2}, v{b+3}")
            A.e(f"v_cmp_eq_u32 vcc, 0, v22\ns_cbranch_vccnz {rt}")
        body()
        A.label(bk)
        def retry():
            A.label(rt)
            A.e(f"s_sub_u32 s90, s90, 1\ns_cmp_lt_i32 s90, 0\ns_cbranch_scc1 {bk}")
            body()
            A.e(f"s_branch {bk}")
        tail.append(retry)
        A.e(sm(own[0]))
        A.e("s_waitcnt lgkmcnt(0)\ns_barrier")
        stamp()
        oth = [c % 16 for c in range(4 * w + 4, 4 * w + 16)]
        R_ = [f"ds_read_b128 {vr(GB+4*c,4)}, v{VLM} offset:{LM+c*1024}" for c in oth]
        for x in R_[:4]: A.e(x)
        for x in slows(w, 'A'): A.e(x)
        A.interleave([sm(c) for c in own[1:]], R_[4:10], 0, 3)
        k = 10
        for i, c in enumerate(oth):
            A.e(f"s_waitcnt lgkmcnt({min(k, 12) - 1 - i})")
            A.e(sm(c))
            if k < 12: A.e(R_[k]); k += 1
        if w in (1, 2): A.e(sm(0, 1)); A.e(sm(1, 1))
        A.e(combine2(ACC))
        A.e(f"v_mov_b32_dpp v{T+1}, v{T} {QP}\nv_perm_b32 v{T}, v{T+1}, v{T}, v{VSEL}\nv_max_u32 v{T}, 1, v{T}")
        st = f"buffer_store_dword v{T}, v{VQP}, {{S}}, s{sSL} offen"
        pub(st); pub2(st)
        stamp()
        if w in (1, 2):
            for c in range(2, 16): A.e(sm(c, 1))
            A.e(combine2(ACC + 4))
            A.e(f"v_max_u32 v{T}, 1, v{T}\nds_write_b32 v31, v{T}\nds_write_b32 v{VFL}, v{VST} offset:{4*(w-1)}")
    def bg(w, pro=False):
        ex = L("bgx")
        if not pro: A.e(f"s_cmp_ge_i32 s79, {nsteps-2}\ns_cbranch_scc1 {ex}")
        skipi = len(A.lines) - 1
        nm = 2; NRD = NRD2
        rd = lambda i: f"ds_read_b128 {vr(HF+(i%NRD)*4,4)}, v{VH} offset:{i*1024}" if not (DBG & 1 and i >= NRD) else "s_nop 0"
        pos = {}
        d1 = dmas(1, w); d2 = dmas(2, w)
        if pro: d1 = d2 = []
        sc = lambda p: p if nm == 2 else p - 16
        for i, x in enumerate(d1): pos.setdefault(max(0, sc(P1[0]) + i * (P1[1] - P1[0]) // len(d1)), []).extend(x)
        for i, x in enumerate(d2): pos.setdefault(P2[0] + i * (P2[1] - P2[0]) // len(d2), []).extend(x)
        ints = []
        for p_ in range(128):
            x = slows(w, p_)
            if x: pos.setdefault(p_, []).extend(x); ints += x
        vfl = f"ds_write_b32 v{VFL}, v{VST} offset:{24 + 4*(w-1)}"
        if ints or not pro:
            sk = L("bgsk")
            def skipped():
                A.label(sk)
                for x in ints: A.e(x)
                A.e(f"s_waitcnt vmcnt(0)\n{vfl}\ns_branch {ex}")
            tail.append(skipped)
            A.lines[skipi] = f"    s_cbranch_scc1 {sk}"
        for i in range(NRD - 1): A.e(rd(i))
        for i in range(64):
            if nm == 2 or i % 2 == 0: A.e(f"s_waitcnt lgkmcnt({max(0, min(NRD-2, 63-i) - (2-nm))})")
            for t in range(nm):
                d = vr(BACC + (t * 2 + (i & 1)) * 4, 4)
                wr = ar(t * 128 + (i >> 1) * 4, 4); hr = vr(HF + (i % NRD) * 4, 4)
                A.e(f"v_mfma_f32_16x16x32_bf16 {d}, {wr if t == 0 else hr}, {hr if t == 0 else wr}, {d if i > 1 else 0}" if not (DBG & 2 and i >= 4) else "s_nop 2")
                if t == 0 and i + NRD - 1 < 64: A.e(rd(i + NRD - 1))
                for x in pos.pop(nm * i + t, []): A.e(x)
                if PC: A.e(f"s_nop {PC-1}")
        for k in sorted(pos):
            for x in pos[k]: A.e(x)
            delay(24)
        if not pro:
            assert not ints and SPOS['v0'] == SPOS['v1'] == 'A'
            A.e(f"s_waitcnt vmcnt({N1 + N2})\n{vfl}")
        A.e(f"v_xor_b32 v{VH}, 0x10000, v{VH}\ns_xor_b32 s62, s62, 0x10000")
        if nm == 2: A.e(f"s_lshr_b32 s64, s{sSR}, 9\nv_add_u32 v22, s64, v{VLM}")
        for i in range(4 * nm): A.e(f"v_cvt_pk_bf16_f32 v{OUT+i}, v{BACC+2*i}, v{BACC+2*i+1}")
        A.e(f"v_permlane16_swap_b32 v{OUT}, v{OUT+2}\nv_permlane16_swap_b32 v{OUT+1}, v{OUT+3}")
        st = f"buffer_store_dwordx4 {vr(OUT,4)}, v{VKT}, {{S}}, s{sSR} offen"
        pub(st); pub2(st)
        if nm == 2: A.e(f"ds_write_b128 v22, {vr(OUT+4,4)} offset:{LVT+(w-1)*1024}")
        for x in slows(w, 'E'): A.e(x)
        A.label(ex)
    smb = lambda j: [f"v_smfmac_f32_16x16x64_bf16 {vr(ACB+t*4,4)}, {vr(GB+j*4,4)}, {ar(128+(j*2+t)*8,8)}, v{VIDX}" for t in range(2)]
    def combineB():
        a_ = ACB
        for r in range(4): A.e(f"v_permlane32_swap_b32 v{a_+r}, v{a_+4+r}")
        A.e(f"v_pk_add_f32 {vr(a_,2)}, {vr(a_,2)}, {vr(a_+4,2)}\nv_pk_add_f32 {vr(a_+2,2)}, {vr(a_+2,2)}, {vr(a_+6,2)}")
    end = L("end")
    lab = [L("w0"), L("w1"), L("w2"), L("w3")]
    A.e(f"s_cmp_eq_u32 s50, 3\ns_cbranch_scc1 {lab[3]}\ns_cmp_eq_u32 s50, 1\ns_cbranch_scc1 {lab[1]}\ns_cmp_eq_u32 s50, 2\ns_cbranch_scc1 {lab[2]}")
    def gom(w, lp, pre_loop=None):
        A.e(f"v_mov_b32 v{VST}, 1\ns_waitcnt vmcnt({len(slows(w, 'E'))}) lgkmcnt(0)\ns_barrier")
        if pre_loop: pre_loop()
        rts(61)
        if PROF:
            A.e(f"{'s_memrealtime' if PROF == 2 else 's_memtime'} s[82:83]\ns_waitcnt lgkmcnt(0)")
            for k in range(10): A.e(f"s_mov_b32 s{92+k}, 0")
        A.e(f"s_branch {lp}")
    def prologue(w, lp):
        book(w, 0)
        rts(33)
        A.e(f"s_waitcnt vmcnt(0) lgkmcnt(0)\ns_barrier")
        l1 = L("pn1"); l2 = L("pn2")
        A.label(l1)
        rts(34)
        bg(w, True)
        book(w, 1)
        A.e(f"s_add_u32 s79, s79, 1\ns_cmp_eq_u32 s79, 0\ns_cbranch_scc1 {l2}")
        A.e(f"v_mov_b32 v38, 1\nds_write_b32 v37, v38 offset:{4 + 4*w}")
        for x in slows(w, 'def'): A.e(x)
        rts(35)
        A.e(f"s_waitcnt lgkmcnt(0)\ns_branch {l1}")
        A.label(l2)
        rts(37)
        gom(w, lp)
    def prologue03(w, lp, pre_loop=None):
        def hl(sg, q0=0, q1=8):
            for q in range(q0, q1):
                o_ = (w // 3) * 32768 + q * 4096
                A.e(f"s_mov_b32 m0, {o_ + (sg & 1) * 65536}\ns_mov_b32 s65, {WS['h'] + sg*65536 + o_}")
                for i in range(4): A.e(f"buffer_load_dwordx4 v{V16}, s[20:23], s65 offen offset:{i*1024} lds")
        def zs():
            for st_ in range(2 + (w // 3) * 3, 5 + (w // 3) * 3):
                A.e(f"s_xor_b32 s64, s61, {(st_ << 21) + ((st_ & 1) << 13)}")
                for k_ in range(2): A.e(f"buffer_store_dwordx4 {vr(ZERO,4)}, v{VZP+k_}, s[20:23], s64 offen sc1")
        def meet(n):
            sp_ = L("qs")
            A.e(f"v_mov_b32 v38, {n}\nds_write_b32 v37, v38 offset:{4*(w // 3)}")
            A.label(sp_)
            A.e(f"ds_read_b32 v39, v37 offset:{4 - 4*(w // 3)}\ns_sub_u32 s90, s90, 1\ns_waitcnt lgkmcnt(0)\nv_cmp_gt_u32 vcc, v38, v39\ns_cmp_lt_i32 s90, 0\ns_cselect_b64 vcc, 0, vcc\ns_cbranch_vccnz {sp_}")
        assert QE == 32 or WE == 0
        def tr(base, j, rd):
            if base and j == 0: A.e("s_waitcnt lgkmcnt(0)"); meet(9)
            for q in range(4): A.e(f"ds_write_b128 v33, {ar(base+16*j+4*q,4)} offset:{(j&1)*4096 + q*1024}")
            A.e("s_waitcnt lgkmcnt(0)")
            if base == 0: meet(j + 1)
            for t in range(2):
                for R in range(2):
                    for h in range(2): A.e(f"ds_read_b64_tr_b16 {ar(base+16*j+8*t+4*R+2*h,2)}, {rd(t, 32*R + 2*h, (j&1)*4096)}")
        todo = [(0, j, lambda t, r, o: f"v36 offset:{o + t*8192 + r*64}") for j in range(8)] + [(128, j, lambda t, r, o: f"v34 offset:{o + r*64 + t*32}") for j in range(8)]
        late = [x for x in todo if 4 * x[1] + 3 >= (WE if x[0] else QE)]
        A.e(f"s_waitcnt vmcnt(0) lgkmcnt(0)\ns_barrier")
        qraw(QE, 32); oraw(WE, 32)
        for x in todo:
            if x not in late: tr(*x)
        fr = L("free")
        A.label(fr)
        A.e(f"ds_read_b64 v[38:39], v37 offset:8\ns_sub_u32 s90, s90, 1\ns_waitcnt lgkmcnt(0)\nv_and_b32 v38, v38, v39\nv_cmp_eq_u32 vcc, 0, v38\ns_cmp_lt_i32 s90, 0\ns_cselect_b64 vcc, 0, vcc\ns_cbranch_vccnz {fr}")
        zs(); hl(2)
        for i, x in enumerate(late):
            A.e(f"s_waitcnt vmcnt({min(63, (len(late) - 1 - i)*4 + 38)})")
            tr(*x)
        A.e("s_mov_b32 s79, 0")
        book(w, 0)
        gom(w, lp, pre_loop)
    def flush():
        for f in tail: f()
        tail.clear()
    A.label(lab[0])
    VX = 8; VK = (2, 5, 6, 7); VOP = 30; VMR = 31; VKR = 12; VKO = 3
    A.e(f"""
    v_and_b32 v22, 7, v3               ; m
    v_lshrrev_b32 v23, 2, v22
    v_and_b32 v5, 2, v22
    v_or_b32 v23, v23, v5
    v_and_b32 v5, 1, v22
    v_lshl_add_u32 v23, v23, 1, v5     ; pos
    v_lshlrev_b32 v23, 5, v23
    v_lshrrev_b32 v5, 3, v3
    v_lshl_add_u32 v23, v5, 9, v23
    v_lshrrev_b32 v5, 1, v4
    v_lshl_add_u32 v23, v5, 8, v23
    v_and_b32 v5, 1, v4
    v_lshl_add_u32 v23, v5, 4, v23
    v_add_u32 v{VX}, s67, v23
    v_xor_b32 v{VX+1}, 1024, v{VX}
    v_xor_b32 v{VX+2}, 2048, v{VX}
    v_xor_b32 v{VX+3}, 3072, v{VX}
    v_lshlrev_b32 v{VMR}, 4, v3
    v_lshl_add_u32 v{VMR}, v5, 3, v{VMR}
    v_add_u32 v{VMR}, {LB + LVM}, v{VMR}
    v_lshl_add_u32 v23, v4, 3, v22
    v_lshlrev_b32 v23, 4, v23
    v_add_u32 v{VKR}, {LB + LVM}, v23
    v_add_u32 v{VOP}, s66, v23
    v_cmp_gt_u32 vcc, 8, v3
    v_cmp_lt_u32 s[52:53], 1, v4
    s_and_b64 vcc, vcc, s[52:53]
    v_mov_b32 v22, {f2u(-1e30):#x}
    v_cndmask_b32 v{NEGC}, v22, 0, vcc
    v_mov_b32 v{NEGC+1}, v{NEGC}
    v_mov_b32 v{NEGC+2}, v{NEGC}
    v_mov_b32 v{NEGC+3}, v{NEGC}
    v_add_u32 v{VK[0]}, s69, v{V16}
    v_xor_b32 v{VK[1]}, 2048, v{VK[0]}
    v_xor_b32 v{VK[2]}, 4096, v{VK[0]}
    v_xor_b32 v{VK[3]}, 6144, v{VK[0]}
    s_lshr_b32 s64, s57, 3
    s_add_u32 s64, s64, 96
    s_lshl_b32 s64, s64, 14
    s_and_b32 s65, s57, 7
    s_lshl_b32 s65, s65, 10
    s_add_u32 s64, s64, s65
    s_add_u32 s64, s64, {QB}
    v_add_u32 v{VKO}, s64, v{V16}""")
    for i in range(12): A.e(f"v_mov_b32 v{VM+i}, 0")
    for i in range(4): A.e(f"v_mov_b32 v{ONE+i}, 0x3f803f80")
    f0 = L("first"); A.e(f"s_branch {f0}")
    lp = L("loop"); pn = L("pn")
    A.label(lp)
    phaseA(0)
    ktl = lambda so: [f"buffer_load_dwordx4 {vr(KTF+(p*2+i)*4,4)}, v{VK[p]}, s[20:23], s{so} offen offset:{i*1024} sc1" for p in range(4) for i in range(2)]
    k0 = L("kt0"); k0b = L("kt0b")
    A.e(f"s_lshr_b32 s64, s{sSL}, 9\nv_add_u32 v22, s64, v{VLM}\ns_cmp_eq_u32 s79, 0\nds_read_b128 {vr(VT,4)}, v22 offset:{LVT}\nds_read_b128 {vr(VT+4,4)}, v22 offset:{LVT+1024}\ns_cbranch_scc1 {k0}")
    A.label(k0b)
    def kt0():
        A.label(k0)
        for x in ktl(sSL): A.e(x)
        A.e(f"s_branch {k0b}")
    tail.append(kt0)
    delay(D2 - 24)
    def ldq(k): return [f"buffer_load_dwordx4 {vr(GB+k*16+p*4,4)}, v{VX+p}, s[20:23], s{sSL} offen sc1" for p in range(4)]
    sp = L("scp"); sok = L("scok")
    for k in range(NF2 - 1):
        for x in ldq(k): A.e(x)
        delay(200 // NF2 - 60)
    A.label(sp)
    for k in range(NF2):
        for x in ldq((k + NF2 - 1) % NF2): A.e(x)
        b = GB + k * 16
        M = []
        for p in range(4):
            M.append(f"v_mfma_f32_16x16x32_bf16 {vr(SD+8,4)}, {vr(b+p*4,4)}, {vr(b+p*4,4)}, {vr(SD+8,4) if p else vr(NEGC,4)}")
            for i in (1, 0): M.append(f"v_mfma_f32_16x16x32_bf16 {vr(SD+i*4,4)}, {vr(KTF+(p*2+i)*4,4)}, {vr(b+p*4,4)}, {vr(SD+i*4,4) if p else 0}")
        C = [f"v_min3_u32 v22, v{b}, v{b+1}, v{b+2}"] + [f"v_min3_u32 v22, v22, v{b+i}, v{b+i+1}" for i in range(3, 15, 2)] + [f"v_min_u32 v22, v22, v{b+15}", f"v_cmp_eq_u32 vcc, 0, v22"]
        A.e(f"s_waitcnt vmcnt({4*(NF2-1)})")
        nx = L("nx")
        A.interleave(M[:5], C, 0, 5)
        A.e(f"s_cbranch_vccnz {nx}")
        A.interleave(M[5:], [f"v_mov_b32 v{KVM+i}, v{b+i}" for i in range(4)], 0, 4)
        A.e(f"s_nop 1\ns_branch {sok}")
        A.label(nx)
    A.e(f"s_sub_u32 s90, s90, 1\ns_cmp_gt_i32 s90, 0\ns_cbranch_scc1 {sp}\ns_nop 7")
    A.label(sok)
    last0 = L("last0")
    vmr = f"ds_read_b64 {vr(T+4,2)}, v{VFL}\nds_read_b64 {vr(VM,2)}, v{VMR}\nds_read_b64 {vr(VM+4,2)}, v{VMR} offset:256"
    A.e(vmr)
    A.e(f"s_cmp_eq_u32 s79, {nsteps-1}\ns_cbranch_scc1 {last0}")
    stamp()
    if NB3: A.e(f"ds_write_b32 v{VFL}, v{VST} offset:16")
    mx = T; OD = T + 8; SM = T + 16
    A.e(f"v_max3_f32 v{mx}, v{SD+8}, v{SD+9}, v{SD+10}")
    for i in range(4): A.e(f"v_mov_b32_dpp v{SD+i}, v{SD+4+i} row_ror:8 row_mask:0xf bank_mask:0xc")
    A.e(f"""
    v_max3_f32 v{mx+1}, v{SD+11}, v{SD}, v{SD+1}
    v_max3_f32 v{mx}, v{mx}, v{SD+2}, v{SD+3}
    v_max_f32 v{mx}, v{mx}, v{mx+1}
    v_max_f32_dpp v{mx}, v{mx}, v{mx} {DPP8}
    v_mov_b32 v{mx+1}, v{mx}
    v_permlane16_swap_b32 v{mx+1}, v{mx}
    v_max_f32 v{mx}, v{mx}, v{mx+1}
    v_mov_b32 v{mx+1}, v{mx}
    v_permlane32_swap_b32 v{mx+1}, v{mx}
    v_max_f32 v{mx}, v{mx}, v{mx+1}
    v_mul_f32 v{mx}, s81, v{mx}""")
    vals = [SD, SD + 1, SD + 2, SD + 3, SD + 8, SD + 9, SD + 10, SD + 11]
    for v in vals: A.e(f"v_fma_f32 v{v}, v{v}, s81, -v{mx}")
    for v in vals: A.e(f"v_exp_f32 v{v}, v{v}")
    A.e(f"""
    v_cvt_pk_bf16_f32 v{PF}, v{SD}, v{SD+1}
    v_cvt_pk_bf16_f32 v{PF+1}, v{SD+2}, v{SD+3}
    v_cvt_pk_bf16_f32 v{PM}, v{SD+8}, v{SD+9}
    v_mov_b32_dpp v{PF+2}, v{PF} {DPP8}
    v_mov_b32_dpp v{PF+3}, v{PF+1} {DPP8}
    v_cvt_pk_bf16_f32 v{PM+1}, v{SD+10}, v{SD+11}
    s_waitcnt lgkmcnt(0)
    v_min_u32 v{T+4}, v{T+4}, v{T+5}
    v_mfma_f32_16x16x32_bf16 {vr(SM,4)}, {vr(ONE,4)}, {vr(PF,4)}, 0
    v_cmp_ne_u32 vcc, v{T+4}, v{VST}
    v_mfma_f32_16x16x32_bf16 {vr(SM,4)}, {vr(ONE,4)}, {vr(PM,4)}, {vr(SM,4)}""")
    for tt in range(2): A.e(f"v_mfma_f32_16x16x32_bf16 {vr(OD+tt*4,4)}, {vr(VT+tt*4,4)}, {vr(PF,4)}, 0")
    vw = L("vw"); vb = L("vb")
    A.e(f"s_cbranch_vccnz {vw}")
    A.label(vb)
    for tt in range(2): A.e(f"v_mfma_f32_16x16x32_bf16 {vr(OD+tt*4,4)}, {vr(VM+tt*4,4)}, {vr(PM,4)}, {vr(OD+tt*4,4)}")
    def vwait():
        A.label(vw)
        waitflag(0); waitflag(4)
        A.e(vmr); A.e(f"s_waitcnt lgkmcnt(0)\ns_branch {vb}")
    tail.append(vwait)
    A.e(f"s_mov_b64 exec, s[84:85]\nv_rcp_f32 v{SM+4}, v{SM}")
    for i in range(4): A.e(f"v_pk_mul_f32 {vr(OD+2*i,2)}, {vr(OD+2*i,2)}, {vr(SM+4,2)} op_sel_hi:[1,0]")
    for i in range(4): A.e(f"v_cvt_pk_bf16_f32 v{T+i}, v{OD+2*i}, v{OD+1+2*i}")
    for i in range(4): A.e(f"v_max_u32 v{T+i}, 1, v{T+i}")
    st = f"buffer_store_dwordx4 {vr(T,4)}, v{VOP}, {{S}}, s{sSO} offen"; sh = f"buffer_store_dword v{VST}, v{VHS}, {{S}}, s{sSL} offen offset:512"
    pub(st); pub2(st); A.e("s_mov_b64 exec, 1"); pub(sh); pub2(sh)
    A.e(f"s_mov_b64 exec, -1\nds_write_b32 v{VFL}, v{VST} offset:8")
    stamp()
    gather(8, 0, smb)
    combineB()
    A.e(f"ds_write_b128 v{VLM}, {vr(ACB,4)} offset:{LBP}\nds_write_b32 v{VFL}, v{VST} offset:12")
    def kvmstore():
        A.e(f"s_mov_b64 exec, s[84:85]\nds_read_b128 {vr(KVM,4)}, v{VKR}\ns_mov_b64 exec, -1")
    kvmstore()
    A.e(f"ds_read_b64 {vr(T+4,2)}, v{VFL} offset:24")
    for x in ktl(sSN): A.e(x)
    v2w = L("v2w"); v2b = L("v2b")
    A.e(f"s_waitcnt lgkmcnt(0)\nv_min_u32 v{T+4}, v{T+4}, v{T+5}\nv_cmp_ne_u32 vcc, v{T+4}, v{VST}\ns_cbranch_vccnz {v2w}")
    A.label(v2b)
    def v2wait():
        A.label(v2w)
        waitflag(24); waitflag(28)
        A.e(f"s_branch {v2b}")
    tail.append(v2wait)
    A.e(f"buffer_store_dwordx4 {vr(KVM,4)}, v{VKO}, s[20:23], s{sKV} offen sc1")
    dmaburst('B', 0)
    A.e("s_xor_b32 s62, s62, 0x10000")
    stamp()
    book(0, 1)
    accum()
    if PROF == 3: A.e("s_memrealtime s[100:101]\ns_waitcnt lgkmcnt(0)\ns_mov_b32 m0, s79\nv_writelane_b32 v254, s100, m0")
    A.e(f"s_add_u32 s79, s79, 1\nv_add_u32 v{VST}, 1, v{VST}\ns_waitcnt vmcnt(0) lgkmcnt(0)\ns_branch {lp}")
    A.label(last0)
    waitflag(0); waitflag(4)
    kvmstore()
    A.e(f"s_waitcnt lgkmcnt(0)\nbuffer_store_dwordx4 {vr(KVM,4)}, v{VKO}, s[20:23], s{sKV} offen sc1\ns_branch {end}")
    flush()
    A.label(f0); prologue03(0, lp)
    for w in (1, 2):
        A.label(lab[w])
        A.e(f"""
        s_lshr_b32 s64, s57, 2
        s_add_u32 s64, s64, 64
        s_lshl_b32 s64, s64, 14
        s_add_u32 s64, s64, s68
        s_add_u32 s64, s64, {QB + (w-1)*1024}
        v_add_u32 v12, s64, v{V16}
        v_and_b32 v22, 1, v4
        v_lshrrev_b32 v23, 1, v4
        v_lshl_add_u32 v22, v22, 1, v23
        v_lshlrev_b32 v22, 2, v22
        v_lshl_add_u32 v22, v3, 4, v22
        v_add_u32 v31, {LB + LVM + (w-1)*256}, v22""")
        if w == 1: A.e(f"v_add_u32 v8, s66, v{V16}\nv_add_u32 v9, s67, v{V16}\nv_mov_b32 v10, {CTGT}\nv_mov_b32 v11, 0")
        f0 = L("first"); A.e(f"s_branch {f0}")
        lp = L("loop"); pn = L("pn")
        A.label(lp)
        phaseA(w)
        A.e(f"s_cmp_eq_u32 s79, {nsteps-1}\ns_cbranch_scc1 {end}")
        stamp()
        bg(w)
        if w == 1:
            for x in slows(1, 'X'): A.e(x)
            for f in (pub, pub2): f(f"buffer_store_dwordx4 {vr(ZERO,4)}, v9, {{S}}, s{sSR} offen")
            A.e("s_mov_b32 exec_hi, 0")
            for f in (pub, pub2):
                f(f"buffer_store_dwordx4 {vr(ZERO,4)}, v8, {{S}}, s{sSR} offen"); f(f"buffer_store_dwordx4 {vr(ZERO,4)}, v8, {{S}}, s{sSO} offen")
            A.e("s_mov_b64 exec, -1")
        A.e("s_waitcnt lgkmcnt(0)")
        stamp()
        accum()
        if w == 2:
            ck = L("late"); ckb = L("lateb")
            A.e(f"s_andn2_b32 s64, s79, 0x14\ns_cmp_eq_u32 s64, 2\ns_cbranch_scc1 {ck}")
            A.label(ckb)
            def late():
                A.label(ck)
                A.e(f"s_cmp_eq_u32 s79, 22\ns_cbranch_scc1 {ckb}")
                A.e(f"v_lshlrev_b32 v184, 2, v{V16}\ns_mov_b32 s52, {XTC + CLN*64}\ns_mov_b32 s53, {CTGT}")
                A.e("s_lshr_b32 s64, s79, 4\ns_lshl_b32 s64, 0x100, s64\ns_cmp_eq_u32 s79, 2\ns_cselect_b32 exec_lo, 0xff, s64\ns_mov_b32 exec_hi, 0")
                dpoll("s[20:23]", "s52", "v_cmp_ne_u32 vcc, s53, v185", 2, voff=1)
                A.e("s_mov_b64 exec, -1")
                A.e(f"s_branch {ckb}")
            tail.append(late)
        if w == 2 and not DBG & 64:
            for r in range(32): A.e(f"s_buffer_load_dword s48, s[20:23], s{sSPF} offset:{r*64}")
        book(w, 1)
        A.e(f"s_add_u32 s79, s79, 1\nv_add_u32 v{VST}, 1, v{VST}\ns_waitcnt vmcnt(0)\ns_branch {lp}")
        flush()
        A.label(f0); prologue(w, lp)
    A.label(lab[3])
    VMP = 30
    A.e(f"""
    v_xor_b32 v{VP+1}, 0x10000, v{VP}
    v_xor_b32 v{VP+2}, 0x20000, v{VP}
    v_xor_b32 v{VP+3}, 0x30000, v{VP}
    v_and_b32 v22, 2, v4
    v_lshrrev_b32 v23, 3, v3
    v_add_u32 v22, v22, v23            ; 2tt + (q>>1)
    v_lshlrev_b32 v22, 3, v22
    v_and_b32 v23, 1, v4
    v_lshl_add_u32 v22, v23, 2, v22
    v_and_b32 v23, 3, v3
    v_add_u32 v22, v22, v23
    v_lshlrev_b32 v22, 4, v22
    v_bfe_u32 v23, v3, 2, 1
    v_lshl_add_u32 v22, v23, 3, v22
    v_add_u32 v{VMP}, s66, v22
    v_and_b32 v22, 7, v3
    v_lshl_add_u32 v12, v4, 3, v22
    v_lshlrev_b32 v12, 4, v12
    v_add_u32 v12, s66, v12""")
    f0 = L("first"); A.e(f"s_branch {f0}")
    lp = L("loop"); pn = L("pn")
    A.label(lp)
    phaseA(3)
    A.e(f"s_cmp_eq_u32 s79, {nsteps-1}\ns_cbranch_scc1 {end}")
    if NA: delay(DA); dmaburst('A', 3)
    if NB3: waitflag(16); dmaburst('S', 3)
    A.e("s_xor_b32 s62, s62, 0x10000")
    stamp()
    waitflag(8)
    gather(8, 8, smb)
    combineB()
    wf = L("wf")
    A.label(wf)
    A.e(f"ds_read_b32 v23, v{VFL} offset:12\nds_read_b128 {vr(T,4)}, v{VLM} offset:{LBP}\ns_sub_u32 s90, s90, 1\ns_waitcnt lgkmcnt(0)\nv_cmp_ne_u32 vcc, v23, v{VST}\ns_cmp_lt_i32 s90, 0\ns_cselect_b64 vcc, 0, vcc")
    A.e(f"v_pk_add_f32 {vr(T,2)}, {vr(T,2)}, {vr(ACB,2)}\nv_pk_add_f32 {vr(T+2,2)}, {vr(T+2,2)}, {vr(ACB+2,2)}\ns_cbranch_vccnz {wf}")
    for i in range(4): A.e(f"v_max_u32 v{T+i}, 1, v{T+i}")
    A.e(f"buffer_store_dwordx4 {vr(T,4)}, v{VP}, s[20:23], s{sPS} offen sc1")
    stamp()
    A.e(f"s_mov_b32 s88, s{sPS}\ns_mov_b32 s89, s{sSN}\nv_add_u32 v{VST}, 1, v{VST}")
    book(3, 1)
    delay(max(0, DP - 170))
    pp_ = L("pp"); pok = L("pok")
    A.label(pp_)
    for p in range(3): A.e(f"buffer_load_dwordx4 {vr(GB+p*4,4)}, v{VP+1+p}, s[20:23], s88 offen sc1")
    b = GB
    A.e(f"s_waitcnt vmcnt(2)\nv_min3_u32 v22, v{b}, v{b+1}, v{b+2}\nv_pk_add_f32 {vr(T+4,2)}, {vr(T,2)}, {vr(b,2)}\nv_pk_add_f32 {vr(T+6,2)}, {vr(T+2,2)}, {vr(b+2,2)}\ns_waitcnt vmcnt(0)")
    for i in range(3, 11, 2): A.e(f"v_min3_u32 v22, v22, v{b+i}, v{b+i+1}")
    A.e(f"""
    v_min_u32 v22, v22, v{b+11}
    v_pk_add_f32 {vr(b+4,2)}, {vr(b+4,2)}, {vr(b+8,2)}
    v_cmp_eq_u32 vcc, 0, v22
    v_pk_add_f32 {vr(b+6,2)}, {vr(b+6,2)}, {vr(b+10,2)}
    s_cbranch_vccz {pok}
    s_sub_u32 s90, s90, 1
    s_cmp_gt_i32 s90, 0
    s_cbranch_scc1 {pp_}""")
    A.label(pok)
    stamp()
    A.e(f"""
    v_pk_add_f32 {vr(T+4,2)}, {vr(T+4,2)}, {vr(b+4,2)}
    v_pk_add_f32 {vr(T+6,2)}, {vr(T+6,2)}, {vr(b+6,2)}
    s_mov_b64 vcc, s[86:87]
    v_cvt_pk_bf16_f32 v{T}, v{T+4}, v{T+5}
    v_cvt_pk_bf16_f32 v{T+1}, v{T+6}, v{T+7}
    v_mov_b32_dpp v{T+2}, v{T} {QP}
    v_mov_b32_dpp v{T+3}, v{T+1} {QP}
    v_perm_b32 v{T}, v{T+2}, v{T}, v{VSEL}
    v_perm_b32 v{T+1}, v{T+3}, v{T+1}, v{VSEL}
    v_cndmask_b32_dpp v{T+4}, v{T+1}, v{T}, vcc {QP2}
    s_not_b64 vcc, vcc
    v_cndmask_b32_dpp v{T+5}, v{T}, v{T+1}, vcc {QP2}
    v_max_u32 v{T+4}, 1, v{T+4}
    v_max_u32 v{T+5}, 1, v{T+5}""")
    st = f"buffer_store_dwordx2 {vr(T+4,2)}, v{VMP}, {{S}}, s89 offen"; sh = f"buffer_store_dword v{VST}, v{VHS}, {{S}}, s89 offen"
    pub(st); pub2(st); A.e("s_mov_b64 exec, 1"); pub(sh); pub2(sh); A.e("s_mov_b64 exec, -1")
    stamp()
    accum()
    A.e(f"s_add_u32 s79, s79, 1\ns_branch {lp}")
    flush()
    A.label(f0)
    def mem0pub():
        assert T == 216
        for i in range(4): A.e(f"v_max_u32 v{T+i}, 1, v{T+i}")
        A.e("s_mov_b64 exec, s[84:85]")
        st = f"buffer_store_dwordx4 {vr(T,4)}, v12, {{S}}, s{sSL} offen"; sh = f"buffer_store_dword v{VST}, v{VHS}, {{S}}, s{sSL} offen"
        pub(st); pub2(st); A.e("s_mov_b64 exec, 1"); pub(sh); pub2(sh); A.e("s_mov_b64 exec, -1")
    prologue03(3, lp, mem0pub)
    A.label(end)
    A.e("s_waitcnt vmcnt(0)\ns_barrier\ns_mov_b32 s50, s91")
    if PROF:
        for k in range(10): A.e(f"v_writelane_b32 v255, s{92+k}, {k}")
        rts(63)
        A.e(f"v_writelane_b32 v255, s90, 57\ns_lshl_b32 s64, s57, 2\ns_add_u32 s64, s64, s50\ns_lshl_b32 s64, s64, 8\ns_add_u32 s64, s64, {241*MB}\nv_lshrrev_b32 v5, 2, v{V16}\nbuffer_store_dword v255, v5, s[20:23], s64 offen")
        A.e(f"s_add_u32 s64, s64, {MB//2}\nbuffer_store_dword v254, v5, s[20:23], s64 offen")
    if after: A.e(f"s_branch {after}")
    A.label(done)
    A.e("s_endpgm")
    if worker: return
    A.label("code_end")
    A.end_kernel(512, 102, 256)
    return dict(grid=256, block=256, lds=160 * 1024)
```

```python
from asmgen import *
from layout import *
from gemm import load_ptr, f2u
from small import red_c
LOG2E = 1.4426950408889634
NT = 'nt'; NTX = ''; XD = 16
X0 = 8; XF = 40; SC = 104; SH = 168
def xload(A, so):
    for i in range(4):
        for q in range(2): A.e(f"buffer_load_dwordx4 {vr(X0+i*8+q*4,4)}, v5, s[32:35], s{so} offen offset:{i*512+q*16} {NTX}")
def m1_ln1_loads(A, idx, zbase, flg):
    A.e(f"s_load_dwordx4 s[4:7], s[0:1], {ARG['c']*8}")
    load_ptr(A, 8, ARG["x"])
    A.e(f"""
    v_and_b32 v1, 63, v0
    v_lshrrev_b32 v2, 6, v0            ; wave
    v_and_b32 v3, 7, v0                ; cc
    v_lshrrev_b32 v4, 3, v0            ; r0
    v_mul_u32_u24 v5, {6144*2}, v4
    v_lshl_add_u32 v5, v3, 4, v5
    v_lshlrev_b32 v6, 1, v4
    s_and_b32 s24, s{idx}, 31
    s_lshr_b32 s25, s{idx}, 5
    s_lshl_b32 s26, s24, 7
    s_mul_i32 s27, s25, {256*6144*2}
    s_add_u32 s26, s26, s27
    s_lshl_b32 s27, s25, 9
    s_waitcnt lgkmcnt(0)""")
    A.srd(12, 4, 2048); A.srd(28, 6, 1024 * 6144 * 2); A.srd(32, 8, S * D * 2)
    for j in range(8):
        A.e(f"buffer_load_dwordx4 {vr(64+4*j,4)}, v5, s[28:31], s26 offen {NT}")
        if j < 7: A.e(f"s_add_u32 s26, s26, {32*6144*2}")
    for j in range(8): A.e(f"buffer_load_ushort v{96+j}, v6, s[12:15], s27 offen offset:{j*64}")
    A.e(f"""
    v_and_b32 v3, 3, v1                ; t
    v_lshrrev_b32 v4, 2, v1            ; c
    v_lshl_add_u32 v5, v2, 2, v3
    v_lshlrev_b32 v5, 11, v5
    v_lshl_add_u32 v5, v4, 5, v5       ; x offset
    s_lshl_b32 s36, s{idx}, 15""")
    if XD: A.e(f"s_cmp_lt_u32 s{idx}, {XD}\ns_cselect_b32 s42, s36, 0x7fff0000\ns_cselect_b32 s36, 0x7fff0000, s36")
    xload(A, 42 if XD else 36)
    A.e(f"""
    v_lshrrev_b32 v6, 1, v4
    v_lshlrev_b32 v6, 11, v6
    v_and_b32 v7, 1, v4
    v_lshl_add_u32 v6, v7, 9, v6
    v_and_b32 v7, 1, v2
    v_lshl_add_u32 v6, v7, 10, v6
    v_lshrrev_b32 v7, 1, v2
    v_lshl_add_u32 v7, v7, 2, v3
    v_lshl_add_u32 v6, v7, 4, v6       ; h offset
    v_lshlrev_b32 v4, 6, v4
    s_lshr_b32 s37, s{idx}, 1
    s_lshl_b32 s37, s37, 16
    s_and_b32 s38, s{idx}, 1
    s_lshl_b32 s38, s38, 7
    s_add_u32 s37, s37, s38
    s_add_u32 s37, s37, {WS['h']}
    s_mov_b32 s38, {f2u(-LOG2E):#x}
    s_mov_b32 s39, 0xffff0000""")
    nz = A.newlabel("nz")
    A.e(f"""
    s_cmp_lg_u32 s50, 1
    s_cbranch_scc1 {nz}
    s_lshl_b32 s40, s{idx}, 9
    s_add_u32 s40, s40, {zbase}
    v_lshl_add_u32 v104, v1, 4, s40
    s_lshl_b32 s41, s{idx}, 7
    s_add_u32 s41, s41, {flg}
    v_writelane_b32 v104, s41, 32
    v_mov_b32 v108, 0
    v_mov_b32 v109, 0
    v_mov_b32 v110, 0
    v_mov_b32 v111, 0
    s_mov_b32 exec_hi, 1
    buffer_store_dwordx4 v[108:111], v104, s[20:23], 0 offen sc1
    s_mov_b64 exec, -1""")
    A.label(nz)
def m1_compute(A, idx, hook=None):
    for i in range(8): A.e(f"v_mov_b32 v{112+i}, 0")
    A.e("s_waitcnt vmcnt(8)")
    if hook: hook()
    for j in range(8):
        c = 96 + j
        A.e(f"v_lshlrev_b32 v{c}, 16, v{c}\nv_mul_f32 v104, s38, v{c}\nv_exp_f32 v104, v104\nv_add_f32 v104, 1.0, v104\nv_rcp_f32 v104, v104\nv_mul_f32 v104, v104, v{c}\nv_cvt_pk_bf16_f32 v104, v104, v104\nv_and_b32 v{c}, s39, v104")
        for k in range(4):
            w = 64 + 4 * j + k
            A.e(f"v_lshlrev_b32 v105, 16, v{w}\nv_and_b32 v106, s39, v{w}\nv_fmac_f32 v{112+2*k}, v105, v{c}\nv_fmac_f32 v{113+2*k}, v106, v{c}")
    for i in range(4): A.e(f"v_permlane32_swap_b32 v{112+i}, v{116+i}")
    for i in range(4): A.e(f"v_add_f32 v{112+i}, v{112+i}, v{116+i}")
    for i in range(2): A.e(f"v_permlane16_swap_b32 v{112+i}, v{114+i}")
    for i in range(2): A.e(f"v_add_f32 v{112+i}, v{112+i}, v{114+i}")
    for i in range(2): A.e(f"v_add_f32_dpp v{112+i}, v{112+i}, v{112+i} row_ror:8 row_mask:0xf bank_mask:0xf")
    n0 = A.newlabel("m1n0")
    A.e(f"""
    v_and_b32 v104, 7, v1
    v_lshlrev_b32 v104, 5, v104
    v_lshrrev_b32 v105, 5, v1
    v_lshl_add_u32 v104, v105, 4, v104
    v_bfe_u32 v105, v1, 4, 1
    v_lshl_add_u32 v104, v105, 3, v104
    v_lshl_add_u32 v104, v2, 8, v104
    ds_write_b64 v104, v[112:113]
    v_lshlrev_b32 v105, 2, v1
    s_lshl_b32 s40, s25, 13
    s_lshl_b32 s41, s24, 8
    s_add_u32 s40, s40, s41
    s_add_u32 s40, s40, {WS['modp']}
    s_waitcnt lgkmcnt(0)
    s_barrier
    s_cmp_lg_u32 s50, 0
    s_cbranch_scc1 {n0}""")
    for k in range(4): A.e(f"ds_read_b32 v{112+k}, v105 offset:{k*256}")
    A.e("""
    s_waitcnt lgkmcnt(0)
    v_add_f32 v112, v112, v113
    v_add_f32 v114, v114, v115
    v_add_f32 v112, v112, v114
    buffer_store_dword v112, v105, s[20:23], s40 offen sc1""")
    A.label(n0)
    A.e("s_waitcnt vmcnt(0)\ns_barrier")
def xlate(A, idx):
    if XD:
        n = A.newlabel("xd")
        A.e(f"s_cmp_lt_u32 s{idx}, {XD}\ns_cbranch_scc1 {n}\ns_barrier")
        xload(A, 36); A.label(n)
M = 8; R = 10; Tm = 12
def ln1_stats(A):
    A.e('s_waitcnt vmcnt(0)')
    for i in range(31, -1, -1): A.e(f"v_and_b32 v{XF+2*i+1}, s39, v{X0+i}\nv_lshlrev_b32 v{XF+2*i}, 16, v{X0+i}")
    A.e(f"v_pk_add_f32 {vr(M,2)}, {vr(XF,2)}, {vr(XF+2,2)}\nv_pk_add_f32 {vr(M+2,2)}, {vr(XF+4,2)}, {vr(XF+6,2)}")
    for i in range(8, 64, 4): A.e(f"v_pk_add_f32 {vr(M,2)}, {vr(M,2)}, {vr(XF+i,2)}\nv_pk_add_f32 {vr(M+2,2)}, {vr(M+2,2)}, {vr(XF+i+2,2)}")
    A.e(f"v_pk_add_f32 {vr(M,2)}, {vr(M,2)}, {vr(M+2,2)}\nv_add_f32 v{M}, v{M}, v{M+1}")
    red_c(A, M, Tm)
    A.e(f"v_mul_f32 v{M}, {f2u(-1/1024):#x}, v{M}")
    for i in range(0, 64, 2): A.e(f"v_pk_add_f32 {vr(XF+i,2)}, {vr(XF+i,2)}, {vr(M,2)} op_sel_hi:[1,0]")
    A.e(f"v_pk_mul_f32 {vr(R,2)}, {vr(XF,2)}, {vr(XF,2)}\nv_pk_mul_f32 {vr(R+4,2)}, {vr(XF+2,2)}, {vr(XF+2,2)}")
    for i in range(4, 64, 4): A.e(f"v_pk_fma_f32 {vr(R,2)}, {vr(XF+i,2)}, {vr(XF+i,2)}, {vr(R,2)}\nv_pk_fma_f32 {vr(R+4,2)}, {vr(XF+i+2,2)}, {vr(XF+i+2,2)}, {vr(R+4,2)}")
    A.e(f"v_pk_add_f32 {vr(R,2)}, {vr(R,2)}, {vr(R+4,2)}\nv_add_f32 v{R}, v{R}, v{R+1}")
    red_c(A, R, Tm)
    A.e(f"v_mov_b32 v{Tm}, {f2u(1e-5):#x}\nv_fmac_f32 v{Tm}, {f2u(1/1024):#x}, v{R}\nv_rsq_f32 v{R}, v{Tm}")
    for i in range(0, 64, 2): A.e(f"v_pk_mul_f32 {vr(XF+i,2)}, {vr(XF+i,2)}, {vr(R,2)} op_sel_hi:[1,0]")
def ln1_finish(A):
    A.e(f"v_lshlrev_b32 v7, 5, v0\ns_mov_b32 s40, {WS['modp']}")
    for k in range(4):
        for q in range(2): A.e(f"buffer_load_dwordx4 {vr(SC+k*8+q*4,4)}, v7, s[20:23], s40 offen offset:{q*16} sc1")
        if k < 3: A.e("s_add_u32 s40, s40, 8192")
    A.e(f"v_mov_b32 v{Tm+2}, 1.0\nv_cmp_lt_u32 vcc, 127, v0\nv_cndmask_b32 v{Tm+2}, 0, v{Tm+2}, vcc\ns_waitcnt vmcnt(0)")
    for i in range(0, 8, 2): A.e(f"v_pk_add_f32 {vr(SC+i,2)}, {vr(SC+i,2)}, {vr(SC+8+i,2)}\nv_pk_add_f32 {vr(SC+16+i,2)}, {vr(SC+16+i,2)}, {vr(SC+24+i,2)}")
    for i in range(0, 8, 2): A.e(f"v_pk_add_f32 {vr(SC+i,2)}, {vr(SC+i,2)}, {vr(SC+16+i,2)}")
    for i in range(4): A.e(f"v_cvt_pk_bf16_f32 v{SC+8+i}, v{SC+2*i}, v{SC+2*i+1}")
    for i in range(4): A.e(f"v_lshlrev_b32 v{SC+2*i}, 16, v{SC+8+i}\nv_and_b32 v{SC+2*i+1}, s39, v{SC+8+i}")
    for i in range(0, 8, 2): A.e(f"v_pk_add_f32 {vr(SC+i,2)}, {vr(SC+i,2)}, {vr(Tm+2,2)} op_sel_hi:[1,0]")
    A.e(f"ds_write_b128 v7, {vr(SC,4)} offset:4096\nds_write_b128 v7, {vr(SC+4,4)} offset:4112\ns_waitcnt lgkmcnt(0)\ns_barrier")
    for i in range(4):
        for q in range(4):
            A.e(f"ds_read_b128 {vr(SC+i*16+q*4,4)}, v4 offset:{8192+i*1024+q*16}\nds_read_b128 {vr(SH+i*16+q*4,4)}, v4 offset:{4096+i*1024+q*16}")
    for i in range(4):
        A.e(f"s_waitcnt lgkmcnt({min(15, 8*(3-i))})")
        for j in range(i * 16, i * 16 + 16, 2): A.e(f"v_pk_fma_f32 {vr(XF+j,2)}, {vr(XF+j,2)}, {vr(SC+j,2)}, {vr(SH+j,2)}")
        for u in range(2):
            o = 16 + ((i & 1) * 2 + u) * 4
            for j, d in enumerate((0, 4, 1, 5)):
                c = XF + i * 16 + 2 * (d + 2 * u)
                A.e(f"v_cvt_pk_bf16_f32 v{o+j}, v{c}, v{c+1}")
            if u == 0 and i: A.e(f"s_add_u32 s37, s37, 16384")
            A.e(f"buffer_store_dwordx4 {vr(o,4)}, v6, s[20:23], s37 offen offset:{u*256} sc1")
```

```python
from asmgen import *
from layout import *
from gemm import load_ptr, f2u
import start
LOG2E = 1.4426950408889634
SCL = (128 ** -0.5) * LOG2E

XMEAS = WS["xch"]
XCNT = XMEAS + 65536
XHEAD = XCNT + 2048
XTC = XCNT + 4096
CRL = 136
CTGT = 1792
CR0 = 8
CLN = 176; CPZ = 184
XLOC = WS["xch"] + 2 * MB
XO = 65536; XQK = 131072; XKT = 262144; XHI = 524288
XFLG = XMEAS + 131072
RFLG = XMEAS + 196608
NRDY = 128
DPAR = 32; DRDY = 36; DM1F = 160; DM1S = 164
QB = WS["qkv"]
OOB = 0x7fff0000
LB = 131072
LM = 0; LVT = 16384; LVM = 24576; LBP = 25600; LFL = LB + 27648; L_ROLE = LB + 27904
LDS_BYTES = LB + 28672
HALF = 0x00ff00ff
FORCE_SLOW = False
PROF = False
BUDGET = 400000
THM = 25; NOM = 2; THO = 50; NOO = 1; D2 = 200; NF2 = 2; DP = 450; UPB = 8; CGB = 2
N1 = 16; P1 = (15, 55); N2 = 10; P2 = (100, 128); NRD2 = 4; SPFD = 5
NA = 12; DA = 300; NB3 = 0; NC = 0; GA = 16
SIGLAG = 5
PC = 0
DBG = 0
SPOS = dict(k0='E', v0='A', k1='E', v1='A', sig=None)
NPZ = 8
WPF = 0
CPF = 1
WNT = 'nt'; QNT = 'nt'; ONT = 'nt'
PNT = ''
PFD = 0
DWT = 0
PFW = ''
NQE = 0
SLP = 2
CPERM = 0; CPERM2 = 0; PSEL = None; XW = 1; KJ = 8; TPRE = 0; QE = 32; WE = 12; KE = 2

def rec_kernel(A, name, worker=None, nsteps=64, after=None):
    L = A.newlabel
    def delay(n):
        while n >= 64:
            A.e("s_nop 15"); n -= 64
        n //= 4
        if n > 0: A.e(f"s_nop {n-1}")
    A.begin_kernel(name)
    done = L("done")
    wexit = worker if worker else done
    def rts(lane):
        if PROF: A.e(f"s_memrealtime s[100:101]\ns_waitcnt lgkmcnt(0)\nv_writelane_b32 v255, s100, {lane}\ns_memtime s[100:101]\ns_waitcnt lgkmcnt(0)\nv_writelane_b32 v255, s100, {lane-16}")
    A.e(f"s_cmp_ge_u32 s2, 256\ns_cbranch_scc1 {done}")
    A.e(f"s_load_dwordx4 s[16:19], s[0:1], {ARG['dbg']*8}")
    A.e("s_load_dword s3, s[0:1], 0")
    def cpf():
        if not CPF: return
        A.e("buffer_load_dword v181, v180, s[8:11], 0 offen\ns_mov_b32 s12, 0x8000\nbuffer_load_dword v182, v180, s[8:11], s12 offen")
        if worker: A.e("s_lshr_b32 s12, s2, 3\ns_and_b32 s12, s12, 7\ns_add_u32 s12, s12, 2\ns_lshl_b32 s12, s12, 15\nbuffer_load_dword v183, v180, s[8:11], s12 offen")
    if CPF:
        pc0 = L("pc"); c0 = L("nocpf")
        A.e(f"s_getpc_b64 s[4:5]\n{pc0}:\ns_sub_u32 s8, s4, {pc0}-{name}\ns_subb_u32 s9, s5, 0\ns_and_b32 s9, s9, 0xffff\ns_mov_b32 s10, code_end-{name}\ns_mov_b32 s11, 0x20000")
        A.e(f"v_lshlrev_b32 v180, 7, v0\nv_cmp_gt_u32 vcc, 64, v0\ns_cbranch_vccnz {c0}")
        cpf()
        A.label(c0)
    A.e(f"""
    v_and_b32 v1, 63, v0
    v_lshrrev_b32 v2, 6, v0
    s_getreg_b32 s51, hwreg(HW_REG_XCC_ID)
    v_readfirstlane_b32 s50, v2        ; wave
    s_and_b32 s51, s51, 7
    s_waitcnt lgkmcnt(0)""")
    A.srd(20, 18, WS_BYTES)
    A.srd(44, 16, 256)
    A.e(f"s_mov_b32 s90, {BUDGET}\ns_mov_b32 s91, s50")
    rts(58)
    norole = L("norole"); setup = L("setup"); verify = L("verify"); loops = L("loops"); pre = L("pre"); post = L("post")
    A.e(f"""
    v_mov_b32 v187, {L_ROLE}
    s_cmp_lg_u32 s50, 0
    s_cbranch_scc1 {norole}
    s_mov_b64 exec, 1
    v_mov_b32 v184, 1
    v_mov_b32 v185, 0
    s_and_b32 s52, s51, 3
    s_lshl_b32 s52, s52, 2
    s_lshr_b32 s53, s51, 2
    s_lshl_b32 s53, s53, 7
    s_add_u32 s52, s52, s53
    buffer_atomic_add v184, v185, s[44:47], s52 offen sc0 sc1
    s_mov_b64 exec, -1""")
    cpf()
    A.e(f"""
    s_mov_b64 exec, 1
    s_waitcnt vmcnt({(2 + (1 if worker else 0)) if CPF else 0})
    ds_write_b32 v187, v184
    s_waitcnt lgkmcnt(0)
    s_mov_b64 exec, -1""")
    A.label(norole)
    A.e(f"""
    s_barrier
    ds_read_b32 v186, v187
    s_waitcnt lgkmcnt(0)
    v_readfirstlane_b32 s54, v186
    s_mov_b32 s56, 2
    s_lshl_b32 s57, s51, 5
    s_add_u32 s57, s57, s54
    s_cmp_lt_u32 s54, 32
    s_cselect_b32 s57, s57, 999
    s_cmp_ge_u32 s57, 256
    s_cbranch_scc1 {verify}
    s_cmp_ge_u32 s57, 128
    s_cbranch_scc1 {pre}""")
    slow = L("slowrole")
    def tickets(par, pre=0):
        vp = L("vpoll"); vg = L("vgot"); vs = L("vslp")
        A.e(f"v_and_b32 v184, 3, v1\nv_bfe_u32 v185, v1, 2, 1\nv_lshlrev_b32 v184, 2, v184\nv_lshl_add_u32 v184, v185, 7, v184\nv_writelane_b32 v184, {DPAR}, 8\ns_mov_b64 exec, 0x1ff")
        if pre == 1: A.e("buffer_load_dword v183, v184, s[44:47], 0 offen sc1"); return
        vf = L("vfirst")
        if pre: A.e(f"v_mov_b32 v185, v183\ns_branch {vf}")
        A.label(vp)
        A.e("buffer_load_dword v185, v184, s[44:47], 0 offen sc1\ns_waitcnt vmcnt(0)")
        A.label(vf)
        for x in range(8): A.e(f"v_readlane_b32 s{92+x}, v185, {x}")
        A.e("v_readlane_b32 s61, v185, 8\ns_add_u32 s64, s92, s93")
        for x in range(2, 8): A.e(f"s_add_u32 s64, s64, s{92+x}")
        A.e(f"""
        s_min_u32 s65, s92, s93
        s_min_u32 s66, s94, s95
        s_min_u32 s65, s65, s66
        s_min_u32 s66, s96, s97
        s_min_u32 s65, s65, s66
        s_min_u32 s66, s98, s99
        s_min_u32 s65, s65, s66
        s_cmp_lt_u32 s65, {33 if FORCE_SLOW else 32}
        s_cselect_b32 s65, 1, 0
        s_cmp_lt_u32 s64, 256
        s_cbranch_scc1 {vs}""")
        if par: A.e(f"s_or_b32 s66, s65, s61\ns_cmp_lg_u32 s66, 0\ns_cbranch_scc1 {vg}")
        else: A.e(f"s_branch {vg}")
        A.label(vs)
        A.e(f"s_sleep 8\ns_sub_u32 s90, s90, 1\ns_cmp_gt_i32 s90, 0\ns_cbranch_scc1 {vp}")
        A.label(vg)
        A.e("s_mov_b64 exec, -1\ns_and_b32 s61, s61, 1\ns_lshl_b32 s61, s61, 13")
    def slowid():
        A.e("s_mov_b32 s66, s54")
        for x in range(7):
            A.e(f"s_cmp_gt_u32 s51, {x}\ns_cselect_b32 s64, s{92+x}, 0\ns_add_u32 s66, s66, s64")
        if FORCE_SLOW: A.e("s_mul_i32 s66, s66, 37\ns_add_u32 s66, s66, 11\ns_and_b32 s66, s66, 255")
    def share(body, wv=0):
        n0 = L("sh0")
        A.e(f"v_mov_b32 v187, {L_ROLE}\ns_cmp_lg_u32 s50, {wv}\ns_cbranch_scc1 {n0}")
        body()
        A.e("v_mov_b32 v184, s65\nv_mov_b32 v185, s66\nv_mov_b32 v186, s61\nds_write_b96 v187, v[184:186] offset:16\ns_waitcnt lgkmcnt(0)")
        A.label(n0)
        A.e(f"""
        s_barrier
        ds_read_b96 v[184:186], v187 offset:16
        s_waitcnt lgkmcnt(0)
        v_readfirstlane_b32 s65, v184
        v_readfirstlane_b32 s66, v185
        v_readfirstlane_b32 s61, v186""")
    def doverify(par):
        def body(): tickets(par); slowid()
        share(body)
        A.e(f"s_cmp_lg_u32 s65, 0\ns_cbranch_scc1 {slow}\ns_mov_b32 s56, 0")
    def dpoll(srd, off, cond, sl=4, voff=None, lanes=None):
        lp_ = L("dp"); ok_ = L("dpok")
        if voff is None: A.e("v_mov_b32 v184, 0")
        if lanes: A.e(f"s_mov_b64 exec, {lanes:#x}")
        A.label(lp_)
        A.e(f"buffer_load_dword v185, v184, {srd}, {off} offen sc1\ns_waitcnt vmcnt(0)\n{cond}\ns_cbranch_vccz {ok_}\ns_sleep {sl}\ns_sub_u32 s90, s90, 1\ns_cmp_gt_i32 s90, 0\ns_cbranch_scc1 {lp_}")
        A.label(ok_)
        if lanes: A.e("s_mov_b64 exec, -1")
    def getpar():
        dpoll("s[44:47]", DPAR, "v_cmp_eq_u32 vcc, 0, v185")
        A.e("v_readfirstlane_b32 s65, v185\ns_and_b32 s65, s65, 1\ns_lshl_b32 s61, s65, 13")
    def arrive():
        A.e(f"s_and_b32 s64, s56, 1\ns_lshl_b32 s64, s64, 2\ns_add_u32 s64, s64, {DRDY}\ns_mov_b64 exec, 1\nv_mov_b32 v184, 1\nv_mov_b32 v185, 0\nbuffer_atomic_add v184, v185, s[44:47], s64 offen sc1\ns_mov_b64 exec, -1")
    A.label(setup)
    rts(59)
    A.e(f"s_load_dwordx8 s[4:11], s[0:1], {ARG['mem0']*8}")
    A.e(f"s_load_dwordx2 s[12:13], s[0:1], {ARG['Wo']*8}")
    A.e(f"""
    v_and_b32 v3, 15, v1               ; lam
    v_lshrrev_b32 v4, 4, v1            ; g
    v_lshlrev_b32 v16, 4, v1           ; lane*16
    v_lshrrev_b32 v30, 2, v1
    v_and_b32 v31, 3, v1
    v_lshlrev_b32 v7, 13, v30
    v_lshl_add_u32 v7, v31, 4, v7
    v_lshlrev_b32 v8, 11, v30
    v_lshl_add_u32 v8, v31, 4, v8
    s_lshr_b32 s58, s57, 5             ; group x
    s_and_b32 s59, s57, 31             ; rank r
    s_xor_b32 s60, s57, {CPERM}
    s_lshl_b32 s60, s60, 6             ; E0 bytes
    s_lshl_b32 s61, s50, 14
    s_lshl_b32 s62, s50, 21
    s_add_u32 s62, s62, s60
    s_lshl_b32 s63, s58, 21
    s_lshl_b32 s64, s50, 19
    s_add_u32 s63, s63, s64
    s_xor_b32 s64, s59, {CPERM2}
    s_lshl_b32 s64, s64, 6
    s_add_u32 s63, s63, s64
    s_waitcnt lgkmcnt(0)""")
    A.srd(28, 8, 8 * MB); A.srd(32, 10, 8 * MB); A.srd(36, 6, 8 * MB); A.srd(40, 12, 8 * MB)
    A.srd(8, 4, 16384)
    A.e(f"""
    v_lshlrev_b32 v9, 7, v3
    v_lshl_add_u32 v10, v4, 11, v9
    v_lshl_add_u32 v9, v4, 13, v9
    s_lshl_b32 s64, s59, 2
    s_add_u32 s64, s64, s50
    s_lshl_b32 s65, s64, 16
    s_lshl_b32 s66, s58, 11
    s_add_u32 s65, s65, s66
    s_lshl_b32 s66, s64, 14
    s_lshl_b32 s67, s58, 21
    s_add_u32 s66, s66, s67""")
    def wpf(mat):
        if not WPF: return 0
        for h in range(2):
            if mat < 3: A.e(f"s_add_u32 s64, s65, {h*4*8192}\nbuffer_load_dword v{200+mat*2+h}, v9, s[{28+mat*4}:{31+mat*4}], s64 offen {PNT}")
            else: A.e(f"s_add_u32 s64, s66, {h*4*2048}\nbuffer_load_dword v{200+mat*2+h}, v10, s[40:43], s64 offen {PNT}")
        return 2
    def wissue(mat):
        buf = mat & 1
        for J in range(16):
            if mat < 3:
                A.e(f"s_add_u32 s64, s62, {J*16*8192}\ns_add_u32 m0, s61, {buf*65536+J*1024}\nbuffer_load_dwordx4 v7, s[{28+mat*4}:{31+mat*4}], s64 offen {WNT} lds")
            else:
                A.e(f"s_add_u32 s64, s63, {J*16*2048}\ns_add_u32 m0, s61, {buf*65536+J*1024}\nbuffer_load_dwordx4 v8, s[40:43], s64 offen {WNT} lds")
    def wread(base, addr, nch, tiles):
        for j in range(nch):
            for t in range(tiles):
                a = base + (j * tiles + t) * 8
                for R in range(2):
                    for h in range(2):
                        A.e(f"ds_read_b64_tr_b16 {ar(a+4*R+2*h,2)}, v{addr} offset:{(64*j + 32*R + 2*h)*64 + t*32}")
            if j % 2 == 1 or tiles == 2: A.e("s_waitcnt lgkmcnt(0)")
    if SLP:
        A.e(f"""
        v_and_b32 v9, 7, v1
        v_lshrrev_b32 v10, 3, v1
        s_cmp_eq_u32 s58, 3
        s_cselect_b32 s64, 15, 3
        v_mov_b32 v11, 3
        v_cmp_eq_u32 vcc, 1, v10
        v_cndmask_b32 v11, v11, 11, vcc
        v_lshlrev_b32 v12, 7, v11
        v_lshl_add_u32 v12, v9, 11, v12
        v_mov_b32 v13, s64
        v_cmp_eq_u32 vcc, 2, v10
        v_cndmask_b32 v11, v11, v13, vcc
        v_lshlrev_b32 v11, 7, v11
        v_lshl_add_u32 v11, v9, 13, v11""")
    def slp(mats):
        A.e("s_mov_b64 exec, 0xffffff")
        for m_ in mats:
            if m_ < 3: A.e(f"buffer_load_dword v{200+m_}, v11, s[{28+m_*4}:{31+m_*4}], s65 offen {PNT}")
            else: A.e(f"s_mov_b64 exec, 0xffff\nbuffer_load_dword v203, v12, s[40:43], s66 offen {PNT}")
        A.e("s_mov_b64 exec, -1")
        return len(mats)
    if SLP == 1: slp([0, 1, 2, 3])
    WQ = 32; ZERO = 100; RV = 204; VZP = 206
    for i in range(4): A.e(f"v_mov_b32 v{ZERO+i}, 0")
    A.e("s_mov_b32 s53, s65\ns_mov_b32 s55, s66")
    A.e(f"""
    v_and_b32 v22, 7, v3
    v_lshlrev_b32 v31, 11, v22
    v_lshl_add_u32 v31, v4, 4, v31
    s_lshr_b32 s64, s59, 3
    s_lshl_b32 s64, s64, 14
    s_and_b32 s65, s59, 7
    s_lshl_b32 s65, s65, 10
    s_add_u32 s64, s64, s65
    s_lshl_b32 s65, s58, 16
    s_add_u32 s64, s64, s65
    s_add_u32 s64, s64, {QB + 112*16384}
    s_lshr_b32 s65, s57, 3
    s_add_u32 s65, s65, 96
    s_lshl_b32 s65, s65, 14
    s_and_b32 s66, s57, 7
    s_lshl_b32 s66, s66, 10
    s_add_u32 s65, s65, s66
    s_add_u32 s65, s65, {QB}
    v_add_u32 v{VZP}, s64, v16
    v_add_u32 v{VZP+1}, s65, v16
    s_and_b32 s64, s50, 1
    s_lshl_b32 s64, s64, 21
    s_lshr_b32 s65, s50, 1
    s_lshl_b32 s65, s65, 13
    s_add_u32 s64, s64, s65
    buffer_store_dwordx4 {vr(ZERO,4)}, v{VZP}, s[20:23], s64 offen sc1
    buffer_store_dwordx4 {vr(ZERO,4)}, v{VZP+1}, s[20:23], s64 offen sc1
    s_lshl_b32 s64, s50, 20
    s_add_u32 s64, s64, {XLOC}
    s_cmp_lt_u32 s50, 2
    s_cselect_b32 s67, s64, {OOB:#x}
    s_lshl_b32 s65, s57, 10
    s_add_u32 s65, s65, {XQK}
    s_add_u32 s65, s65, s67
    buffer_store_dwordx4 {vr(ZERO,4)}, v16, s[20:23], s65 offen sc1
    s_lshl_b32 s65, s57, 9
    s_add_u32 s65, s65, s67
    s_add_u32 s66, s65, {XO}
    s_mov_b32 exec_hi, 0
    buffer_store_dwordx4 {vr(ZERO,4)}, v16, s[20:23], s65 offen sc1
    buffer_store_dwordx4 {vr(ZERO,4)}, v16, s[20:23], s66 offen sc1
    s_lshl_b32 s65, s57, 2
    s_add_u32 s65, s65, s64
    s_add_u32 s65, s65, {XHI}
    s_lshl_b32 s52, s57, 7
    s_add_u32 s52, s52, {RFLG}
    s_mov_b64 exec, 1
    buffer_store_dword v{ZERO}, v{ZERO}, s[20:23], s65 offen sc1
    buffer_store_dword v{ZERO}, v{ZERO}, s[20:23], s65 offen offset:512 sc1
    s_mov_b64 exec, 15
    buffer_store_dwordx4 {vr(ZERO,4)}, v16, s[20:23], s52 offen sc1
    s_mov_b64 exec, -1""")
    A.e("s_mov_b32 s65, s53\ns_mov_b32 s66, s55")
    s5 = L("ws")
    A.e(f"v_mov_b32 v37, {L_ROLE + 32}\nds_write_b128 v37, {vr(ZERO,4)}")
    def zarr(n):
        A.e(f"s_waitcnt vmcnt({n}) lgkmcnt(0)\ns_barrier\ns_cmp_lg_u32 s50, 1\ns_cbranch_scc1 {s5}")
        arrive(); A.label(s5)
    n_ = 0
    if WPF:
        wpf(0); wpf(1); zarr(4)
        A.e("s_waitcnt vmcnt(2)")
        wissue(0); n_ = wpf(2)
        A.e("s_waitcnt vmcnt(18)")
    else:
        for J in range(16):
            if J == KJ: zarr(KJ)
            A.e(f"s_add_u32 s64, s62, {J*16*8192}\ns_add_u32 m0, s61, {J*1024}\nbuffer_load_dwordx4 v7, s[28:31], s64 offen {WNT} lds")
        n_ = slp([1, 2, 3]) if SLP == 2 else 0
    wissue(1)
    A.e("s_lshl_b32 s64, s59, 6\nbuffer_load_dwordx4 v[216:219], v31, s[8:11], s64 offen")
    nz_ = 1
    rts(29)
    A.e(f"""
    v_lshrrev_b32 v184, 3, v3            ; r'>>1
    v_bfe_u32 v185, v3, 2, 1             ; r'&1
    v_lshrrev_b32 v186, 1, v4            ; gB>>1
    v_and_b32 v187, 1, v4                ; gB&1
    v_lshl_add_u32 v188, v184, 3, v185
    v_lshl_add_u32 v188, v186, 4, v188
    v_lshl_add_u32 v188, v187, 2, v188
    v_lshl_add_u32 v189, v184, 2, v185
    v_lshl_add_u32 v189, v186, 3, v189
    v_lshl_add_u32 v189, v187, 4, v189
    v_and_b32 v187, 3, v3                ; c'
    v_lshlrev_b32 v187, 3, v187
    v_lshl_add_u32 v188, v188, 6, v187
    v_lshl_add_u32 v189, v189, 6, v187
    s_lshr_b32 s64, s50, 1
    s_lshl_b32 s64, s64, 5               ; tile (w>>1) * 32B
    v_add_u32 v190, s64, v188
    v_add_u32 v191, 0x10000, v190
    s_lshl_b32 s64, s64, 10
    v_add_u32 v192, s64, v189
    s_add_u32 s64, s61, 0x10000
    v_add_u32 v193, s64, v16
    s_add_u32 s68, s50, 1""")
    s1 = L("ws"); s3 = L("ws"); s4 = L("ws"); rq = L("rq"); rqb = L("rqb")
    A.e(f"s_mov_b32 s69, 0\ns_waitcnt vmcnt({n_ + 16 + nz_ + NQE})")
    A.e("s_barrier")
    rts(30)
    if XW:
        A.e(f"""
        s_lshl_b32 s64, s57, 9
        v_mov_b32 v194, s64
        s_add_u32 s65, s64, {XO - 512}
        v_mov_b32 v195, s65
        v_cmp_lt_u32 vcc, 3, v1
        v_cndmask_b32 v194, v194, v195, vcc
        s_lshl_b32 s65, s57, 10
        s_add_u32 s65, s65, {XQK - 1024}
        v_mov_b32 v195, s65
        v_cmp_lt_u32 vcc, 7, v1
        v_cndmask_b32 v194, v194, v195, vcc
        s_lshl_b32 s65, s57, 11
        s_add_u32 s65, s65, {XKT - 2048}
        v_mov_b32 v195, s65
        v_cmp_lt_u32 vcc, 15, v1
        v_cndmask_b32 v194, v194, v195, vcc
        v_lshl_add_u32 v194, v1, 7, v194
        s_lshl_b32 s65, s58, 7
        s_add_u32 s65, s65, {XHI}
        v_writelane_b32 v194, s65, 32
        s_add_u32 s65, s65, 512
        v_writelane_b32 v194, s65, 33
        s_lshl_b32 s64, s50, 20
        s_add_u32 s64, s64, {XLOC}
        s_mov_b32 exec_hi, 3
        buffer_load_dword v183, v194, s[20:23], s64 offen sc1
        s_mov_b64 exec, -1""")
    def qraw(J0, J1):
        for J in range(J0, J1): A.e(f"s_add_u32 s64, s14, {((J >> 2)*128 + (J & 3)*16)*8192}\nbuffer_load_dwordx4 {ar(4*J,4)}, v35, s[36:39], s64 offen {QNT}")
    def oraw(J0, J1):
        for J in range(J0, J1): A.e(f"s_add_u32 s64, s15, {J*16*2048}\nbuffer_load_dwordx4 {ar(128+4*J,4)}, v32, s[40:43], s64 offen {ONT}")
    A.e(f"""
    s_and_b32 s65, s50, 1
    s_lshl_b32 s14, s65, 19
    s_add_u32 s14, s14, s60
    s_lshl_b32 s15, s65, 19
    s_sub_u32 s15, s63, s15
    s_lshl_b32 s65, s65, 13
    s_add_u32 s65, s65, {LB + LM}
    v_mov_b32 v32, v8
    v_add_u32 v33, s65, v16
    v_add_u32 v34, s65, v189
    v_mov_b32 v35, v7
    v_add_u32 v36, {LB + LM}, v190
    v_mov_b32 v37, {L_ROLE + 32}""")
    npf = wpf(3)
    A.e(f"s_bitcmp1_b32 s68, 1\ns_cbranch_scc0 {s1}")
    wread(0, 190, 16, 1)
    A.e(f"s_waitcnt vmcnt({npf})\ns_barrier"); rts(31)
    wread(128, 191, 16, 1)
    A.e(f"s_branch {s4}")
    A.label(s1)
    if WPF: A.e(f"s_waitcnt vmcnt({17 + XW + npf})")
    qraw(0, QE); oraw(0, WE)
    A.e(f"s_waitcnt vmcnt({QE + WE + npf})\ns_barrier"); rts(31)
    A.label(s4)
    rts(60)
    def started():
        lp_ = L("stl"); ok_ = L("stok")
        if DWT: A.e(f"s_mov_b64 exec, 1\nv_mov_b32 v184, 1\nv_mov_b32 v185, 0\ns_mov_b32 s64, {DWT}\nbuffer_atomic_add v184, v185, s[44:47], s64 offen sc1\ns_mov_b64 exec, -1")
        A.e("s_mov_b32 s53, 0")
        A.label(lp_)
        A.e("s_add_u32 s64, s52, 32\ns_buffer_load_dwordx8 s[72:79], s[20:23], s52 glc\ns_buffer_load_dwordx8 s[80:87], s[20:23], s64 glc\ns_waitcnt lgkmcnt(0)")
        for n in (8, 4, 2): A.e("\n".join(f"s_min_u32 s{72+i}, s{72+i}, s{72+n+i}" for i in range(n)))
        A.e(f"""
        s_min_u32 s64, s72, s73
        s_mov_b32 s65, 0
        s_and_b32 s61, s64, 1
        s_lshl_b32 s61, s61, 13
        s_cmp_lg_u32 s64, 0
        s_cbranch_scc1 {ok_}
        s_sub_u32 s90, s90, 1
        s_cmp_lt_i32 s90, 0
        s_cbranch_scc1 {ok_}
        s_add_u32 s53, s53, 1
        s_and_b32 s64, s53, 31
        s_cbranch_scc1 {lp_}
        s_cmp_eq_u32 s56, 1
        s_cbranch_scc1 {lp_}""")
        tickets(False); slowid()
        A.e(f"s_cmp_eq_u32 s65, 0\ns_cbranch_scc1 {lp_}")
        A.label(ok_)
    share(started, 1)
    A.e(f"s_cmp_lg_u32 s65, 0\ns_cbranch_scc1 {slow}\ns_and_b32 s56, s56, 1\ns_branch {loops}")
    A.label(pre)
    rts(50)
    A.e("s_sub_u32 s55, s57, 128")
    start.m1_ln1_loads(A, 55, XCNT, XFLG)
    rts(51)
    start.m1_compute(A, 55, lambda: rts(52))
    rts(53)
    def dbgadd(off_expr):
        nk = L("nadd")
        A.e(f"s_cmp_lg_u32 s50, 0\ns_cbranch_scc1 {nk}\ns_mov_b64 exec, 1\nv_mov_b32 v184, 1\nv_mov_b32 v185, 0\n{off_expr}\nbuffer_atomic_add v184, v185, s[44:47], s52 offen sc1\ns_mov_b64 exec, -1")
        A.label(nk)
    nl = L("notlast")
    A.e(f"""
    s_cmp_lg_u32 s50, 0
    s_cbranch_scc1 {post}""")
    if TPRE: tickets(False, 1)
    A.e(f"""
    s_mov_b64 exec, 1
    v_mov_b32 v184, 1
    v_mov_b32 v185, 0
    s_and_b32 s52, s56, 1
    s_lshl_b32 s52, s52, 2
    s_add_u32 s52, s52, {DM1F}
    buffer_atomic_add v184, v185, s[44:47], s52 offen sc0 sc1
    s_waitcnt vmcnt(0)
    v_readfirstlane_b32 s64, v184
    s_mov_b64 exec, -1
    s_cmp_eq_u32 s56, 1
    s_cbranch_scc1 {post}
    s_cmp_lg_u32 s64, 127
    s_cbranch_scc1 {post}""")
    tickets(False, 2 * TPRE)
    A.e(f"""
    s_cmp_lg_u32 s65, 0
    s_cbranch_scc1 {post}
    v_lshlrev_b32 v184, 7, v1
    v_mov_b32 v185, 1
    s_mov_b32 s64, {XFLG}
    s_mov_b32 s65, {XFLG + 8192}
    buffer_store_dword v185, v184, s[20:23], s64 offen sc1
    buffer_store_dword v185, v184, s[20:23], s65 offen sc1
    s_branch {post}""")
    A.label(verify)
    doverify(False)
    A.e(f"s_branch {done}")
    A.label(slow)
    A.e(f"s_mov_b32 s57, s66\ns_mov_b32 s56, 1\ns_waitcnt vmcnt(0)\ns_barrier\ns_cmp_ge_u32 s57, 128\ns_cbranch_scc1 {pre}")
    dbgadd(f"s_mov_b32 s52, {DM1S}")
    A.e(f"s_branch {setup}")
    A.label(post)
    wk = L("nomeas")
    start.xlate(A, 55)
    if PFW:
        npf = L("npf")
        A.e(f"""
        s_cmp_lt_u32 s55, 16
        s_cbranch_scc1 {npf}
        s_cmp_eq_u32 s55, 127
        s_cbranch_scc1 {npf}
        s_load_dwordx2 s[64:65], s[0:1], {ARG['Wo']*8}
        s_load_dwordx2 s[66:67], s[0:1], {ARG['Wq']*8}
        s_sub_u32 s52, s55, 16
        s_lshl_b32 s52, s52, 2
        s_add_u32 s52, s52, s50
        s_lshl_b32 s52, s52, 13
        v_lshlrev_b32 v184, 7, v1
        s_waitcnt lgkmcnt(0)""")
        A.srd(68, 64, 8 * MB); A.srd(72, 66, 8 * MB)
        for m_ in PFW:
            for k_ in range(3): A.e(f"s_add_u32 s53, s52, {k_*444*8192}\nbuffer_load_dword v{240+k_}, v184, s[{68 if m_ == 'o' else 72}:{71 if m_ == 'o' else 75}], s53 offen")
        A.label(npf)
    A.e(f"""
    s_sub_u32 s65, s57, 255
    s_and_b32 s66, s56, 1
    s_or_b32 s65, s65, s66
    s_or_b32 s65, s65, s50
    s_cmp_lg_u32 s65, 0
    s_cbranch_scc1 {wk}
    s_mov_b64 exec, 1
    v_mov_b32 v184, 0
    s_mov_b32 s52, {XMEAS}
    s_mov_b32 s53, {XMEAS+8192}
    s_mov_b32 s70, 0x7fffffff
    s_mov_b32 s71, 0x7fffffff""")
    for rep in range(4):
        for (so, acc) in ((52, 70), (53, 71)):
            A.e(f"""
            s_memtime s[72:73]
            s_waitcnt lgkmcnt(0)
            buffer_store_dword v184, v184, s[20:23], s{so} offen sc1
            s_waitcnt vmcnt(0)
            s_memtime s[74:75]
            s_waitcnt lgkmcnt(0)
            s_sub_u32 s74, s74, s72
            s_min_u32 s{acc}, s{acc}, s74""")
    A.e(f"""
    s_cmp_gt_u32 s71, s70
    s_cselect_b32 s65, 3, 2
    v_mov_b32 v185, s65
    buffer_store_dword v185, v184, s[44:47], {DPAR} offen sc1
    s_mov_b64 exec, -1""")
    A.label(wk)
    rts(54)
    start.ln1_stats(A)
    rts(55)
    def m1wait():
        sl_ = L("m1s"); lp_ = L("m1l"); ok_ = L("m1ok")
        A.e(f"s_mov_b32 s65, 0\ns_cmp_eq_u32 s56, 1\ns_cbranch_scc1 {sl_}\ns_lshl_b32 s52, s55, 7\ns_add_u32 s52, s52, {XFLG}\ns_mov_b32 s53, 0")
        A.label(lp_)
        A.e(f"""
        v_mov_b32 v184, 0
        buffer_load_dword v185, v184, s[20:23], s52 offen sc1
        s_waitcnt vmcnt(0)
        v_readfirstlane_b32 s64, v185
        s_mov_b32 s65, 0
        s_cmp_eq_u32 s64, 1
        s_cbranch_scc1 {ok_}
        s_sub_u32 s90, s90, 1
        s_cmp_lt_i32 s90, 0
        s_cbranch_scc1 {ok_}
        s_add_u32 s53, s53, 1
        s_and_b32 s64, s53, 31
        s_cbranch_scc1 {lp_}""")
        tickets(False); slowid()
        A.e(f"s_cmp_eq_u32 s65, 0\ns_cbranch_scc1 {lp_}\ns_branch {ok_}")
        A.label(sl_)
        A.e(f"s_mov_b32 s53, 256\ns_mov_b32 s52, {DM1S}")
        dpoll("s[44:47]", "s52", "v_cmp_ne_u32 vcc, s53, v185", 8)
        A.label(ok_)
    share(m1wait)
    A.e(f"s_cmp_lg_u32 s65, 0\ns_cbranch_scc1 {slow}\ns_and_b32 s56, s56, 1")
    rts(56)
    rdy = f"buffer_load_dword v240, v241, s[44:47], s53 offen sc1"
    A.e(f"s_lshl_b32 s53, s56, 2\ns_add_u32 s53, s53, {DRDY - DPAR}\nv_mul_u32_u24 v241, s53, v1\ns_lshr_b32 s53, s55, 4\ns_or_b32 s53, s53, s50\ns_cselect_b32 s53, {OOB:#x}, {DPAR}\ns_mov_b64 exec, 3\n{rdy}\ns_mov_b64 exec, -1")
    start.ln1_finish(A)
    rts(57)
    if PROF: A.e(f"s_lshl_b32 s64, s57, 2\ns_add_u32 s64, s64, s50\ns_lshl_b32 s64, s64, 8\ns_add_u32 s64, s64, {241*MB}\nv_lshlrev_b32 v184, 2, v1\nbuffer_store_dword v255, v184, s[20:23], s64 offen")
    A.e("s_waitcnt vmcnt(0)\ns_barrier")
    def fin0():
        n1_ = L("nodln"); np_ = L("nopar")
        A.e(f"s_cmp_ge_u32 s55, 16\ns_cbranch_scc1 {n1_}")
        lp_ = L("rdl"); ok_ = L("rdok")
        A.label(lp_)
        A.e(f"""
        v_readlane_b32 s64, v240, 0
        v_readlane_b32 s65, v240, 1
        s_cmp_eq_u32 s56, 1
        s_cselect_b32 s64, 2, s64
        s_cmp_eq_u32 s65, {NRDY}
        s_cselect_b32 s64, s64, 0
        s_cmp_lg_u32 s64, 0
        s_cbranch_scc1 {ok_}
        s_mov_b64 exec, 3
        {rdy}
        s_mov_b64 exec, -1
        s_sub_u32 s90, s90, 1
        s_cmp_gt_i32 s90, 0
        s_waitcnt vmcnt(0)
        s_cbranch_scc1 {lp_}""")
        A.label(ok_)
        A.e(f"""
        s_lshl_b32 s65, s55, 2
        v_lshl_add_u32 v184, v1, 7, s65
        v_mov_b32 v185, s64
        s_mov_b32 s64, {RFLG}
        s_mov_b32 s65, {RFLG + 8192}
        buffer_store_dword v185, v184, s[20:23], s64 offen sc1
        buffer_store_dword v185, v184, s[20:23], s65 offen sc1""")
        A.label(n1_)
        A.e(f"s_mov_b32 s61, 0\ns_cmp_eq_u32 s56, 1\ns_cbranch_scc1 {np_}")
        getpar()
        A.label(np_)
    share(fin0)
    nsig = L("nsig")
    A.e(f"s_sub_u32 s55, s57, 128\ns_cmp_lg_u32 s50, 0\ns_cbranch_scc1 {nsig}\ns_lshr_b32 s95, s55, 4\ns_lshl_b32 s95, s95, 6\ns_add_u32 s95, s95, {XTC + CLN*64}")
    A.e(f"s_mov_b64 exec, 1\nv_mov_b32 v184, {CTGT // 16}\nv_mov_b32 v185, 0\nbuffer_atomic_add v184, v185, s[20:23], s95 offen sc1\ns_mov_b64 exec, -1")
    A.label(nsig)
    A.e(f"s_branch {wexit}")

    A.label(loops)
    V16, VHL, VHS, VIDX, VQP, VSEL, VLM, VFL, VST, VH, VOUT = 16, 18, 13, 14, 19, 15, 24, 21, 25, 20, 17
    VG = 26
    GB = 32; KTF = 96; VT = 128; VM = 136; PM = 144; PF = 148; ONE = 152; NEGC = 156; SD = 160; KVM = 172
    ACC = 176; ACB = 184; BACC = 192; OUT = 208; T = 216; HP = 248; HF = 64; ZERO = 100
    SP, SS = "s[24:27]", "s[28:31]"
    sQ2 = 12; IMM = ('E',); STN = ((), ('k0', 'v0'), ('k1', 'v1'), ())
    sSL, sSO, sSN, sSR, sPS, sPR, sQO, sKV, sH, sSPF = 70, 71, 72, 73, 74, 75, 76, 77, 78, 80
    rts(62)
    A.e(f"s_lshl_b32 s64, s50, 14")
    for q in list(range(4)) + list(range(16, 20)):
        A.e(f"s_add_u32 m0, s64, {q*4096}\ns_add_u32 s65, s64, {WS['h'] + q*4096}")
        for i in range(4): A.e(f"buffer_load_dwordx4 v{V16}, s[20:23], s65 offen offset:{i*1024} lds")
    rts(38)
    A.e(f"""
    s_mov_b64 s[24:25], s[20:21]
    s_mov_b64 s[28:29], s[20:21]
    s_mov_b32 s27, 0x20000
    s_mov_b32 s31, 0x20000
    s_cmp_eq_u32 s56, 0
    s_cselect_b32 s26, s22, 0
    s_cselect_b32 s30, 0, s22
    s_lshl_b32 s64, s58, 14
    s_add_u32 s64, s64, {XLOC}
    v_add_u32 v{VG}, s64, v{V16}
    v_add_u32 v{VG+1}, 4096, v{VG}
    v_add_u32 v{VG+2}, 8192, v{VG}
    v_add_u32 v{VG+3}, 12288, v{VG}
    s_lshl_b32 s65, s59, 9
    s_add_u32 s66, s64, s65
    s_lshl_b32 s64, s58, 7
    s_add_u32 s64, s64, {XLOC + XHI}
    v_and_b32 v{VHL}, 31, v1
    v_lshl_add_u32 v{VHL}, v{VHL}, 2, s64
    s_lshl_b32 s65, s59, 2
    s_add_u32 s64, s64, s65
    v_mov_b32 v{VHS}, s64
    v_mov_b32 v{VIDX}, 0x4444
    v_mov_b32 v22, 0xeeee
    v_cmp_lt_u32 vcc, 7, v3
    v_cndmask_b32 v{VIDX}, v{VIDX}, v22, vcc
    v_and_b32 v22, 1, v3
    v_cmp_eq_u32 vcc, 0, v22
    v_mov_b32 v{VSEL}, 0x03020706
    v_mov_b32 v23, 0x05040100
    v_cndmask_b32 v{VSEL}, v{VSEL}, v23, vcc
    v_lshlrev_b32 v{VQP}, 5, v22
    v_lshl_add_u32 v{VQP}, v4, 6, v{VQP}
    v_lshrrev_b32 v23, 1, v3
    v_lshl_add_u32 v{VQP}, v23, 2, v{VQP}
    s_lshl_b32 s67, s57, 10
    s_add_u32 s67, s67, {XLOC + XQK}
    s_lshl_b32 s64, s50, 2
    s_lshr_b32 s64, 0x1320, s64
    s_and_b32 s64, s64, 3
    s_lshl_b32 s64, s64, 8
    s_add_u32 s64, s64, s67
    v_add_u32 v{VQP}, s64, v{VQP}
    v_add_u32 v{VLM}, {LB}, v{V16}
    v_mov_b32 v{VFL}, {LFL}
    v_mov_b32 v{VST}, 0
    v_mov_b32 v{VH}, v{V16}
    v_and_b32 v22, 1, v4
    v_lshrrev_b32 v23, 1, v4
    v_lshl_add_u32 v23, v23, 4, v3
    v_lshlrev_b32 v23, 4, v23
    v_lshl_add_u32 v23, v22, 10, v23
    s_lshr_b32 s64, s50, 1
    s_lshl_b32 s64, s64, 9
    v_add_u32 v23, s64, v23
    s_lshr_b32 s64, s57, 2             ; head
    s_add_u32 s65, s64, 32
    s_lshl_b32 s65, s65, 14
    s_and_b32 s68, s57, 3
    s_lshl_b32 s68, s68, 11            ; c*2K
    s_add_u32 s65, s65, s68
    s_add_u32 s65, s65, {QB}
    v_add_u32 v{VOUT}, s65, v23
    s_lshl_b32 s69, s57, 11
    s_add_u32 s69, s69, {XLOC + XKT}
    v_add_u32 v2, s69, v23
    s_mov_b32 s81, {f2u(SCL):#x}
    s_mov_b32 s84, {HALF:#x}
    s_mov_b32 s85, {HALF:#x}
    s_mov_b32 s86, 0x33333333
    s_mov_b32 s87, 0x33333333
    s_mov_b32 s62, 0x10000
    s_mov_b32 s79, -2
    ds_write_b32 v{VFL}, v{VST}
    ds_write_b32 v{VFL}, v{VST} offset:4
    ds_write_b32 v{VFL}, v{VST} offset:8
    ds_write_b32 v{VFL}, v{VST} offset:12
    ds_write_b32 v{VFL}, v{VST} offset:16
    ds_write_b32 v{VFL}, v{VST} offset:24
    ds_write_b32 v{VFL}, v{VST} offset:28""")
    VKT = 2
    for i in range(4): A.e(f"v_mov_b32 v{ZERO+i}, 0")
    def pub(instr):
        A.e(instr.replace("{S}", SP))
    def pub2(instr):
        if not DBG & 32: A.e(instr.replace("{S}", SS) + " sc1")
    VP = 8
    A.e(f"""
    s_lshr_b32 s64, s59, 3
    s_lshl_b32 s64, s64, 14
    s_and_b32 s65, s59, 7
    s_lshl_b32 s65, s65, 10
    s_add_u32 s64, s64, s65
    s_lshl_b32 s65, s58, 16
    s_add_u32 s64, s64, s65
    s_add_u32 s64, s64, {QB + 112*16384}
    v_add_u32 v{VP}, s64, v{V16}""")

    def book(w, d):
        A.e(f"""
        s_add_u32 s63, s79, {d}
        s_and_b32 s64, s63, 3
        s_lshl_b32 s{sSL}, s64, 20
        s_add_u32 s65, s63, 2
        s_and_b32 s65, s65, 3
        s_lshl_b32 s{sSR}, s65, 20
        s_add_u32 s55, s63, 3
        s_lshl_b32 s{sH}, s55, 16
        s_add_u32 s{sH}, s{sH}, {WS['h']}
        s_cmp_lt_u32 s55, {nsteps}
        s_cselect_b32 s{sH}, s{sH}, {OOB:#x}""")
        for (dd, reg) in ((1, sQO), (2, sQ2)):
            if not any((SPOS[n] in IMM) == (dd == 2) for n in STN[w]): continue
            A.e(f"""
            s_add_u32 s60, s63, {dd}
            s_lshl_b32 s{reg}, s60, 21
            s_lshl_b32 s55, s60, 13
            s_and_b32 s55, s55, 0x2000
            s_xor_b32 s55, s55, s61
            s_add_u32 s{reg}, s{reg}, s55
            s_cmp_lt_u32 s60, {nsteps}
            s_cselect_b32 s{reg}, s{reg}, {OOB:#x}""")
            if DBG & 16: A.e(f"s_mov_b32 s{reg}, s61")
        if w in (0, 3):
            A.e(f"s_add_u32 s{sSO}, s{sSL}, {XO}\ns_add_u32 s60, s63, 1\ns_and_b32 s60, s60, 3\ns_lshl_b32 s{sSN}, s60, 20")
            for i in range(8): A.e(f"v_mov_b32 v{ACB+i}, 0")
        if w == 0:
            A.e(f"s_lshl_b32 s{sKV}, s63, 21\ns_lshl_b32 s55, s63, 13\ns_and_b32 s55, s55, 0x2000\ns_xor_b32 s55, s55, s61\ns_add_u32 s{sKV}, s{sKV}, s55")
            if DBG & 16: A.e(f"s_mov_b32 s{sKV}, s61")
        if w == 3:
            A.e(f"s_lshl_b32 s{sPS}, s63, 21\ns_lshl_b32 s55, s63, 13\ns_and_b32 s55, s55, 0x2000\ns_xor_b32 s55, s55, s61\ns_add_u32 s{sPS}, s{sPS}, s55")
        if w == 1 and SPOS['sig'] is None: A.e(f"s_add_u32 s{sSO}, s{sSR}, {XO}")
        elif w == 1:
            A.e(f"""
            s_sub_u32 s55, s63, {SIGLAG}
            s_lshl_b32 s{sKV}, s55, 4
            s_add_u32 s{sKV}, s{sKV}, {XTC + CR0*64}
            s_and_b32 s55, s55, 0x80000003
            s_or_b32 s55, s55, s57
            s_cmp_eq_u32 s55, 0
            s_cselect_b32 s{sKV}, s{sKV}, {OOB:#x}
            s_add_u32 s{sSO}, s{sSR}, {XO}""")
        if w == 2:
            A.e(f"s_add_u32 s55, s63, {SPFD}\ns_min_u32 s55, s55, {nsteps-1}\ns_lshl_b32 s55, s55, 16\ns_lshl_b32 s60, s59, 11\ns_add_u32 s{sSPF}, s55, s60\ns_add_u32 s{sSPF}, s{sSPF}, {WS['h']}")
        for i in range(8 if w in (1, 2) else 4): A.e(f"v_mov_b32 v{ACC+i}, 0")
    tail = []
    nst = [0]
    def stamp():
        if PROF and PROF != 3: A.e(f"{'s_memrealtime' if PROF == 2 else 's_memtime'} s[{32+2*nst[0]}:{33+2*nst[0]}]"); nst[0] += 1
    def accum():
        if not PROF or PROF == 3: return
        A.e("s_waitcnt lgkmcnt(0)")
        n = nst[0]; sk = L("nacc")
        if PSEL: A.e(f"s_sub_u32 s64, s79, {PSEL[0]}\ns_cmp_ge_u32 s64, {PSEL[1] - PSEL[0]}\ns_cbranch_scc1 {sk}")
        A.e(f"s_sub_u32 s64, s32, s82\ns_add_u32 s92, s92, s64")
        for k in range(1, n): A.e(f"s_sub_u32 s64, s{32+2*k}, s{30+2*k}\ns_add_u32 s{92+k}, s{92+k}, s64")
        A.label(sk)
        A.e(f"s_mov_b32 s82, s{32+2*(n-1)}")
        nst[0] = 0
    def hintpoll(so, off, TH, NO):
        hl = L("hl"); hg = L("hg")
        need = (32 * TH + 99) // 100
        ld = lambda k: f"buffer_load_dword v{HP+k}, v{VHL}, s[20:23], s{so} offen offset:{off} sc1"
        for k in range(NO - 1): A.e(ld(k)); delay(200 // NO - 12)
        A.label(hl)
        for k in range(NO):
            A.e(ld((k + NO - 1) % NO))
            A.e(f"s_waitcnt vmcnt({NO-1})\nv_cmp_eq_u32 vcc, v{VST}, v{HP+k}\ns_bcnt1_i32_b32 s64, vcc_lo\ns_cmp_ge_u32 s64, {need}\ns_cbranch_scc1 {hg}")
        A.e(f"s_sub_u32 s90, s90, 1\ns_cmp_gt_i32 s90, 0\ns_cbranch_scc1 {hl}")
        A.label(hg)
    def waitflag(off):
        wf = L("wf")
        A.label(wf)
        A.e(f"ds_read_b32 v23, v{VFL} offset:{off}\ns_sub_u32 s90, s90, 1\ns_waitcnt lgkmcnt(0)\nv_cmp_ne_u32 vcc, v23, v{VST}\ns_cmp_lt_i32 s90, 0\ns_cselect_b64 vcc, 0, vcc\ns_cbranch_vccnz {wf}")
    def gather(n, c0, work):
        base = GB; cg = CGB
        def ld(j): return f"buffer_load_dwordx4 {vr(base+4*j,4)}, v{VG + ((j+c0)>>2)}, s[20:23], s{sSO} offen offset:{((j+c0)&3)*1024} sc1"
        hintpoll(sSL, 512, THO, NOO)
        stamp()
        tb = base + 4 * n
        def ld2(j): return ld(j).replace(vr(base+4*j,4), vr(tb+4*j,4))
        m0_ = min(n, UPB)
        for j in range(m0_): A.e(ld(j))
        A.e("s_mov_b32 s68, 0")
        ng = n // cg
        def mins(b):
            regs = list(range(b, b + 4 * cg)); o = [f"v_min3_u32 v22, v{regs[0]}, v{regs[1]}, v{regs[2]}"]; regs = regs[3:]
            while len(regs) >= 2: o.append(f"v_min3_u32 v22, v22, v{regs[0]}, v{regs[1]}"); regs = regs[2:]
            if regs: o.append(f"v_min_u32 v22, v22, v{regs[0]}")
            return o
        issued = m0_; miss = []
        for g in range(ng):
            b = base + 4 * g * cg
            W = []
            last = g * cg + cg - 1
            A.e(f"s_waitcnt vmcnt({issued-1-last})")
            for j in range(g * cg, last + 1): W += work(j)
            F = mins(b) + [f"v_cmp_eq_u32 s[{52+2*(g&1)}:{53+2*(g&1)}], 0, v22"]
            if g > 0:
                ms = L("ms"); bk = L("bk"); miss.append((ms, bk, g - 1))
                F = F[:1] + [f"s_cmp_lg_u64 s[{52+2*((g-1)&1)}:{53+2*((g-1)&1)}], 0", f"s_cbranch_scc1 {ms}\n{bk}:"] + F[1:]
            for _ in range(cg):
                if issued < n: F = [ld(issued)] + F; issued += 1
            A.interleave(W, F, 0, len(W))
        assert issued == n and m0_ == n
        fin = L("fin"); rl = L("rl")
        ms = L("ms"); bk = L("bk"); miss.append((ms, bk, ng - 1)); rl2 = L("rl2")
        A.e(f"s_cmp_lg_u64 s[{52+2*((ng-1)&1)}:{53+2*((ng-1)&1)}], 0\ns_cbranch_scc1 {ms}\n{bk}:\ns_cmp_lg_u32 s68, 0\ns_cbranch_scc1 {rl2}")
        A.label(fin)
        stamp()
        def deferred():
            for (ms, bk, g) in miss:
                A.label(ms)
                A.e("s_waitcnt vmcnt(0)")
                for j in range(g * cg, g * cg + cg): A.e(ld2(j))
                A.e(f"s_bitset1_b32 s68, {g}\ns_branch {bk}")
            def scan(body):
                for j in range(ng):
                    sk = L("sk")
                    A.e(f"s_bitcmp1_b32 s68, {j}\ns_cbranch_scc0 {sk}")
                    body(j)
                    A.label(sk)
            A.label(rl)
            scan(lambda g: [A.e(ld2(j)) for j in range(g * cg, g * cg + cg)])
            A.label(rl2)
            A.e(f"s_sub_u32 s90, s90, 1\ns_cmp_lt_i32 s90, 0\ns_cbranch_scc1 {fin}\ns_waitcnt vmcnt(0)")
            def proc(g):
                b = base + 4 * g * cg; t = tb + 4 * g * cg
                nb = L("nb")
                for x in mins(t): A.e(x)
                A.e(f"v_cmp_eq_u32 vcc, 0, v22")
                for r in range(4 * cg): A.e(f"v_xor_b32 v{t+r}, v{b+r}, v{t+r}")
                A.e(f"s_cbranch_vccnz {nb}\ns_bitset0_b32 s68, {g}")
                for j in range(g * cg, g * cg + cg):
                    for x in work(j): A.e(x.replace(vr(base+4*j,4), vr(tb+4*j,4)))
                A.label(nb)
            scan(proc)
            A.e(f"s_cmp_lg_u32 s68, 0\ns_cbranch_scc1 {rl}\ns_nop 2\ns_branch {fin}")
        tail.append(deferred)
    QP = "quad_perm:[1,0,3,2] row_mask:0xf bank_mask:0xf"
    QP2 = "quad_perm:[2,3,0,1] row_mask:0xf bank_mask:0xf"
    DPP8 = "row_ror:8 row_mask:0xf bank_mask:0xf"
    cnts = {(1, 1): N1, (1, 2): N1, (2, 1): N2, (2, 2): N2, ('A', 3): NA, ('S', 3): NB3, ('B', 0): NC}
    assert sum(cnts.values()) == 64, sum(cnts.values())
    start_ = {}; p = 0
    for k_, n_ in cnts.items(): start_[k_] = p; p += n_
    def dmas(win, w):
        n = cnts.get((win, w), 0); p = start_.get((win, w), 0); o = []
        for i in range(n):
            if i % 4 == 0: o.append([f"s_add_u32 m0, s62, {(p+i)*1024}", f"s_add_u32 s69, s{sH}, {(p+i)*1024}"])
            if not DBG & 4: o.append([f"buffer_load_dwordx4 v{V16}, s[20:23], s69 offen offset:{(i%4)*1024} lds"])
        return o
    def dmaburst(win, w):
        for x in dmas(win, w):
            for y in x: A.e(y)
            if "lds" in x[0]: delay(GA)
    def slows(w, pos):
        so = []
        for k_, n in enumerate(STN[w]):
            p_ = SPOS[n]; imm = p_ in IMM
            if p_ == pos or (pos == 'def' and not imm) or (pos == 'imm' and p_ == 'P'):
                if not ((DBG & 8) and pos not in ('def', 'imm')): so.append(f"buffer_store_dwordx4 {vr(OUT+4*k_,4)}, v{12 if k_ else VOUT}, s[20:23], s{sQ2 if imm else sQO} offen sc1")
        if w == 1 and worker and SPOS['sig'] == pos: so.append(f"s_mov_b64 exec, 1\nbuffer_store_dword v10, v11, s[20:23], s{sKV} offen sc1\ns_mov_b64 exec, -1")
        return so
    def combine2(a):
        return f"""
        v_permlane32_swap_b32 v{a}, v{a+2}
        v_permlane32_swap_b32 v{a+1}, v{a+3}
        v_add_f32 v{a}, v{a}, v{a+2}
        v_add_f32 v{a+1}, v{a+1}, v{a+3}
        v_cvt_pk_bf16_f32 v{T}, v{a}, v{a+1}"""
    def phaseA(w):
        A.e("s_barrier")
        stamp()
        hintpoll(sSL, 0, THM, NOM)
        stamp()
        own = [4 * w + j for j in range(4)]
        ld = lambda c: f"buffer_load_dwordx4 {vr(GB+4*c,4)}, v{VG + (c>>2)}, s[20:23], s{sSL} offen offset:{(c&3)*1024} sc1"
        sm = lambda c, t=0: f"v_smfmac_f32_16x16x64_bf16 {vr(ACC+t*4,4)}, {vr(GB+c*4,4)}, {ar(t*128+c*8,8)}, v{VIDX}"
        rt = L("art"); bk = L("abk")
        def body():
            for c in own: A.e(ld(c))
            for j, c in enumerate(own):
                b = GB + 4 * c
                A.e(f"s_waitcnt vmcnt({3-j})\nds_write_b128 v{VLM}, {vr(b,4)} offset:{LM+c*1024}")
                A.e(f"v_min3_u32 v22, v{b}, v{b+1}, v{b+2}\nv_min_u32 v22, v22, v{b+3}" if j == 0 else f"v_min3_u32 v22, v22, v{b}, v{b+1}\nv_min3_u32 v22, v22, v{b+2}, v{b+3}")
            A.e(f"v_cmp_eq_u32 vcc, 0, v22\ns_cbranch_vccnz {rt}")
        body()
        A.label(bk)
        def retry():
            A.label(rt)
            A.e(f"s_sub_u32 s90, s90, 1\ns_cmp_lt_i32 s90, 0\ns_cbranch_scc1 {bk}")
            body()
            A.e(f"s_branch {bk}")
        tail.append(retry)
        A.e(sm(own[0]))
        A.e("s_waitcnt lgkmcnt(0)\ns_barrier")
        stamp()
        oth = [c % 16 for c in range(4 * w + 4, 4 * w + 16)]
        R_ = [f"ds_read_b128 {vr(GB+4*c,4)}, v{VLM} offset:{LM+c*1024}" for c in oth]
        for x in R_[:4]: A.e(x)
        for x in slows(w, 'A'): A.e(x)
        A.interleave([sm(c) for c in own[1:]], R_[4:10], 0, 3)
        k = 10
        for i, c in enumerate(oth):
            A.e(f"s_waitcnt lgkmcnt({min(k, 12) - 1 - i})")
            A.e(sm(c))
            if k < 12: A.e(R_[k]); k += 1
        if w in (1, 2): A.e(sm(0, 1)); A.e(sm(1, 1))
        A.e(combine2(ACC))
        A.e(f"v_mov_b32_dpp v{T+1}, v{T} {QP}\nv_perm_b32 v{T}, v{T+1}, v{T}, v{VSEL}\nv_max_u32 v{T}, 1, v{T}")
        st = f"buffer_store_dword v{T}, v{VQP}, {{S}}, s{sSL} offen"
        pub(st); pub2(st)
        stamp()
        if w in (1, 2):
            for c in range(2, 16): A.e(sm(c, 1))
            A.e(combine2(ACC + 4))
            A.e(f"v_max_u32 v{T}, 1, v{T}\nds_write_b32 v31, v{T}\nds_write_b32 v{VFL}, v{VST} offset:{4*(w-1)}")
    def bg(w, pro=False):
        ex = L("bgx")
        if not pro: A.e(f"s_cmp_ge_i32 s79, {nsteps-2}\ns_cbranch_scc1 {ex}")
        skipi = len(A.lines) - 1
        nm = 2; NRD = NRD2
        rd = lambda i: f"ds_read_b128 {vr(HF+(i%NRD)*4,4)}, v{VH} offset:{i*1024}" if not (DBG & 1 and i >= NRD) else "s_nop 0"
        pos = {}
        d1 = dmas(1, w); d2 = dmas(2, w)
        if pro: d1 = d2 = []
        sc = lambda p: p if nm == 2 else p - 16
        for i, x in enumerate(d1): pos.setdefault(max(0, sc(P1[0]) + i * (P1[1] - P1[0]) // len(d1)), []).extend(x)
        for i, x in enumerate(d2): pos.setdefault(P2[0] + i * (P2[1] - P2[0]) // len(d2), []).extend(x)
        ints = []
        for p_ in range(128):
            x = slows(w, p_)
            if x: pos.setdefault(p_, []).extend(x); ints += x
        vfl = f"ds_write_b32 v{VFL}, v{VST} offset:{24 + 4*(w-1)}"
        if ints or not pro:
            sk = L("bgsk")
            def skipped():
                A.label(sk)
                for x in ints: A.e(x)
                A.e(f"s_waitcnt vmcnt(0)\n{vfl}\ns_branch {ex}")
            tail.append(skipped)
            A.lines[skipi] = f"    s_cbranch_scc1 {sk}"
        for i in range(NRD - 1): A.e(rd(i))
        for i in range(64):
            if nm == 2 or i % 2 == 0: A.e(f"s_waitcnt lgkmcnt({max(0, min(NRD-2, 63-i) - (2-nm))})")
            for t in range(nm):
                d = vr(BACC + (t * 2 + (i & 1)) * 4, 4)
                wr = ar(t * 128 + (i >> 1) * 4, 4); hr = vr(HF + (i % NRD) * 4, 4)
                A.e(f"v_mfma_f32_16x16x32_bf16 {d}, {wr if t == 0 else hr}, {hr if t == 0 else wr}, {d if i > 1 else 0}" if not (DBG & 2 and i >= 4) else "s_nop 2")
                if t == 0 and i + NRD - 1 < 64: A.e(rd(i + NRD - 1))
                for x in pos.pop(nm * i + t, []): A.e(x)
                if PC: A.e(f"s_nop {PC-1}")
        for k in sorted(pos):
            for x in pos[k]: A.e(x)
            delay(24)
        if not pro:
            assert not ints and SPOS['v0'] == SPOS['v1'] == 'A'
            A.e(f"s_waitcnt vmcnt({N1 + N2})\n{vfl}")
        A.e(f"v_xor_b32 v{VH}, 0x10000, v{VH}\ns_xor_b32 s62, s62, 0x10000")
        if nm == 2: A.e(f"s_lshr_b32 s64, s{sSR}, 9\nv_add_u32 v22, s64, v{VLM}")
        for i in range(4 * nm): A.e(f"v_cvt_pk_bf16_f32 v{OUT+i}, v{BACC+2*i}, v{BACC+2*i+1}")
        A.e(f"v_permlane16_swap_b32 v{OUT}, v{OUT+2}\nv_permlane16_swap_b32 v{OUT+1}, v{OUT+3}")
        st = f"buffer_store_dwordx4 {vr(OUT,4)}, v{VKT}, {{S}}, s{sSR} offen"
        pub(st); pub2(st)
        if nm == 2: A.e(f"ds_write_b128 v22, {vr(OUT+4,4)} offset:{LVT+(w-1)*1024}")
        for x in slows(w, 'E'): A.e(x)
        A.label(ex)
    smb = lambda j: [f"v_smfmac_f32_16x16x64_bf16 {vr(ACB+t*4,4)}, {vr(GB+j*4,4)}, {ar(128+(j*2+t)*8,8)}, v{VIDX}" for t in range(2)]
    def combineB():
        a_ = ACB
        for r in range(4): A.e(f"v_permlane32_swap_b32 v{a_+r}, v{a_+4+r}")
        A.e(f"v_pk_add_f32 {vr(a_,2)}, {vr(a_,2)}, {vr(a_+4,2)}\nv_pk_add_f32 {vr(a_+2,2)}, {vr(a_+2,2)}, {vr(a_+6,2)}")
    end = L("end")
    lab = [L("w0"), L("w1"), L("w2"), L("w3")]
    A.e(f"s_cmp_eq_u32 s50, 3\ns_cbranch_scc1 {lab[3]}\ns_cmp_eq_u32 s50, 1\ns_cbranch_scc1 {lab[1]}\ns_cmp_eq_u32 s50, 2\ns_cbranch_scc1 {lab[2]}")
    def gom(w, lp, pre_loop=None):
        A.e(f"v_mov_b32 v{VST}, 1\ns_waitcnt vmcnt({len(slows(w, 'E'))}) lgkmcnt(0)\ns_barrier")
        if pre_loop: pre_loop()
        rts(61)
        if PROF:
            A.e(f"{'s_memrealtime' if PROF == 2 else 's_memtime'} s[82:83]\ns_waitcnt lgkmcnt(0)")
            for k in range(10): A.e(f"s_mov_b32 s{92+k}, 0")
        A.e(f"s_branch {lp}")
    def prologue(w, lp):
        book(w, 0)
        rts(33)
        A.e(f"s_waitcnt vmcnt(0) lgkmcnt(0)\ns_barrier")
        l1 = L("pn1"); l2 = L("pn2")
        A.label(l1)
        rts(34)
        bg(w, True)
        book(w, 1)
        A.e(f"s_add_u32 s79, s79, 1\ns_cmp_eq_u32 s79, 0\ns_cbranch_scc1 {l2}")
        A.e(f"v_mov_b32 v38, 1\nds_write_b32 v37, v38 offset:{4 + 4*w}")
        for x in slows(w, 'def'): A.e(x)
        rts(35)
        A.e(f"s_waitcnt lgkmcnt(0)\ns_branch {l1}")
        A.label(l2)
        rts(37)
        gom(w, lp)
    def prologue03(w, lp, pre_loop=None):
        def hl(sg, q0=0, q1=8):
            for q in range(q0, q1):
                o_ = (w // 3) * 32768 + q * 4096
                A.e(f"s_mov_b32 m0, {o_ + (sg & 1) * 65536}\ns_mov_b32 s65, {WS['h'] + sg*65536 + o_}")
                for i in range(4): A.e(f"buffer_load_dwordx4 v{V16}, s[20:23], s65 offen offset:{i*1024} lds")
        def zs():
            for st_ in range(2 + (w // 3) * 3, 5 + (w // 3) * 3):
                A.e(f"s_xor_b32 s64, s61, {(st_ << 21) + ((st_ & 1) << 13)}")
                for k_ in range(2): A.e(f"buffer_store_dwordx4 {vr(ZERO,4)}, v{VZP+k_}, s[20:23], s64 offen sc1")
        def meet(n):
            sp_ = L("qs")
            A.e(f"v_mov_b32 v38, {n}\nds_write_b32 v37, v38 offset:{4*(w // 3)}")
            A.label(sp_)
            A.e(f"ds_read_b32 v39, v37 offset:{4 - 4*(w // 3)}\ns_sub_u32 s90, s90, 1\ns_waitcnt lgkmcnt(0)\nv_cmp_gt_u32 vcc, v38, v39\ns_cmp_lt_i32 s90, 0\ns_cselect_b64 vcc, 0, vcc\ns_cbranch_vccnz {sp_}")
        assert QE == 32 or WE == 0
        def tr(base, j, rd):
            if base and j == 0: A.e("s_waitcnt lgkmcnt(0)"); meet(9)
            for q in range(4): A.e(f"ds_write_b128 v33, {ar(base+16*j+4*q,4)} offset:{(j&1)*4096 + q*1024}")
            A.e("s_waitcnt lgkmcnt(0)")
            if base == 0: meet(j + 1)
            for t in range(2):
                for R in range(2):
                    for h in range(2): A.e(f"ds_read_b64_tr_b16 {ar(base+16*j+8*t+4*R+2*h,2)}, {rd(t, 32*R + 2*h, (j&1)*4096)}")
        todo = [(0, j, lambda t, r, o: f"v36 offset:{o + t*8192 + r*64}") for j in range(8)] + [(128, j, lambda t, r, o: f"v34 offset:{o + r*64 + t*32}") for j in range(8)]
        late = [x for x in todo if 4 * x[1] + 3 >= (WE if x[0] else QE)]
        A.e(f"s_waitcnt vmcnt(0) lgkmcnt(0)\ns_barrier")
        qraw(QE, 32); oraw(WE, 32)
        for x in todo:
            if x not in late: tr(*x)
        fr = L("free")
        A.label(fr)
        A.e(f"ds_read_b64 v[38:39], v37 offset:8\ns_sub_u32 s90, s90, 1\ns_waitcnt lgkmcnt(0)\nv_and_b32 v38, v38, v39\nv_cmp_eq_u32 vcc, 0, v38\ns_cmp_lt_i32 s90, 0\ns_cselect_b64 vcc, 0, vcc\ns_cbranch_vccnz {fr}")
        zs(); hl(2)
        for i, x in enumerate(late):
            A.e(f"s_waitcnt vmcnt({min(63, (len(late) - 1 - i)*4 + 38)})")
            tr(*x)
        A.e("s_mov_b32 s79, 0")
        book(w, 0)
        gom(w, lp, pre_loop)
    def flush():
        for f in tail: f()
        tail.clear()
    A.label(lab[0])
    VX = 8; VK = (2, 5, 6, 7); VOP = 30; VMR = 31; VKR = 12; VKO = 3
    A.e(f"""
    v_and_b32 v22, 7, v3               ; m
    v_lshrrev_b32 v23, 2, v22
    v_and_b32 v5, 2, v22
    v_or_b32 v23, v23, v5
    v_and_b32 v5, 1, v22
    v_lshl_add_u32 v23, v23, 1, v5     ; pos
    v_lshlrev_b32 v23, 5, v23
    v_lshrrev_b32 v5, 3, v3
    v_lshl_add_u32 v23, v5, 9, v23
    v_lshrrev_b32 v5, 1, v4
    v_lshl_add_u32 v23, v5, 8, v23
    v_and_b32 v5, 1, v4
    v_lshl_add_u32 v23, v5, 4, v23
    v_add_u32 v{VX}, s67, v23
    v_xor_b32 v{VX+1}, 1024, v{VX}
    v_xor_b32 v{VX+2}, 2048, v{VX}
    v_xor_b32 v{VX+3}, 3072, v{VX}
    v_lshlrev_b32 v{VMR}, 4, v3
    v_lshl_add_u32 v{VMR}, v5, 3, v{VMR}
    v_add_u32 v{VMR}, {LB + LVM}, v{VMR}
    v_lshl_add_u32 v23, v4, 3, v22
    v_lshlrev_b32 v23, 4, v23
    v_add_u32 v{VKR}, {LB + LVM}, v23
    v_add_u32 v{VOP}, s66, v23
    v_cmp_gt_u32 vcc, 8, v3
    v_cmp_lt_u32 s[52:53], 1, v4
    s_and_b64 vcc, vcc, s[52:53]
    v_mov_b32 v22, {f2u(-1e30):#x}
    v_cndmask_b32 v{NEGC}, v22, 0, vcc
    v_mov_b32 v{NEGC+1}, v{NEGC}
    v_mov_b32 v{NEGC+2}, v{NEGC}
    v_mov_b32 v{NEGC+3}, v{NEGC}
    v_add_u32 v{VK[0]}, s69, v{V16}
    v_xor_b32 v{VK[1]}, 2048, v{VK[0]}
    v_xor_b32 v{VK[2]}, 4096, v{VK[0]}
    v_xor_b32 v{VK[3]}, 6144, v{VK[0]}
    s_lshr_b32 s64, s57, 3
    s_add_u32 s64, s64, 96
    s_lshl_b32 s64, s64, 14
    s_and_b32 s65, s57, 7
    s_lshl_b32 s65, s65, 10
    s_add_u32 s64, s64, s65
    s_add_u32 s64, s64, {QB}
    v_add_u32 v{VKO}, s64, v{V16}""")
    for i in range(12): A.e(f"v_mov_b32 v{VM+i}, 0")
    for i in range(4): A.e(f"v_mov_b32 v{ONE+i}, 0x3f803f80")
    f0 = L("first"); A.e(f"s_branch {f0}")
    lp = L("loop"); pn = L("pn")
    A.label(lp)
    phaseA(0)
    ktl = lambda so: [f"buffer_load_dwordx4 {vr(KTF+(p*2+i)*4,4)}, v{VK[p]}, s[20:23], s{so} offen offset:{i*1024} sc1" for p in range(4) for i in range(2)]
    k0 = L("kt0"); k0b = L("kt0b")
    A.e(f"s_lshr_b32 s64, s{sSL}, 9\nv_add_u32 v22, s64, v{VLM}\ns_cmp_eq_u32 s79, 0\nds_read_b128 {vr(VT,4)}, v22 offset:{LVT}\nds_read_b128 {vr(VT+4,4)}, v22 offset:{LVT+1024}\ns_cbranch_scc1 {k0}")
    A.label(k0b)
    def kt0():
        A.label(k0)
        for x in ktl(sSL): A.e(x)
        A.e(f"s_branch {k0b}")
    tail.append(kt0)
    delay(D2 - 24)
    def ldq(k): return [f"buffer_load_dwordx4 {vr(GB+k*16+p*4,4)}, v{VX+p}, s[20:23], s{sSL} offen sc1" for p in range(4)]
    sp = L("scp"); sok = L("scok")
    for k in range(NF2 - 1):
        for x in ldq(k): A.e(x)
        delay(200 // NF2 - 60)
    A.label(sp)
    for k in range(NF2):
        for x in ldq((k + NF2 - 1) % NF2): A.e(x)
        b = GB + k * 16
        M = []
        for p in range(4):
            M.append(f"v_mfma_f32_16x16x32_bf16 {vr(SD+8,4)}, {vr(b+p*4,4)}, {vr(b+p*4,4)}, {vr(SD+8,4) if p else vr(NEGC,4)}")
            for i in (1, 0): M.append(f"v_mfma_f32_16x16x32_bf16 {vr(SD+i*4,4)}, {vr(KTF+(p*2+i)*4,4)}, {vr(b+p*4,4)}, {vr(SD+i*4,4) if p else 0}")
        C = [f"v_min3_u32 v22, v{b}, v{b+1}, v{b+2}"] + [f"v_min3_u32 v22, v22, v{b+i}, v{b+i+1}" for i in range(3, 15, 2)] + [f"v_min_u32 v22, v22, v{b+15}", f"v_cmp_eq_u32 vcc, 0, v22"]
        A.e(f"s_waitcnt vmcnt({4*(NF2-1)})")
        nx = L("nx")
        A.interleave(M[:5], C, 0, 5)
        A.e(f"s_cbranch_vccnz {nx}")
        A.interleave(M[5:], [f"v_mov_b32 v{KVM+i}, v{b+i}" for i in range(4)], 0, 4)
        A.e(f"s_nop 1\ns_branch {sok}")
        A.label(nx)
    A.e(f"s_sub_u32 s90, s90, 1\ns_cmp_gt_i32 s90, 0\ns_cbranch_scc1 {sp}\ns_nop 7")
    A.label(sok)
    last0 = L("last0")
    vmr = f"ds_read_b64 {vr(T+4,2)}, v{VFL}\nds_read_b64 {vr(VM,2)}, v{VMR}\nds_read_b64 {vr(VM+4,2)}, v{VMR} offset:256"
    A.e(vmr)
    if KE == 2:
        ke = L("ke"); keb = L("keb")
        A.e(f"s_cmp_ge_u32 s79, {nsteps-2}\ns_cbranch_scc1 {ke}")
        A.label(keb)
        def kearly():
            A.label(ke)
            A.e(f"s_cmp_eq_u32 s79, {nsteps-1}\ns_cbranch_scc1 {last0}")
            A.e(f"ds_read_b64 {vr(T+6,2)}, v{VFL} offset:24\ns_mov_b64 exec, s[84:85]\nds_read_b128 {vr(KVM,4)}, v{VKR}\ns_mov_b64 exec, -1\ns_waitcnt lgkmcnt(0)")
            A.e(f"v_min3_u32 v{T+6}, v{T+6}, v{T+7}, v{T+4}\nv_min_u32 v{T+6}, v{T+6}, v{T+5}\nv_cmp_ne_u32 vcc, v{T+6}, v{VST}\ns_cbranch_vccnz {keb}")
            A.e(f"buffer_store_dwordx4 {vr(KVM,4)}, v{VKO}, s[20:23], s{sKV} offen sc1\ns_mov_b32 s{sKV}, {OOB:#x}\ns_branch {keb}")
        tail.append(kearly)
    else: A.e(f"s_cmp_eq_u32 s79, {nsteps-1}\ns_cbranch_scc1 {last0}")
    stamp()
    if NB3: A.e(f"ds_write_b32 v{VFL}, v{VST} offset:16")
    mx = T; OD = T + 8; SM = T + 16
    A.e(f"v_max3_f32 v{mx}, v{SD+8}, v{SD+9}, v{SD+10}")
    for i in range(4): A.e(f"v_mov_b32_dpp v{SD+i}, v{SD+4+i} row_ror:8 row_mask:0xf bank_mask:0xc")
    A.e(f"""
    v_max3_f32 v{mx+1}, v{SD+11}, v{SD}, v{SD+1}
    v_max3_f32 v{mx}, v{mx}, v{SD+2}, v{SD+3}
    v_max_f32 v{mx}, v{mx}, v{mx+1}
    v_max_f32_dpp v{mx}, v{mx}, v{mx} {DPP8}
    v_mov_b32 v{mx+1}, v{mx}
    v_permlane16_swap_b32 v{mx+1}, v{mx}
    v_max_f32 v{mx}, v{mx}, v{mx+1}
    v_mov_b32 v{mx+1}, v{mx}
    v_permlane32_swap_b32 v{mx+1}, v{mx}
    v_max_f32 v{mx}, v{mx}, v{mx+1}
    v_mul_f32 v{mx}, s81, v{mx}""")
    vals = [SD, SD + 1, SD + 2, SD + 3, SD + 8, SD + 9, SD + 10, SD + 11]
    for v in vals: A.e(f"v_fma_f32 v{v}, v{v}, s81, -v{mx}")
    for v in vals: A.e(f"v_exp_f32 v{v}, v{v}")
    A.e(f"""
    v_cvt_pk_bf16_f32 v{PF}, v{SD}, v{SD+1}
    v_cvt_pk_bf16_f32 v{PF+1}, v{SD+2}, v{SD+3}
    v_cvt_pk_bf16_f32 v{PM}, v{SD+8}, v{SD+9}
    v_mov_b32_dpp v{PF+2}, v{PF} {DPP8}
    v_mov_b32_dpp v{PF+3}, v{PF+1} {DPP8}
    v_cvt_pk_bf16_f32 v{PM+1}, v{SD+10}, v{SD+11}
    s_waitcnt lgkmcnt(0)
    v_min_u32 v{T+4}, v{T+4}, v{T+5}
    v_mfma_f32_16x16x32_bf16 {vr(SM,4)}, {vr(ONE,4)}, {vr(PF,4)}, 0
    v_cmp_ne_u32 vcc, v{T+4}, v{VST}
    v_mfma_f32_16x16x32_bf16 {vr(SM,4)}, {vr(ONE,4)}, {vr(PM,4)}, {vr(SM,4)}""")
    for tt in range(2): A.e(f"v_mfma_f32_16x16x32_bf16 {vr(OD+tt*4,4)}, {vr(VT+tt*4,4)}, {vr(PF,4)}, 0")
    vw = L("vw"); vb = L("vb")
    A.e(f"s_cbranch_vccnz {vw}")
    A.label(vb)
    for tt in range(2): A.e(f"v_mfma_f32_16x16x32_bf16 {vr(OD+tt*4,4)}, {vr(VM+tt*4,4)}, {vr(PM,4)}, {vr(OD+tt*4,4)}")
    def vwait():
        A.label(vw)
        waitflag(0); waitflag(4)
        A.e(vmr); A.e(f"s_waitcnt lgkmcnt(0)\ns_branch {vb}")
    tail.append(vwait)
    A.e(f"s_mov_b64 exec, s[84:85]\nv_rcp_f32 v{SM+4}, v{SM}")
    for i in range(4): A.e(f"v_pk_mul_f32 {vr(OD+2*i,2)}, {vr(OD+2*i,2)}, {vr(SM+4,2)} op_sel_hi:[1,0]")
    for i in range(4): A.e(f"v_cvt_pk_bf16_f32 v{T+i}, v{OD+2*i}, v{OD+1+2*i}")
    for i in range(4): A.e(f"v_max_u32 v{T+i}, 1, v{T+i}")
    st = f"buffer_store_dwordx4 {vr(T,4)}, v{VOP}, {{S}}, s{sSO} offen"; sh = f"buffer_store_dword v{VST}, v{VHS}, {{S}}, s{sSL} offen offset:512"
    pub(st); pub2(st); A.e("s_mov_b64 exec, 1"); pub(sh); pub2(sh)
    A.e(f"s_mov_b64 exec, -1\nds_write_b32 v{VFL}, v{VST} offset:8")
    if KE == 1:
        ke = L("ke"); keb = L("keb")
        A.e(f"s_cmp_eq_u32 s79, {nsteps-2}\ns_cbranch_scc1 {ke}")
        A.label(keb)
        def kearly():
            A.label(ke)
            A.e(f"s_mov_b64 exec, s[84:85]\nds_read_b128 {vr(KVM,4)}, v{VKR}\ns_mov_b64 exec, -1")
            waitflag(24); waitflag(28)
            A.e(f"buffer_store_dwordx4 {vr(KVM,4)}, v{VKO}, s[20:23], s{sKV} offen sc1\ns_mov_b32 s{sKV}, {OOB:#x}\ns_branch {keb}")
        tail.append(kearly)
    stamp()
    gather(8, 0, smb)
    combineB()
    A.e(f"ds_write_b128 v{VLM}, {vr(ACB,4)} offset:{LBP}\nds_write_b32 v{VFL}, v{VST} offset:12")
    def kvmstore():
        A.e(f"s_mov_b64 exec, s[84:85]\nds_read_b128 {vr(KVM,4)}, v{VKR}\ns_mov_b64 exec, -1")
    kvmstore()
    A.e(f"ds_read_b64 {vr(T+4,2)}, v{VFL} offset:24")
    for x in ktl(sSN): A.e(x)
    v2w = L("v2w"); v2b = L("v2b")
    A.e(f"s_waitcnt lgkmcnt(0)\nv_min_u32 v{T+4}, v{T+4}, v{T+5}\nv_cmp_ne_u32 vcc, v{T+4}, v{VST}\ns_cbranch_vccnz {v2w}")
    A.label(v2b)
    def v2wait():
        A.label(v2w)
        waitflag(24); waitflag(28)
        A.e(f"s_branch {v2b}")
    tail.append(v2wait)
    A.e(f"buffer_store_dwordx4 {vr(KVM,4)}, v{VKO}, s[20:23], s{sKV} offen sc1")
    dmaburst('B', 0)
    A.e("s_xor_b32 s62, s62, 0x10000")
    stamp()
    book(0, 1)
    accum()
    if PROF == 3: A.e("s_memrealtime s[100:101]\ns_waitcnt lgkmcnt(0)\ns_mov_b32 m0, s79\nv_writelane_b32 v254, s100, m0")
    A.e(f"s_add_u32 s79, s79, 1\nv_add_u32 v{VST}, 1, v{VST}\ns_waitcnt vmcnt(0) lgkmcnt(0)\ns_branch {lp}")
    A.label(last0)
    waitflag(0); waitflag(4)
    kvmstore()
    A.e(f"s_waitcnt lgkmcnt(0)\nbuffer_store_dwordx4 {vr(KVM,4)}, v{VKO}, s[20:23], s{sKV} offen sc1\ns_branch {end}")
    flush()
    A.label(f0); prologue03(0, lp)
    for w in (1, 2):
        A.label(lab[w])
        A.e(f"""
        s_lshr_b32 s64, s57, 2
        s_add_u32 s64, s64, 64
        s_lshl_b32 s64, s64, 14
        s_add_u32 s64, s64, s68
        s_add_u32 s64, s64, {QB + (w-1)*1024}
        v_add_u32 v12, s64, v{V16}
        v_and_b32 v22, 1, v4
        v_lshrrev_b32 v23, 1, v4
        v_lshl_add_u32 v22, v22, 1, v23
        v_lshlrev_b32 v22, 2, v22
        v_lshl_add_u32 v22, v3, 4, v22
        v_add_u32 v31, {LB + LVM + (w-1)*256}, v22""")
        if w == 1: A.e(f"v_add_u32 v8, s66, v{V16}\nv_add_u32 v9, s67, v{V16}\nv_mov_b32 v10, {CTGT}\nv_mov_b32 v11, 0")
        f0 = L("first"); A.e(f"s_branch {f0}")
        lp = L("loop"); pn = L("pn")
        A.label(lp)
        phaseA(w)
        A.e(f"s_cmp_eq_u32 s79, {nsteps-1}\ns_cbranch_scc1 {end}")
        stamp()
        bg(w)
        if w == 1:
            for x in slows(1, 'X'): A.e(x)
            for f in (pub, pub2): f(f"buffer_store_dwordx4 {vr(ZERO,4)}, v9, {{S}}, s{sSR} offen")
            A.e("s_mov_b32 exec_hi, 0")
            for f in (pub, pub2):
                f(f"buffer_store_dwordx4 {vr(ZERO,4)}, v8, {{S}}, s{sSR} offen"); f(f"buffer_store_dwordx4 {vr(ZERO,4)}, v8, {{S}}, s{sSO} offen")
            A.e("s_mov_b64 exec, -1")
        A.e("s_waitcnt lgkmcnt(0)")
        stamp()
        accum()
        if w == 2:
            ck = L("late"); ckb = L("lateb")
            A.e(f"s_andn2_b32 s64, s79, 0x14\ns_cmp_eq_u32 s64, 2\ns_cbranch_scc1 {ck}")
            A.label(ckb)
            def late():
                A.label(ck)
                A.e(f"s_cmp_eq_u32 s79, 22\ns_cbranch_scc1 {ckb}")
                A.e(f"v_lshlrev_b32 v184, 2, v{V16}\ns_mov_b32 s52, {XTC + CLN*64}\ns_mov_b32 s53, {CTGT}")
                A.e("s_lshr_b32 s64, s79, 4\ns_lshl_b32 s64, 0x100, s64\ns_cmp_eq_u32 s79, 2\ns_cselect_b32 exec_lo, 0xff, s64\ns_mov_b32 exec_hi, 0")
                dpoll("s[20:23]", "s52", "v_cmp_ne_u32 vcc, s53, v185", 2, voff=1)
                A.e("s_mov_b64 exec, -1")
                A.e(f"s_branch {ckb}")
            tail.append(late)
        if w == 2 and not DBG & 64:
            for r in range(32): A.e(f"s_buffer_load_dword s48, s[20:23], s{sSPF} offset:{r*64}")
        book(w, 1)
        A.e(f"s_add_u32 s79, s79, 1\nv_add_u32 v{VST}, 1, v{VST}\ns_waitcnt vmcnt(0)\ns_branch {lp}")
        flush()
        A.label(f0); prologue(w, lp)
    A.label(lab[3])
    VMP = 30
    A.e(f"""
    v_xor_b32 v{VP+1}, 0x10000, v{VP}
    v_xor_b32 v{VP+2}, 0x20000, v{VP}
    v_xor_b32 v{VP+3}, 0x30000, v{VP}
    v_and_b32 v22, 2, v4
    v_lshrrev_b32 v23, 3, v3
    v_add_u32 v22, v22, v23            ; 2tt + (q>>1)
    v_lshlrev_b32 v22, 3, v22
    v_and_b32 v23, 1, v4
    v_lshl_add_u32 v22, v23, 2, v22
    v_and_b32 v23, 3, v3
    v_add_u32 v22, v22, v23
    v_lshlrev_b32 v22, 4, v22
    v_bfe_u32 v23, v3, 2, 1
    v_lshl_add_u32 v22, v23, 3, v22
    v_add_u32 v{VMP}, s66, v22
    v_and_b32 v22, 7, v3
    v_lshl_add_u32 v12, v4, 3, v22
    v_lshlrev_b32 v12, 4, v12
    v_add_u32 v12, s66, v12""")
    f0 = L("first"); A.e(f"s_branch {f0}")
    lp = L("loop"); pn = L("pn")
    A.label(lp)
    phaseA(3)
    A.e(f"s_cmp_eq_u32 s79, {nsteps-1}\ns_cbranch_scc1 {end}")
    if NA: delay(DA); dmaburst('A', 3)
    if NB3: waitflag(16); dmaburst('S', 3)
    A.e("s_xor_b32 s62, s62, 0x10000")
    stamp()
    waitflag(8)
    gather(8, 8, smb)
    combineB()
    wf = L("wf")
    A.label(wf)
    A.e(f"ds_read_b32 v23, v{VFL} offset:12\nds_read_b128 {vr(T,4)}, v{VLM} offset:{LBP}\ns_sub_u32 s90, s90, 1\ns_waitcnt lgkmcnt(0)\nv_cmp_ne_u32 vcc, v23, v{VST}\ns_cmp_lt_i32 s90, 0\ns_cselect_b64 vcc, 0, vcc")
    A.e(f"v_pk_add_f32 {vr(T,2)}, {vr(T,2)}, {vr(ACB,2)}\nv_pk_add_f32 {vr(T+2,2)}, {vr(T+2,2)}, {vr(ACB+2,2)}\ns_cbranch_vccnz {wf}")
    for i in range(4): A.e(f"v_max_u32 v{T+i}, 1, v{T+i}")
    A.e(f"buffer_store_dwordx4 {vr(T,4)}, v{VP}, s[20:23], s{sPS} offen sc1")
    stamp()
    A.e(f"s_mov_b32 s88, s{sPS}\ns_mov_b32 s89, s{sSN}\nv_add_u32 v{VST}, 1, v{VST}")
    book(3, 1)
    delay(max(0, DP - 170))
    pp_ = L("pp"); pok = L("pok")
    A.label(pp_)
    for p in range(3): A.e(f"buffer_load_dwordx4 {vr(GB+p*4,4)}, v{VP+1+p}, s[20:23], s88 offen sc1")
    b = GB
    A.e(f"s_waitcnt vmcnt(2)\nv_min3_u32 v22, v{b}, v{b+1}, v{b+2}\nv_pk_add_f32 {vr(T+4,2)}, {vr(T,2)}, {vr(b,2)}\nv_pk_add_f32 {vr(T+6,2)}, {vr(T+2,2)}, {vr(b+2,2)}\ns_waitcnt vmcnt(0)")
    for i in range(3, 11, 2): A.e(f"v_min3_u32 v22, v22, v{b+i}, v{b+i+1}")
    A.e(f"""
    v_min_u32 v22, v22, v{b+11}
    v_pk_add_f32 {vr(b+4,2)}, {vr(b+4,2)}, {vr(b+8,2)}
    v_cmp_eq_u32 vcc, 0, v22
    v_pk_add_f32 {vr(b+6,2)}, {vr(b+6,2)}, {vr(b+10,2)}
    s_cbranch_vccz {pok}
    s_sub_u32 s90, s90, 1
    s_cmp_gt_i32 s90, 0
    s_cbranch_scc1 {pp_}""")
    A.label(pok)
    stamp()
    A.e(f"""
    v_pk_add_f32 {vr(T+4,2)}, {vr(T+4,2)}, {vr(b+4,2)}
    v_pk_add_f32 {vr(T+6,2)}, {vr(T+6,2)}, {vr(b+6,2)}
    s_mov_b64 vcc, s[86:87]
    v_cvt_pk_bf16_f32 v{T}, v{T+4}, v{T+5}
    v_cvt_pk_bf16_f32 v{T+1}, v{T+6}, v{T+7}
    v_mov_b32_dpp v{T+2}, v{T} {QP}
    v_mov_b32_dpp v{T+3}, v{T+1} {QP}
    v_perm_b32 v{T}, v{T+2}, v{T}, v{VSEL}
    v_perm_b32 v{T+1}, v{T+3}, v{T+1}, v{VSEL}
    v_cndmask_b32_dpp v{T+4}, v{T+1}, v{T}, vcc {QP2}
    s_not_b64 vcc, vcc
    v_cndmask_b32_dpp v{T+5}, v{T}, v{T+1}, vcc {QP2}
    v_max_u32 v{T+4}, 1, v{T+4}
    v_max_u32 v{T+5}, 1, v{T+5}""")
    st = f"buffer_store_dwordx2 {vr(T+4,2)}, v{VMP}, {{S}}, s89 offen"; sh = f"buffer_store_dword v{VST}, v{VHS}, {{S}}, s89 offen"
    pub(st); pub2(st); A.e("s_mov_b64 exec, 1"); pub(sh); pub2(sh); A.e("s_mov_b64 exec, -1")
    stamp()
    accum()
    A.e(f"s_add_u32 s79, s79, 1\ns_branch {lp}")
    flush()
    A.label(f0)
    def mem0pub():
        assert T == 216
        for i in range(4): A.e(f"v_max_u32 v{T+i}, 1, v{T+i}")
        A.e("s_mov_b64 exec, s[84:85]")
        st = f"buffer_store_dwordx4 {vr(T,4)}, v12, {{S}}, s{sSL} offen"; sh = f"buffer_store_dword v{VST}, v{VHS}, {{S}}, s{sSL} offen"
        pub(st); pub2(st); A.e("s_mov_b64 exec, 1"); pub(sh); pub2(sh); A.e("s_mov_b64 exec, -1")
    prologue03(3, lp, mem0pub)
    A.label(end)
    A.e("s_waitcnt vmcnt(0)\ns_barrier\ns_mov_b32 s50, s91")
    if PROF:
        for k in range(10): A.e(f"v_writelane_b32 v255, s{92+k}, {k}")
        rts(63)
        A.e(f"v_writelane_b32 v255, s90, 57\ns_lshl_b32 s64, s57, 2\ns_add_u32 s64, s64, s50\ns_lshl_b32 s64, s64, 8\ns_add_u32 s64, s64, {241*MB}\nv_lshrrev_b32 v5, 2, v{V16}\nbuffer_store_dword v255, v5, s[20:23], s64 offen")
        A.e(f"s_add_u32 s64, s64, {MB//2}\nbuffer_store_dword v254, v5, s[20:23], s64 offen")
    if after: A.e(f"s_branch {after}")
    A.label(done)
    A.e("s_endpgm")
    if worker: return
    A.label("code_end")
    A.end_kernel(512, 102, 256)
    return dict(grid=256, block=256, lds=160 * 1024)
```
